```python
import torch

def _softmax(x, axis=-1):
    return torch.softmax(x, dim=axis)
def _gelu(x):
    return torch.nn.functional.gelu(x, approximate="tanh")
def _silu(x):
    return torch.nn.functional.silu(x)
def _sigmoid(x):
    return torch.sigmoid(x)
def _layernorm(x, axis=-1, eps=1e-5):
    m = x.mean(dim=axis, keepdim=True)
    v = x.var(dim=axis, keepdim=True, unbiased=False)
    return (x - m) / torch.sqrt(v + eps)
def _scatter_add(tgt, idx, src, axis=0):
    return tgt.clone().index_add_(axis, idx, src)
def _segment_sum(src, seg, n):
    out = torch.zeros((n,) + src.shape[1:], dtype=src.dtype)
    return out.index_add_(0, seg, src)
def _pad(x, pw):
    flat = tuple(v for pair in reversed(pw) for v in pair)
    return torch.nn.functional.pad(x, flat)

kernel_name = 'concat_heads__spectral_fnet__ssm_conv_h3__prompt'

def setup_inputs():

    _w = (lambda a: (lambda t: t.to(torch.bfloat16) if t.is_floating_point() else t)(torch.as_tensor(a)))
    def _A_setup():
        B, S, D = 1, 2048, 640
        ns = torch.arange(S)[:, None] * torch.arange(S)[None, :]
        nd = torch.arange(D)[:, None] * torch.arange(D)[None, :]
        Ws_re = torch.cos(-2.0 * torch.pi * ns / S).to(float)
        Ws_im = torch.sin(-2.0 * torch.pi * ns / S).to(float)
        Wd_re = torch.cos(-2.0 * torch.pi * nd / D).to(float)
        Wd_im = torch.sin(-2.0 * torch.pi * nd / D).to(float)
        return {
            "x": _w((lambda *s: torch.randn(*s, dtype=torch.bfloat16) * 0.05)(B, S, D)),
            "dft_seq_re": _w(Ws_re),
            "dft_seq_im": _w(Ws_im),
            "dft_hid_re": _w(Wd_re),
            "dft_hid_im": _w(Wd_im),
        }
    _A_in = _A_setup()

    def _B_setup():
        B, S, D = 1, 2048, 640
        ks = 4
        return {
            "q": _w((lambda *s: torch.randn(*s, dtype=torch.bfloat16) * 0.05)(B, S, D)),
            "k": _w((lambda *s: torch.randn(*s, dtype=torch.bfloat16) * 3.2)(B, S, D)),
            "v": _w((lambda *s: torch.randn(*s, dtype=torch.bfloat16) * 3.2)(B, S, D)),
            "shift_k": _w((lambda *s: torch.randn(*s, dtype=torch.bfloat16) * 3.2)(D, ks) * 0.5),
            "ssm_k": _w((lambda *s: torch.randn(*s, dtype=torch.bfloat16) * 3.2)(D, S) * (1.0 / S ** 0.5)),
            "ssm_D": _w((lambda *s: torch.randn(*s, dtype=torch.bfloat16) * 3.2)(D)),
        }
    _B_in = _B_setup()

    return {
        "A_x": _A_in["x"],
        "A_dft_seq_re": _A_in["dft_seq_re"],
        "A_dft_seq_im": _A_in["dft_seq_im"],
        "A_dft_hid_re": _A_in["dft_hid_re"],
        "A_dft_hid_im": _A_in["dft_hid_im"],
        "B_q": _B_in["q"],
        "B_k": _B_in["k"],
        "B_v": _B_in["v"],
        "B_shift_k": _B_in["shift_k"],
        "B_ssm_k": _B_in["ssm_k"],
        "B_ssm_D": _B_in["ssm_D"],
    }

def reference(A_x, A_dft_seq_re, A_dft_seq_im, A_dft_hid_re, A_dft_hid_im, B_q, B_k, B_v, B_shift_k, B_ssm_k, B_ssm_D):
    def _A_ref(x, dft_seq_re, dft_seq_im, dft_hid_re, dft_hid_im):
        a = torch.einsum("bsd,ed->bse", x, dft_hid_re)
        b = torch.einsum("bsd,ed->bse", x, dft_hid_im)
        y = torch.einsum("ts,bse->bte", dft_seq_re, a) - torch.einsum("ts,bse->bte", dft_seq_im, b)
        return y

    def _B_ref(q, k, v, shift_k, ssm_k, ssm_D):
        B, S, D = q.shape
        ks = shift_k.shape[-1]
        k_pad = _pad(k, ((0, 0), (ks - 1, 0), (0, 0)))
        k_shift = torch.zeros_like(k)
        for t in range(ks):
            k_shift = k_shift + k_pad[:, t:t + S, :] * shift_k[:, ks - 1 - t][None, None, :]
        kv = k_shift * v
        L = 2 * S
        kv_pad = _pad(kv, ((0, 0), (0, S), (0, 0)))
        kf_pad = _pad(ssm_k, ((0, 0), (0, S)))
        kv_f = (lambda x, axes=(-2,-1): torch.fft.rfft2(x.float(), dim=axes))(kv_pad[:, None, :, :], axes=(1, 2))
        kf_f = (lambda x, axes=(-2,-1): torch.fft.rfft2(x.float(), dim=axes))(kf_pad[:, None, :], axes=(1, 2))
        kf_f = (lambda x, *d: x.permute(*d))(kf_f, 1, 2, 0)
        y_f = kv_f * kf_f[None, :, :, :]
        y = (lambda x, s, axes=(-2,-1): torch.fft.irfft2(x, s=s, dim=axes).to(torch.bfloat16))(y_f, (1, L), axes=(1, 2))[:, 0, :S, :]
        y = y + kv * ssm_D[None, None, :]
        return q * y

    a = _A_ref(A_x, A_dft_seq_re, A_dft_seq_im, A_dft_hid_re, A_dft_hid_im)
    b = _B_ref(B_q, B_k, B_v, B_shift_k, B_ssm_k, B_ssm_D)
    return torch.concatenate([a, b], axis=-1)
```

```python
import re

_REG = re.compile(r'^(-|\|)?(v|s|a)(\d+)\|?$')
_RNG = re.compile(r'^(-)?(v|s|a)\[(\d+):(\d+)\]$')

def regs_of(op):
    op = op.strip()
    m = _REG.match(op)
    if m: return {(m.group(2), int(m.group(3)))}
    m = _RNG.match(op)
    if m: return {(m.group(2), i) for i in range(int(m.group(3)), int(m.group(4)) + 1)}
    if op in ('vcc', 'exec', 'm0', 'scc'): return {(op, 0)}
    if op in ('vcc_lo', 'vcc_hi'): return {('vcc', 0)}
    if op in ('exec_lo', 'exec_hi'): return {('exec', 0)}
    return set()

def V(n, cnt=1): return f"v{n}" if cnt == 1 else f"v[{n}:{n+cnt-1}]"
def S(n, cnt=1): return f"s{n}" if cnt == 1 else f"s[{n}:{n+cnt-1}]"

TRANS = ('v_exp_', 'v_log_', 'v_rcp_', 'v_rsq_', 'v_sqrt_', 'v_sin_', 'v_cos_')

class Ins:
    __slots__ = ('op', 'cls', 'rd', 'wr', 'text', 'ws', 'dpp', 'srcC', 'wide_store', 'sdata', 'passes', 'tag')

class Asm:
    def __init__(self):
        self.out = []
        self.hist = []
        self.vm = []
        self.lg = []
        self.nins = 0
        self.stats = {}

    def raw(self, t): self.out.append(t)
    def comment(self, t): self.out.append(f"  ; {t}")
    def label(self, name):
        self.out.append(f"{name}:")
    def reset_state(self):
        self.hist = []; self.vm = []; self.lg = []

    def _classify(self, op, args, mods):
        i = Ins(); i.op = op; i.dpp = ('_dpp' in op) ; i.srcC = set(); i.wide_store = False; i.sdata = set(); i.passes = 0; i.ws = 1; i.tag=None
        R = [regs_of(a) for a in args]
        U = lambda xs: set().union(*xs) if xs else set()
        if op.startswith('v_mfma'):
            i.cls = 'mfma'; i.wr = R[0]; i.rd = U(R[1:]); i.srcC = R[3]
            i.passes = 8 if '32x32' in op else 4
        elif op.startswith('ds_read') or op.startswith('ds_bpermute') or op.startswith('ds_swizzle'):
            i.cls = 'ds'; i.wr = R[0]; i.rd = U(R[1:])
        elif op.startswith('ds_'):
            i.cls = 'ds'; i.wr = set(); i.rd = U(R)
        elif op.startswith('buffer_load') or op.startswith('global_load'):
            i.cls = 'vmem'
            if ' lds' in (' ' + mods) or '_lds_' in op:
                i.wr = set(); i.rd = U(R) | {('m0', 0)}; i.cls = 'vmem'; i.tag = 'dma'
            else:
                i.wr = R[0]; i.rd = U(R[1:])
        elif op.startswith('buffer_store') or op.startswith('global_store') or op.startswith('buffer_atomic') or op.startswith('global_atomic'):
            i.cls = 'vmem'; i.wr = set(); i.rd = U(R)
            if op.endswith('x4') or op.endswith('x3'):
                i.wide_store = True
                i.sdata = R[0] if op.startswith('buffer') else R[1]
        elif op.startswith('buffer_'):
            i.cls = 'vmem'; i.wr = set(); i.rd = set()
        elif op.startswith('s_load') or op.startswith('s_buffer_load') or op in ('s_memtime', 's_memrealtime'):
            i.cls = 'smem'; i.wr = R[0]; i.rd = U(R[1:])
        elif op.startswith('v_'):
            i.cls = 'trans' if op.startswith(TRANS) else 'valu'
            if op.startswith('v_permlane') and 'swap' in op:
                i.wr = R[0] | R[1]; i.rd = R[0] | R[1]
            elif op.startswith('v_cmpx'):
                i.wr = R[0] | {('exec', 0)}; i.rd = U(R[1:])
            elif op.startswith(('v_add_co', 'v_sub_co', 'v_addc_co', 'v_subb_co')):
                i.wr = R[0] | R[1]; i.rd = U(R[2:])
            else:
                i.wr = R[0]; i.rd = U(R[1:])
                if op.startswith(('v_fmac', 'v_dot2c', 'v_writelane')) or i.dpp or '_sdwa' in op:
                    i.rd = i.rd | R[0]
                if op.startswith('v_cndmask') and len(args) == 3:
                    i.rd = i.rd | {('vcc', 0)}
        elif op.startswith('s_'):
            i.cls = 'salu'
            if op.startswith(('s_cmp', 's_cbranch', 's_branch', 's_waitcnt', 's_barrier', 's_nop', 's_endpgm', 's_sleep', 's_setprio', 's_bitcmp')):
                i.wr = set(); i.rd = U(R)
            elif 'saveexec' in op:
                i.wr = R[0] | {('exec', 0)}; i.rd = U(R[1:]) | {('exec', 0)}
            else:
                i.wr = R[0]; i.rd = U(R[1:])
                if op.startswith(('s_addk', 's_mulk')): i.rd = i.rd | R[0]
            if op == 's_nop': i.ws = int(args[0]) + 1
        else:
            raise ValueError(op)
        return i

    def _need(self, p, c):
        n = 0
        vw = {r for r in p.wr if r[0] in 'va'}
        sw = {r for r in p.wr if r[0] in ('s', 'vcc')}
        pv = p.cls in ('valu', 'trans')
        cv = c.cls in ('valu', 'trans')
        if pv:
            if c.cls == 'mfma' and vw & c.rd: n = max(n, 2)
            if cv and c.dpp and vw & c.rd: n = max(n, 2)
            if c.op.startswith('v_permlane') and vw & c.rd: n = max(n, 2)
            if c.op.startswith(('v_readlane', 'v_readfirstlane')) and vw & c.rd: n = max(n, 1)
            if p.cls == 'trans' and c.cls != 'trans' and vw & (c.rd | c.wr): n = max(n, 1)
            if p.cls == 'trans' and c.cls == 'trans' and vw & c.rd: n = max(n, 1)
            if sw & c.rd:
                if c.cls == 'vmem': n = max(n, 5)
                elif cv: n = max(n, 4 if c.op.startswith(('v_readlane', 'v_writelane')) else 2)
                elif c.cls in ('salu', 'smem'): n = max(n, 1)
            if ('exec', 0) in p.wr:
                n = max(n, 5)
            if ('_sdwa' in p.op or 'op_sel' in p.text) and cv and vw & (c.rd | c.wr): n = max(n, 1)
        if p.cls == 'mfma':
            big = {4: 8, 8: 12}[p.passes]
            if c.cls == 'mfma':
                if p.wr & c.srcC:
                    if p.wr == c.srcC and p.passes == c.passes: pass
                    else: n = max(n, {4: 6, 8: 10}[p.passes])
                ab = c.rd - c.srcC if not (c.srcC & (c.rd - c.srcC)) else c.rd
                if p.wr & self._ab(c): n = max(n, big)
                if p.wr & c.wr and not (p.wr == c.srcC): n = max(n, big)
            elif p.wr & (c.rd | c.wr): n = max(n, big)
            if cv and p.srcC & c.wr: n = max(n, {4: 3, 8: 7}[p.passes])
        if p.cls == 'salu' and ('m0', 0) in p.wr and ('m0', 0) in c.rd and c.cls in ('vmem', 'ds'): n = max(n, 1)
        if p.wide_store and p.sdata & c.wr: n = max(n, 2)
        return n

    @staticmethod
    def _ab(c):
        a = c.text.split(None, 1)[1].split(',')
        return regs_of(a[1]) | regs_of(a[2])

    def _emit(self, i):
        self.out.append("  " + i.text)
        self.hist.append(i)
        if len(self.hist) > 24: self.hist.pop(0)
        self.nins += 1
        self.stats[i.cls] = self.stats.get(i.cls, 0) + 1

    def nop(self, n):
        while n > 0:
            k = min(n, 16)
            i = self._classify('s_nop', [str(k - 1)], ''); i.text = f"s_nop {k-1}"
            self._emit(i); n -= k

    def waitcnt(self, vm=None, lg=None):
        parts = []
        if vm is not None and len(self.vm) > vm:
            assert vm <= 63
            parts.append(f"vmcnt({vm})"); self.vm = self.vm[len(self.vm) - vm:] if vm else []
        if lg is not None and len(self.lg) > lg:
            if any(x[1] for x in self.lg): lg = 0
            lg = min(lg, 15)
            parts.append(f"lgkmcnt({lg})"); self.lg = self.lg[len(self.lg) - lg:] if lg else []
        if parts:
            i = self._classify('s_waitcnt', [], ''); i.text = "s_waitcnt " + " ".join(parts)
            self._emit(i)

    def wait_tag(self, tag):
        idx = [k for k, x in enumerate(self.vm) if x[1] == tag]
        if idx: self.waitcnt(vm=min(63, len(self.vm) - 1 - idx[-1]))

    def I(self, op, *args, mods="", tag=None):
        args = [str(a) for a in args]
        i = self._classify(op, args, mods)
        i.text = op + (" " + ", ".join(args) if args else "") + (" " + mods if mods else "")
        touched = i.rd | i.wr
        vmn = None; lgn = None
        for k, (w, _t) in enumerate(self.vm):
            if w & touched: vmn = len(self.vm) - 1 - k
        for k, (w, sm, _t) in enumerate(self.lg):
            if w & touched: lgn = len(self.lg) - 1 - k
        if vmn is not None: vmn = min(vmn, 63)
        if vmn is not None or lgn is not None: self.waitcnt(vm=vmn, lg=lgn)
        need = 0; dist = 0
        for p in reversed(self.hist):
            r = self._need(p, i)
            if r - dist > need: need = r - dist
            dist += p.ws
            if dist >= 20: break
        if need > 0: self.nop(need)
        self._emit(i)
        if i.cls == 'vmem':
            self.vm.append((i.wr, tag))
            assert len(self.vm) <= 63, "too many vmem outstanding"
        elif i.cls == 'ds':
            self.lg.append((i.wr, False, tag))
        elif i.cls == 'smem':
            self.lg.append((i.wr, True, tag))
        return i

    def barrier(self, lds=True):
        if lds: self.waitcnt(lg=0)
        self.I('s_barrier')

    def text(self): return "\n".join(self.out) + "\n"
```

```python
import numpy as np
def f32_to_bf16(f):
    u = np.ascontiguousarray(f, dtype=np.float32).view(np.uint32)
    r = ((u >> 16) & 1) + 0x7FFF
    return ((u + r) >> 16).astype(np.uint16)
L = np.arange(64); COL = L & 15; G = L >> 4
E = np.arange(8)
PJ = 4*(COL & 3) + (COL >> 2)
def cosr(num, den):
    return np.cos(2*np.pi*(np.asarray(num) % den)/den)
def sinr(num, den):
    return np.sin(2*np.pi*(np.asarray(num) % den)/den)

def t1_d1():
    out = []
    j1 = PJ[:, None]; comp = (G >> 1)[:, None]; m1 = (8*(G & 1))[:, None] + E[None, :]
    c = cosr(m1*j1, 16); s = sinr(m1*j1, 16)
    out.append(np.where(comp == 0, c, s))
    out.append(np.where(comp == 0, -s, c))
    return f32_to_bf16(np.stack(out))
def t1_tw():
    out = []
    for tau in range(3):
        m2 = 16*tau + 4*G[:, None] + np.arange(4)[None, :]
        j1 = PJ[:, None]
        out.append(cosr(m2*j1, 640)); out.append(sinr(m2*j1, 640))
    return np.stack(out).astype(np.float32)
def t1_d2():
    out = []
    for tau in range(3):
        for jt in range(3):
            m2 = 16*tau + 4*G[:, None] + (E & 3)[None, :]
            comp = (E >> 2)[None, :]
            j2 = 16*jt + COL[:, None]
            v = np.where(comp == 0, cosr(m2*j2, 40), sinr(m2*j2, 40))
            v = np.where((m2 >= 40) | (j2 >= 40), 0.0, v)
            out.append(v)
    return f32_to_bf16(np.stack(out))
def t2():
    out = []
    for kt in range(8):
        for st in range(4):
            rho = 32*st + 8*G[:, None] + E[None, :]
            ty = rho >> 6; c = rho & 63
            k2 = 16*kt + COL[:, None]
            v = np.where(ty == 0, cosr(c*k2, 128), np.where(c == 0, np.where(k2 & 1, -1.0, 1.0), sinr(c*k2, 128)))
            out.append(v)
    return f32_to_bf16(np.stack(out))

def as_asm(arr):
    b = np.ascontiguousarray(arr).view(np.uint8).reshape(-1)
    q = b.view(np.uint64)
    lines = []
    for i in range(0, len(q), 8):
        lines.append(".quad " + ",".join("0x%x" % int(x) for x in q[i:i+8]))
    return "\n".join(lines) + "\n"
```

```python
import sys
from emit import Asm, V, S
import tables as T

OPT = dict(a.split('=') for a in sys.argv[2:])
def opt(k, d): return type(d)(OPT.get(k, d))

H_OFF = 0
U_OFF = 0x400000
NBYTES = 2048 * 640 * 2
ST_I = opt('st_i', 'sc1')
ST_O = opt('st_o', '')
ST_I = '' if ST_I == 'p' else ST_I
ST_O = '' if ST_O == 'p' else ST_O

def srd(a, d, base, nbytes, add=0):
    if add:
        a.I('s_add_u32', S(d), S(base), hex(add)); a.I('s_addc_u32', S(d+1), S(base+1), 0)
    elif d != base:
        a.I('s_mov_b32', S(d), S(base)); a.I('s_mov_b32', S(d+1), S(base+1))
    a.I('s_mov_b32', S(d+2), hex(nbytes)); a.I('s_mov_b32', S(d+3), '0x20000')

def merge(a, *lists):
    lists = [l for l in lists if l]
    pos = [0]*len(lists)
    total = sum(len(l) for l in lists)
    for _ in range(total):
        k = min((i for i in range(len(lists)) if pos[i] < len(lists[i])), key=lambda i: (pos[i] + 0.5) / len(lists[i]))
        lists[k][pos[k]](); pos[k] += 1

MF = 'v_mfma_f32_16x16x32_bf16'
TR = 'ds_read_b64_tr_b16'

K1_T = 0
K1_X = 17*1024
K1_R = K1_X + 40960
RS = 2568
K1_LDS = K1_R + 16*RS + 64

def k1(a):
    a.raw(".globl k1_kernel\n.p2align 8\n.type k1_kernel,@function\nk1_kernel:")
    a.reset_state()
    a.I('s_cmp_ge_u32', 's2', 256); a.I('s_cbranch_scc1', 'K1_END')
    a.I('s_load_dwordx2', S(4,2), S(0,2), 0)
    a.I('s_load_dwordx4', S(8,4), S(0,2), 48)
    a.I('s_load_dwordx4', S(12,4), S(0,2), 64)
    a.I('s_load_dwordx2', S(6,2), S(0,2), 104)
    a.I('v_lshrrev_b32', 'v2', 6, 'v0')
    a.I('v_and_b32', 'v1', 63, 'v0')
    a.I('v_readfirstlane_b32', 's3', 'v2')
    a.I('s_cmp_ge_u32', 's2', 128); a.I('s_cbranch_scc1', 'K1_B')
    st = (list(a.hist), list(a.vm), list(a.lg))
    k1_a(a)
    a.label('K1_B')
    a.hist, a.vm, a.lg = st
    k1_b(a)
    a.label('K1_END')
    a.I('s_endpgm')

def k1_b(a):
    a.I('s_cmp_ge_u32', 's3', 5); a.I('s_cbranch_scc1', 'K1_END')
    a.I('s_and_b32', 's16', 's2', 7)
    a.I('s_bfe_u32', 's17', 's2', hex(3 | (3 << 16)))
    a.I('s_lshl_b32', 's16', 's16', 3)
    a.I('s_add_u32', 's16', 's16', 's17')
    a.I('s_bfe_u32', 's17', 's2', hex(6 | (1 << 16)))
    a.I('s_mul_i32', 's17', 's17', 320)
    a.I('s_lshl_b32', 's18', 's3', 6)
    a.I('s_add_u32', 's17', 's17', 's18')
    a.I('s_lshl_b32', 's16', 's16', 5)
    a.I('v_and_b32', 'v3', 15, 'v1')
    a.I('v_lshrrev_b32', 'v4', 4, 'v1')
    a.I('v_lshl_add_u32', 'v5', 'v3', 2, 's17')
    a.I('v_lshl_add_u32', 'v6', 'v4', 3, 's16')
    a.I('v_mul_u32_u24', 'v7', 1280, 'v6')
    a.I('v_lshl_add_u32', 'v7', 'v5', 1, 'v7')
    a.I('v_subrev_u32', 'v8', 3840, 'v7')
    a.I('v_lshlrev_b32', 'v9', 3, 'v5')
    a.I('s_mov_b32', 's36', 5120)
    srd(a, 20, 8, NBYTES); srd(a, 24, 10, NBYTES); srd(a, 28, 12, 640*8)
    KR, VR, WR = 12, 34, 52
    KU, WU, KS, TMP, O = 60, 104, 120, 152, 160
    a.I('buffer_load_dwordx4', V(WR,4), 'v9', S(28,4), 0, mods='offen')
    a.I('buffer_load_dwordx4', V(WR+4,4), 'v9', S(28,4), 0, mods='offen offset:16')
    for j in range(3):
        a.I('buffer_load_dwordx2', V(KR+2*j,2), 'v8', S(20,4), 0, mods=f'offen offset:{1280*j}')
    for j in range(8):
        a.I('buffer_load_dwordx2', V(KR+6+2*j,2), 'v7', S(20,4), 's36' if j >= 4 else 0, mods=f'offen offset:{1280*(j%4)}')
    for j in range(8):
        a.I('buffer_load_dwordx2', V(VR+2*j,2), 'v7', S(24,4), 's36' if j >= 4 else 0, mods=f'offen offset:{1280*(j%4)}')
    a.I('v_lshlrev_b32', 'v10', 12, 'v5')
    a.I('v_lshl_add_u32', 'v10', 'v6', 1, 'v10')
    srd(a, 32, 6, NBYTES, add=U_OFF)
    a.I('s_mov_b32', 's37', 4096); a.I('s_mov_b32', 's38', 8192); a.I('s_mov_b32', 's39', 12288)
    a.I('s_mov_b32', 's40', '0xffff0000')
    def unpack(dst_lo, dst_hi, src):
        a.I('v_lshlrev_b32', V(dst_lo), 16, V(src)); a.I('v_and_b32', V(dst_hi), 's40', V(src))
    for ch in range(4):
        unpack(WU+0*4+ch, WU+1*4+ch, WR+2*ch)
        unpack(WU+2*4+ch, WU+3*4+ch, WR+2*ch+1)
    def unk(j):
        unpack(KU+4*j, KU+4*j+1, KR+2*j); unpack(KU+4*j+2, KU+4*j+3, KR+2*j+1)
    for j in range(3): unk(j)
    for j in range(8):
        unk(j+3)
        for p in range(2):
            d = V(KS+4*j+2*p, 2)
            a.I('v_pk_mul_f32', d, V(KU+4*j+2*p,2), V(WU+3*4+2*p,2))
        for t in range(1, 4):
            for p in range(2):
                d = V(KS+4*j+2*p, 2)
                a.I('v_pk_fma_f32', d, V(KU+4*(j+t)+2*p,2), V(WU+(3-t)*4+2*p,2), d)
    for j in range(8):
        t = TMP + 4*(j & 1)
        unpack(t, t+1, VR+2*j); unpack(t+2, t+3, VR+2*j+1)
        for p in range(2):
            d = V(KS+4*j+2*p, 2)
            a.I('v_pk_mul_f32', d, d, V(t+2*p,2))
        if j & 1:
            for ch in range(4):
                a.I('v_cvt_pk_bf16_f32', V(O+4*ch+j//2), V(KS+4*(j-1)+ch), V(KS+4*j+ch))
    for ch in range(4):
        a.I('buffer_store_dwordx4', V(O+4*ch,4), 'v10', S(32,4), ['0','s37','s38','s39'][ch], mods=('offen ' + ST_I).strip())
    a.I('s_endpgm')

def k1_a(a):
    a.I('s_and_b32', 's16', 's2', 7)
    a.I('s_lshr_b32', 's17', 's2', 4)
    a.I('s_lshl_b32', 's17', 's17', 3)
    a.I('s_or_b32', 's16', 's16', 's17')
    a.I('s_bfe_u32', 's17', 's2', hex(3 | (1 << 16)))
    a.I('s_sub_u32', 's18', 128, 's16')
    a.I('s_cmp_eq_u32', 's16', 0)
    a.I('s_cselect_b32', 's18', 64, 's18')
    a.I('s_and_b32', 's19', 's3', 3)
    a.I('s_lshr_b32', 's20', 's3', 2)
    a.I('s_getpc_b64', S(24,2))
    a.label('K1_PC')
    a.I('s_add_u32', 's24', 's24', 'TBL1-K1_PC'); a.I('s_addc_u32', 's25', 's25', 0)
    a.I('s_mov_b32', 's26', 17*1024); a.I('s_mov_b32', 's27', '0x20000')
    a.I('v_lshlrev_b32', 'v3', 4, 'v1')
    a.I('s_lshl_b32', 's21', 's3', 10)
    a.I('s_add_u32', 'm0', 's21', K1_T)
    a.I('s_add_u32', 's22', 's21', 8192)
    a.I('buffer_load_dwordx4', 'v3', S(24,4), 's21', mods='offen lds', tag='tbl')
    a.I('s_add_u32', 'm0', 's22', K1_T)
    a.I('s_add_u32', 's23', 's22', 8192)
    a.I('buffer_load_dwordx4', 'v3', S(24,4), 's22', mods='offen lds', tag='tbl')
    a.I('s_mov_b32', 'm0', K1_T + 16*1024)
    a.I('s_mov_b32', 's23', 16*1024)
    a.I('buffer_load_dwordx4', 'v3', S(24,4), 's23', mods='offen lds', tag='tbl')
    a.I('v_lshrrev_b32', 'v4', 3, 'v1')
    a.I('v_and_b32', 'v5', 7, 'v1')
    a.I('v_and_b32', 'v6', 2, 'v4')
    a.I('s_and_b32', 's28', 's19', 1); a.I('s_lshl_b32', 's28', 's28', 2)
    a.I('v_xor_b32', 'v5', 'v5', 'v6')
    a.I('v_xor_b32', 'v5', 's28', 'v5')
    a.I('s_mov_b32', 's29', 128*1280)
    a.I('v_mul_lo_u32', 'v6', 'v4', 's29')
    a.I('v_lshl_add_u32', 'v6', 'v5', 4, 'v6')
    a.I('s_cmp_ge_u32', 's19', 2)
    a.I('s_cselect_b32', 's30', 's18', 's16')
    a.I('s_lshl_b32', 's31', 's28', 8)
    a.I('s_add_u32', 's30', 's30', 's31')
    a.I('s_mul_i32', 's30', 's30', 1280)
    a.I('s_mul_i32', 's31', 's20', 640)
    a.I('s_add_u32', 's30', 's30', 's31')
    a.I('s_mul_i32', 's31', 's19', 10240)
    a.I('s_mul_i32', 's32', 's20', 5120)
    a.I('s_add_u32', 's31', 's31', 's32')
    srd(a, 36, 4, NBYTES)
    for i in range(5):
        a.I('s_add_u32', 'm0', 's31', K1_X + i*(1024-128))
        a.I('buffer_load_dwordx4', 'v6', S(36,4), 's30', mods=f'offen offset:{128*i} lds', tag='x')
    AL = 8
    TM = 16
    a.I('v_and_b32', 'v4', 15, 'v1')
    a.I('v_lshrrev_b32', 'v5', 4, 'v1')
    a.I('v_cmp_gt_u32', 'vcc', 2, 'v5')
    a.I('v_mov_b32', 'v6', 's18')
    a.I('v_mov_b32', 'v7', 's16')
    a.I('v_cndmask_b32', 'v6', 'v6', 'v7', 'vcc')
    a.I('v_and_b32', 'v7', 1, 'v5')
    a.I('v_lshl_add_u32', 'v6', 'v7', 10, 'v6')
    a.I('v_mul_u32_u24', 'v6', 'v6', 'v4')
    a.I('s_cmp_lg_u32', 's16', 0); a.I('s_cselect_b32', 's33', 's17', 0)
    a.I('s_mul_i32', 's34', 's33', 512); a.I('s_mul_i32', 's35', 's33', 1536)
    a.I('v_mov_b32', 'v7', 's35'); a.I('v_mov_b32', V(TM), 's34')
    a.I('v_cndmask_b32', 'v7', 'v7', V(TM), 'vcc')
    a.I('v_add_u32', 'v6', 'v6', 'v7')
    a.I('v_cvt_f32_u32', 'v6', 'v6')
    a.I('v_mul_f32', 'v6', '0x3a000000', 'v6')
    a.I('v_cvt_f32_u32', 'v7', 'v4')
    a.I('v_mul_f32', 'v7', '0x3d800000', 'v7')
    a.I('s_cmp_eq_u32', 's17', 0); a.I('s_cselect_b32', 's34', -1, 0); a.I('s_cselect_b32', 's35', 0, -1)
    a.I('s_cmp_lg_u32', 's16', 0); a.I('s_cselect_b32', 's34', -1, 's34'); a.I('s_cselect_b32', 's35', -1, 's35')
    a.I('v_mov_b32', V(TM), 's35'); a.I('v_mov_b32', V(TM+1), 's34')
    a.I('v_cndmask_b32', 'v2', V(TM), V(TM+1), 'vcc')
    for e in range(8):
        a.I('v_cos_f32', V(TM+e), 'v6')
        a.I('v_sin_f32', V(TM+8+e), '-v6')
        if e < 7: a.I('v_add_f32', 'v6', 'v6', 'v7')
    for h in range(2):
        for j in range(4):
            a.I('v_cvt_pk_bf16_f32', V(AL+4*h+j), V(TM+8*h+2*j), V(TM+8*h+2*j+1))
    for j in range(8):
        a.I('v_and_b32', V(AL+j), 'v2', V(AL+j))
    VA, VW, VD, VD2, VS = 4, 5, 6, 7, 2
    a.I('v_lshrrev_b32', V(TM), 4, 'v1')
    a.I('v_bfe_u32', V(TM+1), 'v1', 2, 2)
    a.I('v_and_b32', V(TM+2), 3, 'v1')
    a.I('v_and_b32', V(TM+3), 15, 'v1')
    a.I('v_bfe_u32', V(TM+4), 'v1', 3, 2)
    a.I('v_xor_b32', V(TM+4), 's19', V(TM+4))
    a.I('v_mul_u32_u24', V(VA), 10240, V(TM))
    a.I('v_lshl_add_u32', V(VA), V(TM+1), 7, V(VA))
    a.I('v_lshl_add_u32', V(VA), V(TM+4), 5, V(VA))
    a.I('v_lshl_add_u32', V(VA), V(TM+2), 3, V(VA))
    a.I('v_add_u32', V(VA), 's32', V(VA))
    a.I('v_mul_u32_u24', V(VW), RS, V(TM+3))
    a.I('v_lshl_add_u32', V(VW), V(TM), 3, V(VW))
    a.I('s_lshl_b32', 's33', 's19', 5); a.I('s_mul_i32', 's34', 's20', 640); a.I('s_add_u32', 's33', 's33', 's34')
    a.I('v_add_u32', V(VW), 's33', V(VW))
    a.I('v_lshrrev_b32', V(TM+5), 1, V(TM))
    a.I('v_mul_u32_u24', V(VD), 1280, V(TM+5))
    a.I('v_and_b32', V(TM+5), 1, V(TM))
    a.I('v_lshl_add_u32', V(TM+5), V(TM+5), 3, V(TM+1))
    a.I('v_mul_u32_u24', V(TM+5), 80, V(TM+5))
    a.I('v_add_u32', V(VD), V(VD), V(TM+5))
    a.I('s_mul_i32', 's33', 's3', 2*RS)
    a.I('v_add_u32', V(VD), 's33', V(VD))
    a.I('v_and_b32', V(TM+5), 1, V(TM+2))
    a.I('v_lshl_add_u32', V(VD2), V(TM+5), 3, V(VD))
    a.I('v_lshl_add_u32', V(VD), V(TM+2), 3, V(VD))
    a.I('v_lshrrev_b32', V(TM+5), 1, V(TM+3))
    a.I('v_lshlrev_b32', V(VS), 6, V(TM+5))
    a.I('v_and_b32', V(TM+5), 1, V(TM)); a.I('v_lshl_add_u32', V(VS), V(TM+5), 5, V(VS))
    a.I('v_and_b32', V(TM+5), 1, V(TM+3)); a.I('v_lshl_add_u32', V(VS), V(TM+5), 4, V(VS))
    a.I('v_lshrrev_b32', V(TM+5), 1, V(TM)); a.I('v_lshl_add_u32', V(VS), V(TM+5), 3, V(VS))
    VS2 = 1
    a.I('v_cmp_gt_u32', 'vcc', 8, V(TM+3))
    a.I('v_mov_b32', V(TM+5), '0x7ff00000')
    a.I('v_cndmask_b32', V(VS2), V(TM+5), V(VS), 'vcc')
    srd(a, 40, 6, NBYTES, add=H_OFF)
    a.I('s_lshl_b32', 's33', 's3', 8); a.I('s_lshl_b32', 's34', 's17', 6)
    a.I('s_add_u32', 's33', 's33', 's34'); a.I('s_add_u32', 's33', 's33', 's16')
    a.I('s_mul_i32', 's44', 's33', 1280); a.I('s_add_u32', 's45', 's44', 128*1280)
    D1B, TW, D2B = 48, 56, 80
    a.wait_tag('tbl'); a.I('s_barrier')
    for i in range(17):
        a.I('ds_read_b128', V(D1B+4*i,4), 'v3', mods=f'offset:{K1_T+1024*i}')
    a.wait_tag('x'); a.I('s_barrier')
    AF, AD, PK = 116, 136, 176
    for i in range(5):
        for h in range(2):
            a.I(TR, V(AF+4*i+2*h,2), V(VA), mods=f'offset:{K1_X+1024*i+512*h}')
    def fin(i):
        for cp in range(2):
            d = AD+8*i+4*cp; p = PK+4*i+2*cp
            a.I('v_cvt_pk_bf16_f32', V(p), V(d), V(d+1)); a.I('v_cvt_pk_bf16_f32', V(p+1), V(d+2), V(d+3))
            a.I('ds_write_b64', V(VW), V(p,2), mods=f'offset:{K1_R+1280*cp+128*i}')
    for i in range(7):
        if i < 5:
            for cp in range(2):
                a.I(MF, V(AD+8*i+4*cp,4), V(AF+4*i,4), V(AL+4*cp,4), 0)
        if i >= 2: fin(i-2)
    a.barrier()
    DF, D1, WP, D2, OP, TT = 116, 140, 188, 212, 236, 16
    for r in range(2):
        for tau in range(3):
            for h in range(2):
                a.I(TR, V(DF+12*r+4*tau+2*h,2), V(VD2 if tau == 2 else VD), mods=f'offset:{K1_R+RS*r+320*h+32*tau}')
    def d1(r):
        return [(lambda tau=tau, cp=cp: a.I(MF, V(D1+24*r+8*tau+4*cp,4), V(DF+12*r+4*tau,4), V(D1B+4*cp,4), 0)) for tau in range(3) for cp in range(2)]
    def twd(r):
        l = []
        for tau in range(3):
            re = D1+24*r+8*tau; im = re+4; tc = TW+8*tau; ts = tc+4; t = TT+8*(tau & 1)+16*r
            for j in range(4): l.append(lambda j=j, re=re, tc=tc, t=t: a.I('v_mul_f32', V(t+j), V(re+j), V(tc+j)))
            for j in range(4): l.append(lambda j=j, im=im, tc=tc, t=t: a.I('v_mul_f32', V(t+4+j), V(im+j), V(tc+j)))
            for j in range(4): l.append(lambda j=j, im=im, ts=ts, t=t: a.I('v_fmac_f32', V(t+j), V(im+j), V(ts+j)))
            for j in range(4): l.append(lambda j=j, re=re, ts=ts, t=t: a.I('v_fma_f32', V(t+4+j), '-'+V(re+j), V(ts+j), V(t+4+j)))
            for j in range(4): l.append(lambda j=j, t=t, tau=tau: a.I('v_cvt_pk_bf16_f32', V(WP+12*r+4*tau+j), V(t+2*j), V(t+2*j+1)))
        return l
    def d2(r):
        return [(lambda tau=tau, jt=jt: a.I(MF, V(D2+12*r+4*jt,4), V(WP+12*r+4*tau,4), V(D2B+12*tau+4*jt,4), 0 if tau == 0 else V(D2+12*r+4*jt,4)))
                for tau in range(3) for jt in range(3)]
    def outp(r):
        l = []
        for jt in range(3):
            d = D2+12*r+4*jt; p = OP+6*r+2*jt
            l.append(lambda d=d, p=p: a.I('v_cvt_pk_bf16_f32', V(p), V(d), V(d+1)))
            l.append(lambda d=d, p=p: a.I('v_cvt_pk_bf16_f32', V(p+1), V(d+2), V(d+3)))
            l.append(lambda p=p, jt=jt: a.I('buffer_store_dwordx2', V(p,2), V(VS2 if jt == 2 else VS), S(40,4), S(44+r), mods=(f'offen offset:{512*jt} ' + ST_I).strip()))
        return l
    merge(a, d1(0)); merge(a, d1(1))
    merge(a, twd(0))
    merge(a, d2(0), twd(1))
    merge(a, d2(1))
    merge(a, outp(0)); merge(a, outp(1))
    a.I('s_endpgm')

CR = 8480
K2_A = 0
K2_Y = 16384
YS = 5*512 + 64
K2_C = K2_Y + 8*YS
K2_LDS = K2_C + 8*CR
PARTS = [
    dict(groups=[[0,1,2,3],[4,5,6,7],[8,9,10,11],[12,13,14,15],[16,17]], first=0, a2=True),
    dict(groups=[[17,18,19,20,21],[22,23,24,25]], first=18, a2=True),
    dict(groups=[[25,26,27,28,29],[30,31]], first=26, a2=False),
]

def k2(a):
    a.raw(".globl k2_kernel\n.p2align 8\n.type k2_kernel,@function\nk2_kernel:")
    a.reset_state()
    a.I('s_cmp_ge_u32', 's2', 256); a.I('s_cbranch_scc1', 'K2_END')
    a.I('s_load_dwordx2', S(4,2), S(0,2), 40)
    a.I('s_load_dwordx4', S(8,4), S(0,2), 72)
    a.I('s_load_dwordx2', S(12,2), S(0,2), 88)
    a.I('s_load_dwordx2', S(6,2), S(0,2), 104)
    a.I('v_lshrrev_b32', 'v2', 6, 'v0')
    a.I('v_and_b32', 'v1', 63, 'v0')
    a.I('v_readfirstlane_b32', 's3', 'v2')
    a.I('s_and_b32', 's16', 's2', 7)
    a.I('s_lshr_b32', 's17', 's2', 5)
    a.I('s_and_b32', 's18', 's16', 1)
    a.I('s_add_u32', 's18', 's18', 's17')
    a.I('s_cmp_ge_u32', 's18', 8); a.I('s_cbranch_scc1', 'K2_END')
    a.I('s_mul_i32', 's16', 's16', 15); a.I('s_add_u32', 's16', 's16', 1); a.I('s_lshr_b32', 's16', 's16', 1)
    a.I('s_add_u32', 's16', 's16', 's17')
    a.I('s_mul_i32', 's17', 's16', 43); a.I('s_lshr_b32', 's17', 's17', 7)
    a.I('s_mul_i32', 's18', 's17', 3); a.I('s_sub_u32', 's18', 's16', 's18')
    a.I('s_bfe_u32', 's19', 's2', hex(3 | (2 << 16)))
    a.I('s_lshl_b32', 's17', 's17', 2); a.I('s_add_u32', 's17', 's17', 's19')
    a.I('v_lshlrev_b32', 'v3', 4, 'v1')
    a.I('s_lshl_b32', 's20', 's17', 3); a.I('s_add_u32', 's20', 's20', 's3')
    a.I('s_lshl_b32', 's21', 's20', 12)
    a.I('s_mul_i32', 's22', 's3', CR)
    a.I('s_add_u32', 's22', 's22', K2_C)
    a.I('s_cmp_eq_u32', 's18', 1); a.I('s_cbranch_scc1', 'K2_P1')
    a.I('s_cmp_eq_u32', 's18', 2); a.I('s_cbranch_scc1', 'K2_P2')
    st = (list(a.hist), list(a.vm), list(a.lg))
    for p in range(3):
        if p:
            a.raw(".p2align 6"); a.label(f'K2_P{p}')
            a.hist, a.vm, a.lg = list(st[0]), list(st[1]), list(st[2])
        k2_part(a, p)
    a.label('K2_END')
    a.I('s_endpgm')

def k2_part(a, p):
    P = PARTS[p]
    tiles = [t for g in P['groups'] for t in g]
    jmax = max(tiles)
    nkb = (64*(jmax+1)*2 + 1023)//1024
    quads = []
    for g in P['groups']:
        quads.append([t for t in g if t >= P['first']])
    nq = len(quads)
    srd(a, 24, 8, NBYTES)
    srd(a, 28, 6, NBYTES, add=U_OFF)
    a.I('s_load_dword', 's14', S(8,2), 's21')
    a.I('s_lshl_b32', 's23', 's20', 1); a.I('s_and_b32', 's23', 's23', -4)
    a.I('s_load_dword', 's15', S(10,2), 's23')
    A2C = 8
    if P['a2']:
        a.I('s_add_u32', 's44', 's17', 80*p)
        a.I('s_mul_i32', 's45', 's44', 205); a.I('s_lshr_b32', 's45', 's45', 11)
        a.I('s_mul_i32', 's46', 's45', 10); a.I('s_sub_u32', 's46', 's44', 's46')
        srd(a, 32, 6, NBYTES, add=H_OFF)
        a.I('v_lshrrev_b32', 'v4', 3, 'v1'); a.I('v_and_b32', 'v5', 7, 'v1'); a.I('v_and_b32', 'v6', 2, 'v4')
        a.I('v_xor_b32', 'v5', 'v5', 'v6')
        a.I('v_mul_u32_u24', 'v6', 1280, 'v4')
        a.I('v_lshl_add_u32', 'v6', 'v5', 4, 'v6')
        a.I('v_xor_b32', 'v7', 64, 'v6')
        a.I('s_lshl_b32', 's47', 's45', 7); a.I('s_lshl_b32', 's48', 's3', 4); a.I('s_add_u32', 's47', 's47', 's48')
        a.I('s_mul_i32', 's47', 's47', 1280); a.I('s_lshl_b32', 's48', 's46', 7); a.I('s_add_u32', 's47', 's47', 's48')
        a.I('s_add_u32', 's48', 's47', 8*1280)
        a.I('s_lshl_b32', 's49', 's3', 11)
        a.I('s_add_u32', 'm0', 's49', K2_A)
        a.I('buffer_load_dwordx4', 'v6', S(32,4), 's47', mods='offen lds', tag='a2')
        a.I('s_add_u32', 'm0', 's49', K2_A + 1024)
        a.I('buffer_load_dwordx4', 'v7', S(32,4), 's48', mods='offen lds', tag='a2')
        a.I('s_getpc_b64', S(50,2))
        a.label(f'K2_PC{p}')
        a.I('s_add_u32', 's50', 's50', f'TBL2-K2_PC{p}'); a.I('s_addc_u32', 's51', 's51', 0)
        a.I('v_lshl_add_u32', 'v4', 'v2', 12, 'v3')
        for st in range(4):
            a.I('global_load_dwordx4', V(A2C+4*st,4), 'v4', S(50,2), mods=f'offset:{1024*st}')
    hb = 32; ub = 32 + 4096 + 256
    if p == 0: order = [('h',0),('u',0),('u',1),('h',1),('u',2),('h',2)]
    else:
        order = []
        for i in range(nkb): order += [('h', i), ('u', nkb-1-i)]
    assert sorted(order) == sorted([(x, i) for x in 'hu' for i in range(nkb)])
    a.I('s_add_u32', 's52', 's22', hb); a.I('s_add_u32', 's53', 's22', ub)
    cur = None
    for (x, i) in order:
        if cur != x: a.I('s_mov_b32', 'm0', 's52' if x == 'h' else 's53'); cur = x
        a.I('buffer_load_dwordx4', 'v3', S(24 if x == 'h' else 28, 4), 's21', mods=f'offen offset:{1024*i} lds', tag=f'{x}{i}')
    QR = 24
    VQ, VO = 44, 45
    srd(a, 36, 4, NBYTES); srd(a, 40, 12, 2*NBYTES)
    a.I('v_and_b32', 'v4', 3, 'v1')
    a.I('v_lshrrev_b32', 'v5', 3, 'v1')
    a.I('v_lshl_add_u32', 'v5', 'v4', 6, 'v5')
    a.I('v_lshl_add_u32', 'v5', 'v2', 3, 'v5')
    a.I('v_mul_u32_u24', 'v6', 1280, 'v5')
    a.I('v_and_b32', 'v7', 7, 'v1')
    a.I('v_mov_b32', V(46), '0x3ff00000')
    lens = sorted(set(len(q) for q in quads))
    vq = {}
    for n, ln in enumerate(lens):
        a.I('v_cmp_gt_u32', 'vcc', ln, 'v7')
        rq, ro_ = [(VQ, VO), (0, 3)][n]
        a.I('v_cndmask_b32', V(rq), V(46), 'v6', 'vcc')
        a.I('v_lshlrev_b32', V(ro_), 1, V(rq))
        vq[ln] = (rq, ro_)
    a.I('s_lshl_b32', 's54', 's17', 4)
    for qi, q in enumerate(quads):
        a.I('s_add_u32', S(56+qi), 's54', hex(q[0]*64*1280))
        a.I('buffer_load_dwordx4', V(QR+4*qi,4), V(vq[len(q)][0]), S(36,4), S(56+qi), mods='offen')
        a.I('s_add_u32', S(56+qi), 's54', hex(q[0]*64*2560 + 1280))
    a.I('v_mov_b32', 'v4', 0)
    a.I('v_lshl_add_u32', 'v5', 'v1', 2, 's22')
    a.I('ds_write_b32', 'v5', 'v4', mods=f'offset:{ub-256}')
    a.I('v_and_b32', 'v6', 7, 'v1'); a.I('v_lshl_add_u32', 'v6', 'v6', 2, 's22')
    a.I('ds_write_b32', 'v6', 'v4')
    VH, VU, VYW, VYR = 4, 5, 6, 7
    T0 = 52
    a.I('v_lshrrev_b32', V(T0), 4, 'v1')
    a.I('v_bfe_u32', V(T0+1), 'v1', 2, 2)
    a.I('v_and_b32', V(T0+2), 3, 'v1')
    if P['a2']:
        VA2 = 56
        a.I('v_bfe_u32', V(T0+3), 'v1', 3, 2)
        a.I('v_lshlrev_b32', V(VA2), 10, V(T0))
        a.I('v_lshl_add_u32', V(VA2), V(T0+1), 7, V(VA2))
        a.I('v_lshl_add_u32', V(VA2), V(T0+2), 3, V(VA2))
        a.I('v_lshl_add_u32', V(VA2), V(T0+3), 5, V(VA2))
        for tau in range(1, 4): a.I('v_xor_b32', V(VA2+tau), 32*tau, V(VA2))
        VAO = 60
        a.I('v_and_b32', V(VAO), 15, 'v1')
        a.I('v_lshl_add_u32', V(VAO), 'v2', 4, V(VAO))
        a.I('v_mul_u32_u24', V(VAO), 16*2560, V(VAO))
        a.I('v_lshl_add_u32', V(VAO), V(T0), 4, V(VAO))
        a.I('s_mul_i32', 's47', 's45', 2560); a.I('s_lshl_b32', 's48', 's46', 7); a.I('s_add_u32', 's47', 's47', 's48')
    a.I('v_add_u32', V(VH), V(T0+1), V(T0+2))
    a.I('v_lshl_add_u32', V(VH), V(T0), 3, V(VH))
    a.I('s_add_u32', 's23', 's22', hb-24)
    a.I('v_lshl_add_u32', V(VH), V(VH), 3, 's23')
    a.I('v_lshlrev_b32', V(VU), 2, V(T0+2))
    a.I('v_sub_u32', V(VU), V(VU), V(T0+1))
    a.I('v_lshlrev_b32', V(T0+3), 3, V(T0))
    a.I('v_sub_u32', V(VU), V(VU), V(T0+3))
    a.I('s_add_u32', 's23', 's22', ub-8)
    a.I('v_lshl_add_u32', V(VU), V(VU), 3, 's23')
    a.I('s_mul_i32', 's23', 's3', YS)
    a.I('v_lshl_add_u32', V(VYW), 'v1', 3, 's23')
    a.I('v_and_b32', V(T0+3), 1, V(T0+2))
    a.I('v_lshl_add_u32', V(T0+3), V(T0+3), 2, V(T0+1))
    a.I('v_mul_u32_u24', V(VYR), YS, V(T0+3))
    a.I('v_lshrrev_b32', V(T0+3), 1, V(T0+2))
    a.I('v_lshl_add_u32', V(T0+3), V(T0), 1, V(T0+3))
    a.I('v_lshl_add_u32', V(T0+3), 'v2', 3, V(T0+3))
    a.I('v_lshl_add_u32', V(VYR), V(T0+3), 3, V(VYR))
    a.I('s_lshl_b32', 's14', 's14', 16)
    a.I('s_bitcmp1_b32', 's20', 0)
    a.I('s_cselect_b32', 's23', 0, 16)
    a.I('s_lshl_b32', 's15', 's15', 's23'); a.I('s_and_b32', 's15', 's15', '0xffff0000')
    a.I('v_mov_b32', V(T0), 's14'); a.I('v_add_f32', V(T0), 's15', V(T0))
    a.I('v_cvt_pk_bf16_f32', V(47), V(T0), V(T0))
    a.I('v_mov_b32', V(46), 's52')
    a.I('s_mov_b32', 's55', '0xffff0000')
    HF, UF = 64, 128
    if P['a2']:
        AF, AD = 128, 192
        a.wait_tag('a2'); a.I('s_barrier')
        for st in range(4):
            for tau in range(4):
                for h in range(2):
                    a.I(TR, V(AF+16*st+4*tau+2*h,2), V(VA2+tau), mods=f'offset:{K2_A+4096*st+512*h}')
        for st in range(4):
            for tau in range(4):
                a.I(MF, V(AD+4*tau,4), V(AF+16*st+4*tau,4), V(A2C+4*st,4), 0 if st == 0 else V(AD+4*tau,4))
        for pr in range(2):
            for tb in range(2):
                d = AD+4*(2*pr+tb); o = A2C+4*pr+2*tb
                a.I('v_cvt_pk_bf16_f32', V(o), V(d), V(d+1)); a.I('v_cvt_pk_bf16_f32', V(o+1), V(d+2), V(d+3))
            a.I('buffer_store_dwordx4', V(A2C+4*pr,4), V(VAO), S(40,4), 's47', mods=(f'offen offset:{64*pr} ' + ST_O).strip())
    free = list(range(UF + 4*(jmax+1), 256, 4)) + list(range(HF + 4*(jmax//2+1), 128, 4))
    accs = [8, 12, 16, 20, 56, 60] + ([40] if p else []) + [f for f in free if f < 248]
    assert len(accs) >= len(tiles)
    have = set(); patched = [False]
    def need_bytes(x, lo, hi):
        for kb in range(max(lo, 0)//1024, hi//1024 + 1): a.wait_tag(f'{x}{kb}')
    def loadH(s):
        if ('h', s) in have: return
        have.add(('h', s))
        need_bytes('h', 256*s-24, 256*s+255)
        if s == 0 and not patched[0]:
            a.I('ds_write_b16', V(46), V(47)); patched[0] = True
        for h in range(2): a.I(TR, V(HF+4*s+2*h,2), V(VH), mods=f'offset:{256*s+32*h}')
    def loadU(m):
        if ('u', m) in have: return
        have.add(('u', m))
        need_bytes('u', 128*m-224, 128*m+127)
        for h in range(2): a.I(TR, V(UF+4*m+2*h,2), V(VU), mods=f'offset:{128*m+32*(1-h)}')
    acc_of = {}
    seq = []
    gi_end = []
    nxt = 0
    for g in P['groups']:
        for J in g: acc_of[J] = accs[nxt % len(accs)]; nxt += 1
        for s in range(max(g)//2+1):
            for J in g:
                if J - 2*s >= 0: seq.append((J, s))
        gi_end.append(len(seq))
    SV = {}
    S2a, S1a, S2b, S1b = 48, 49, 50, 51
    assert len(lens) <= 2
    YR = 52
    def reduce_ops(g, qi):
        l = []
        q = quads[qi]
        for J in g:
            d = acc_of[J]
            s2, s1 = (S2a, S1a) if J & 1 else (S2b, S1b)
            ps2, ps1 = (S2b, S1b) if J & 1 else (S2a, S1a)
            hasprev = (J-1) in acc_of
            valid = J in q
            y = YR + q.index(J) if valid else None
            DP = 'row_mask:0xf bank_mask:0xf'
            def lvl(dst, prev, cur_src, add, hasprev=hasprev):
                if hasprev:
                    l.append(lambda: a.I('v_add_f32_dpp', V(dst), V(prev), V(add), mods='wave_ror:1 ' + DP))
                    l.append(lambda: a.I('v_add_f32_dpp', V(dst), V(cur_src), V(add), mods='wave_shr:1 ' + DP))
                else:
                    l.append(lambda: a.I('v_add_f32_dpp', V(dst), V(cur_src), V(add), mods='wave_shr:1 ' + DP + ' bound_ctrl:0'))
            lvl(s2, acc_of[J-1]+3 if hasprev else None, d+3, d+2)
            lvl(s1, ps2, s2, d+1)
            if valid: lvl(y, ps1, s1, d)
        n = len(q)
        l.append(lambda: a.I('v_cvt_pk_bf16_f32', V(YR), V(YR), V(YR+1)))
        if n > 2:
            l.append(lambda: a.I('v_cvt_pk_bf16_f32', V(YR+1), V(YR+2), V(YR+3)))
        l.append(lambda: a.I('ds_write_b64', V(VYW), V(YR,2), mods=f'offset:{K2_Y+512*qi}'))
        l.append(lambda: a.barrier())
        return l
    return_regs = None
    def flush_ops(qi, tmp):
        l = []
        q = quads[qi]; qr = QR+4*qi
        DP = 'row_mask:0xf bank_mask:0xf'
        l.append(lambda: a.I(TR, V(tmp,2), V(VYR), mods=f'offset:{K2_Y+512*qi}'))
        l.append(lambda: a.I('v_mov_b32_dpp', V(qr), V(qr+2), mods='row_shr:4 row_mask:0xf bank_mask:0xa'))
        l.append(lambda: a.I('v_mov_b32_dpp', V(qr+1), V(qr+3), mods='row_shr:4 row_mask:0xf bank_mask:0xa'))
        l.append(lambda: a.I('v_and_b32', V(qr+3), 's55', V(qr+1)))
        l.append(lambda: a.I('v_lshlrev_b32', V(qr+2), 16, V(qr+1)))
        l.append(lambda: a.I('v_and_b32', V(qr+1), 's55', V(qr)))
        l.append(lambda: a.I('v_lshlrev_b32', V(qr), 16, V(qr)))
        l.append(lambda: a.I('v_lshlrev_b32', V(tmp+4), 16, V(tmp)))
        l.append(lambda: a.I('v_and_b32', V(tmp+5), 's55', V(tmp)))
        l.append(lambda: a.I('v_lshlrev_b32', V(tmp+6), 16, V(tmp+1)))
        l.append(lambda: a.I('v_and_b32', V(tmp+7), 's55', V(tmp+1)))
        for j in range(4): l.append(lambda j=j: a.I('v_mul_f32', V(tmp+4+j), V(tmp+4+j), V(qr+j)))
        l.append(lambda: a.I('v_cvt_pk_bf16_f32', V(qr), V(tmp+4), V(tmp+5)))
        l.append(lambda: a.I('v_cvt_pk_bf16_f32', V(qr+1), V(tmp+6), V(tmp+7)))
        l.append(lambda: a.I('v_mov_b32_dpp', V(qr+2), V(qr), mods='row_shl:4 ' + DP))
        l.append(lambda: a.I('v_mov_b32_dpp', V(qr+3), V(qr+1), mods='row_shl:4 ' + DP))
        l.append(lambda: a.I('buffer_store_dwordx4', V(qr,4), V(vq[len(q)][1]), S(40,4), S(56+qi), mods=('offen ' + ST_O).strip()))
        return l
    AHEAD = opt('ahead', 6)
    started = set()
    def mf_thunk(idx):
        def f():
            for k in range(idx, min(idx+AHEAD, len(seq))+0):
                J, s = seq[k]; loadH(s); loadU(J-2*s)
            J, s = seq[idx]
            d = V(acc_of[J],4)
            a.I(MF, d, V(UF+4*(J-2*s),4), V(HF+4*s,4), d if J in started else 0)
            started.add(J)
        return f
    FT = 40 if nq <= 4 else None
    pend = []
    lo = 0
    for gi, g in enumerate(P['groups']):
        mfs = [mf_thunk(i) for i in range(lo, gi_end[gi])]; lo = gi_end[gi]
        if pend:
            merge(a, mfs[:2]); merge(a, mfs[2:], pend)
        else: merge(a, mfs)
        tmp = P['ft'] if 'ft' in P else None
        pend = reduce_ops(g, gi) + flush_ops(gi, flush_tmp(p, accs, acc_of))
    merge(a, pend)
    a.I('s_endpgm')

def flush_tmp(p, accs, acc_of):
    return 248 if p == 0 else 32

def main():
    a = Asm()
    hdr = open('concat_heads__spectral_fnet__ssm_conv_h3__prompt.s.ref').read().split('; Override')[0]
    a.raw(hdr.rstrip())
    a.raw(f"; @launch kernel=k1_kernel grid=(256,1,1) block=(512,1,1) lds={K1_LDS}")
    a.raw(f"; @launch kernel=k2_kernel grid=(256,1,1) block=(512,1,1) lds={K2_LDS}")
    a.raw('.amdgcn_target "amdgcn-amd-amdhsa--gfx950"\n.text')
    k1(a); k2(a)
    a.raw(".p2align 8\n.type TBL1,@object\nTBL1:")
    a.raw(T.as_asm(T.t1_d1()) + T.as_asm(T.t1_tw()) + T.as_asm(T.t1_d2()))
    a.raw(".size TBL1, .-TBL1\n.type TBL2,@object\nTBL2:")
    a.raw(T.as_asm(T.t2()))
    a.raw(".size TBL2, .-TBL2")
    a.raw('.section .rodata,"a"')
    for k in ('k1_kernel', 'k2_kernel'):
        a.raw(f""".p2align 6
.amdhsa_kernel {k}
  .amdhsa_next_free_vgpr 256
  .amdhsa_next_free_sgpr 80
  .amdhsa_accum_offset 256
  .amdhsa_group_segment_fixed_size 0
  .amdhsa_kernarg_size 112
  .amdhsa_user_sgpr_count 2
  .amdhsa_user_sgpr_kernarg_segment_ptr 1
  .amdhsa_system_sgpr_workgroup_id_x 1
.end_amdhsa_kernel""")
    open(sys.argv[1], 'w').write(a.text())
    print("instrs", a.nins, a.stats, "LDS", K1_LDS, K2_LDS)
main()
```

```python
import re

_REG = re.compile(r'^(-|\|)?(v|s|a)(\d+)\|?$')
_RNG = re.compile(r'^(-)?(v|s|a)\[(\d+):(\d+)\]$')

def regs_of(op):
    op = op.strip()
    m = _REG.match(op)
    if m: return {(m.group(2), int(m.group(3)))}
    m = _RNG.match(op)
    if m: return {(m.group(2), i) for i in range(int(m.group(3)), int(m.group(4)) + 1)}
    if op in ('vcc', 'exec', 'm0', 'scc'): return {(op, 0)}
    if op in ('vcc_lo', 'vcc_hi'): return {('vcc', 0)}
    if op in ('exec_lo', 'exec_hi'): return {('exec', 0)}
    return set()

def V(n, cnt=1): return f"v{n}" if cnt == 1 else f"v[{n}:{n+cnt-1}]"
def S(n, cnt=1): return f"s{n}" if cnt == 1 else f"s[{n}:{n+cnt-1}]"

TRANS = ('v_exp_', 'v_log_', 'v_rcp_', 'v_rsq_', 'v_sqrt_', 'v_sin_', 'v_cos_')

class Ins:
    __slots__ = ('op', 'cls', 'rd', 'wr', 'text', 'ws', 'dpp', 'srcC', 'wide_store', 'sdata', 'passes', 'tag')

class Asm:
    def __init__(self):
        self.out = []
        self.hist = []
        self.vm = []
        self.lg = []
        self.nins = 0
        self.stats = {}

    def raw(self, t): self.out.append(t)
    def comment(self, t): self.out.append(f"  ; {t}")
    def label(self, name):
        self.out.append(f"{name}:")
    def save(self): return (list(self.hist), list(self.vm), list(self.lg))
    def restore(self, st): self.hist, self.vm, self.lg = list(st[0]), list(st[1]), list(st[2])
    def reset_state(self):
        self.hist = []; self.vm = []; self.lg = []

    def _classify(self, op, args, mods):
        i = Ins(); i.op = op; i.dpp = ('_dpp' in op) ; i.srcC = set(); i.wide_store = False; i.sdata = set(); i.passes = 0; i.ws = 1; i.tag=None
        R = [regs_of(a) for a in args]
        U = lambda xs: set().union(*xs) if xs else set()
        if op.startswith('v_mfma'):
            i.cls = 'mfma'; i.wr = R[0]; i.rd = U(R[1:]); i.srcC = R[3]
            i.passes = 8 if '32x32' in op else 4
        elif op.startswith('ds_read') or op.startswith('ds_bpermute') or op.startswith('ds_swizzle'):
            i.cls = 'ds'; i.wr = R[0]; i.rd = U(R[1:])
        elif op.startswith('ds_'):
            i.cls = 'ds'; i.wr = set(); i.rd = U(R)
        elif op.startswith('buffer_load') or op.startswith('global_load'):
            i.cls = 'vmem'
            if ' lds' in (' ' + mods) or '_lds_' in op:
                i.wr = set(); i.rd = U(R) | {('m0', 0)}; i.cls = 'vmem'; i.tag = 'dma'
            else:
                i.wr = R[0]; i.rd = U(R[1:])
        elif op.startswith('buffer_store') or op.startswith('global_store') or op.startswith('buffer_atomic') or op.startswith('global_atomic'):
            i.cls = 'vmem'; i.wr = set(); i.rd = U(R)
            if op.endswith('x4') or op.endswith('x3'):
                i.wide_store = True
                i.sdata = R[0] if op.startswith('buffer') else R[1]
        elif op.startswith('buffer_'):
            i.cls = 'vmem'; i.wr = set(); i.rd = set()
        elif op.startswith('s_load') or op.startswith('s_buffer_load') or op in ('s_memtime', 's_memrealtime'):
            i.cls = 'smem'; i.wr = R[0]; i.rd = U(R[1:])
        elif op.startswith('v_'):
            i.cls = 'trans' if op.startswith(TRANS) else 'valu'
            if op.startswith('v_permlane') and 'swap' in op:
                i.wr = R[0] | R[1]; i.rd = R[0] | R[1]
            elif op.startswith('v_cmpx'):
                i.wr = R[0] | {('exec', 0)}; i.rd = U(R[1:])
            elif op.startswith(('v_add_co', 'v_sub_co', 'v_addc_co', 'v_subb_co')):
                i.wr = R[0] | R[1]; i.rd = U(R[2:])
            else:
                i.wr = R[0]; i.rd = U(R[1:])
                if op.startswith(('v_fmac', 'v_dot2c', 'v_writelane')) or i.dpp or '_sdwa' in op:
                    i.rd = i.rd | R[0]
                if op.startswith('v_cndmask') and len(args) == 3:
                    i.rd = i.rd | {('vcc', 0)}
        elif op.startswith('s_'):
            i.cls = 'salu'
            if op.startswith(('s_cmp', 's_cbranch', 's_branch', 's_waitcnt', 's_barrier', 's_nop', 's_endpgm', 's_sleep', 's_setprio', 's_bitcmp')):
                i.wr = set(); i.rd = U(R)
            elif 'saveexec' in op:
                i.wr = R[0] | {('exec', 0)}; i.rd = U(R[1:]) | {('exec', 0)}
            else:
                i.wr = R[0]; i.rd = U(R[1:])
                if op.startswith(('s_addk', 's_mulk')): i.rd = i.rd | R[0]
            if op == 's_nop': i.ws = int(args[0]) + 1
        else:
            raise ValueError(op)
        return i

    def _need(self, p, c):
        n = 0
        vw = {r for r in p.wr if r[0] in 'va'}
        sw = {r for r in p.wr if r[0] in ('s', 'vcc')}
        pv = p.cls in ('valu', 'trans')
        cv = c.cls in ('valu', 'trans')
        if pv:
            if c.cls == 'mfma' and vw & c.rd: n = max(n, 2)
            if cv and c.dpp and vw & c.rd: n = max(n, 2)
            if c.op.startswith('v_permlane') and vw & c.rd: n = max(n, 2)
            if c.op.startswith(('v_readlane', 'v_readfirstlane')) and vw & c.rd: n = max(n, 1)
            if p.cls == 'trans' and c.cls != 'trans' and vw & (c.rd | c.wr): n = max(n, 1)
            if p.cls == 'trans' and c.cls == 'trans' and vw & c.rd: n = max(n, 1)
            if sw & c.rd:
                if c.cls == 'vmem': n = max(n, 5)
                elif cv: n = max(n, 4 if c.op.startswith(('v_readlane', 'v_writelane')) else 2)
                elif c.cls in ('salu', 'smem'): n = max(n, 1)
            if ('exec', 0) in p.wr:
                n = max(n, 5)
            if ('_sdwa' in p.op or 'op_sel' in p.text) and cv and vw & (c.rd | c.wr): n = max(n, 1)
        if p.cls == 'mfma':
            big = {4: 8, 8: 12}[p.passes]
            if c.cls == 'mfma':
                if p.wr & c.srcC:
                    if p.wr == c.srcC and p.passes == c.passes: pass
                    else: n = max(n, {4: 6, 8: 10}[p.passes])
                ab = c.rd - c.srcC if not (c.srcC & (c.rd - c.srcC)) else c.rd
                if p.wr & self._ab(c): n = max(n, big)
                if p.wr & c.wr and not (p.wr == c.srcC): n = max(n, big)
            elif p.wr & (c.rd | c.wr): n = max(n, big)
            if cv and p.srcC & c.wr: n = max(n, {4: 3, 8: 7}[p.passes])
        if p.cls == 'salu' and ('m0', 0) in p.wr and ('m0', 0) in c.rd and c.cls in ('vmem', 'ds'): n = max(n, 1)
        if p.wide_store and p.sdata & c.wr: n = max(n, 2)
        return n

    @staticmethod
    def _ab(c):
        a = c.text.split(None, 1)[1].split(',')
        return regs_of(a[1]) | regs_of(a[2])

    def _emit(self, i):
        self.out.append("  " + i.text)
        self.hist.append(i)
        if len(self.hist) > 24: self.hist.pop(0)
        self.nins += 1
        self.stats[i.cls] = self.stats.get(i.cls, 0) + 1

    def nop(self, n):
        while n > 0:
            k = min(n, 16)
            i = self._classify('s_nop', [str(k - 1)], ''); i.text = f"s_nop {k-1}"
            self._emit(i); n -= k

    def waitcnt(self, vm=None, lg=None):
        parts = []
        if vm is not None and len(self.vm) > vm:
            assert vm <= 63
            parts.append(f"vmcnt({vm})"); self.vm = self.vm[len(self.vm) - vm:] if vm else []
        if lg is not None and len(self.lg) > lg:
            if any(x[1] for x in self.lg): lg = 0
            lg = min(lg, 15)
            parts.append(f"lgkmcnt({lg})"); self.lg = self.lg[len(self.lg) - lg:] if lg else []
        if parts:
            i = self._classify('s_waitcnt', [], ''); i.text = "s_waitcnt " + " ".join(parts)
            self._emit(i)

    def wait_tag(self, tag):
        idx = [k for k, x in enumerate(self.vm) if x[1] == tag]
        if idx: self.waitcnt(vm=min(63, len(self.vm) - 1 - idx[-1]))

    def I(self, op, *args, mods="", tag=None, notrack=False):
        args = [str(a) for a in args]
        i = self._classify(op, args, mods)
        if notrack: i.wr = set()
        i.text = op + (" " + ", ".join(args) if args else "") + (" " + mods if mods else "")
        touched = i.rd | i.wr
        vmn = None; lgn = None
        for k, (w, _t) in enumerate(self.vm):
            if w & touched: vmn = len(self.vm) - 1 - k
        for k, (w, sm, _t) in enumerate(self.lg):
            if w & touched: lgn = len(self.lg) - 1 - k
        if vmn is not None: vmn = min(vmn, 63)
        if vmn is not None or lgn is not None: self.waitcnt(vm=vmn, lg=lgn)
        need = 0; dist = 0
        for p in reversed(self.hist):
            r = self._need(p, i)
            if r - dist > need: need = r - dist
            dist += p.ws
            if dist >= 20: break
        if need > 0: self.nop(need)
        self._emit(i)
        if i.cls == 'vmem':
            self.vm.append((i.wr, tag))
            assert len(self.vm) <= 63, "too many vmem outstanding"
        elif i.cls == 'ds':
            self.lg.append((i.wr, False, tag))
        elif i.cls == 'smem':
            self.lg.append((i.wr, True, tag))
        return i

    def barrier(self, lds=True):
        if lds: self.waitcnt(lg=0)
        self.I('s_barrier')

    def text(self): return "\n".join(self.out) + "\n"
```

```python
import sys
from emit import Asm, V, S
import tables as T

OPT = dict(a.split('=') for a in sys.argv[2:])
def opt(k, d): return type(d)(OPT.get(k, d))
def flag(k, d):
    v = opt(k, d)
    return '' if v == 'p' else v.replace('_', ' ')

H_OFF = 0
U_OFF = 0x280000
NBYTES = 2048 * 640 * 2
WS_BYTES = U_OFF + NBYTES
ST_I = flag('st_i', 'sc1')
ST_O = flag('st_o', 'p')
ST_A = flag('st_a', 'p')
LD_IN = flag('ld_in', 'nt')
LD_I = flag('ld_i', 'p')
PF = opt('pf', 1)
def M(*xs): return ' '.join(x for x in xs if x)

def srd_tail(a, d, nbytes):
    a.I('s_mov_b32', S(d+2), hex(nbytes)); a.I('s_mov_b32', S(d+3), '0x20000')

def merge(a, *lists):
    lists = [l for l in lists if l]
    pos = [0]*len(lists)
    total = sum(len(l) for l in lists)
    for _ in range(total):
        k = min((i for i in range(len(lists)) if pos[i] < len(lists[i])), key=lambda i: (pos[i] + 0.5) / len(lists[i]))
        lists[k][pos[k]](); pos[k] += 1

STAMP = opt('stamp', 0)
class Stamps: n = 0
def stamp(a, first=False):
    if not STAMP: return
    if first: Stamps.n = 0
    a.I('s_memrealtime', S(66+2*Stamps.n, 2)); Stamps.n += 1
    assert Stamps.n <= 14
def stamp_out(a, kern, wsreg):
    if not STAMP: return
    a.waitcnt(vm=0)
    stamp(a)
    a.waitcnt(lg=0)
    a.I('s_lshl_b32', 's94', 's2', 3); a.I('s_add_u32', 's94', 's94', 's3'); a.I('s_lshl_b32', 's94', 's94', 6)
    a.I('s_add_u32', 's94', 's94', hex(0x1000000 + kern*0x40000))
    a.I('v_mov_b32', 'v0', 's94')
    a.I('s_mov_b64', 'exec', 1)
    for i in range(Stamps.n):
        a.I('v_mov_b32', 'v1', S(66+2*i))
        a.I('global_store_dword', 'v0', 'v1', S(wsreg,2), mods=f'offset:{4*i}')
    a.I('v_mov_b32', 'v1', Stamps.n)
    a.I('global_store_dword', 'v0', 'v1', S(wsreg,2), mods='offset:60')

MF = 'v_mfma_f32_16x16x32_bf16'
TR = 'ds_read_b64_tr_b16'
DUMMY = 252

K1_T = 0
K1_X = 17*1024
K1_R = K1_X + 40960
RS = 2568
K1_LDS = K1_R + 16*RS + 64

def k1(a):
    a.raw(".globl k1_kernel\n.p2align 8\n.type k1_kernel,@function\nk1_kernel:")
    a.reset_state()
    a.I('s_getpc_b64', S(4,2))
    a.I('s_load_dwordx2', S(20,2), S(0,2), 48)
    a.I('s_load_dwordx2', S(24,2), S(0,2), 56)
    a.I('s_load_dwordx2', S(36,2), S(0,2), 0)
    a.I('s_load_dwordx2', S(28,2), S(0,2), 64)
    a.I('s_load_dwordx2', S(40,2), S(0,2), 104)
    a.I('s_cmp_ge_u32', 's2', 256); a.I('s_cbranch_scc1', 'K1_END')
    stamp(a, True)
    a.I('v_lshlrev_b32', 'v3', 4, 'v0')
    a.I('global_load_dwordx4', V(DUMMY,4), 'v3', S(4,2), mods='nt', notrack=True)
    a.I('v_lshrrev_b32', 'v2', 6, 'v0')
    a.I('v_and_b32', 'v1', 63, 'v0')
    a.I('v_readfirstlane_b32', 's3', 'v2')
    a.I('s_and_b32', 's16', 's2', 7)
    a.I('s_cmp_lt_u32', 's2', 128); a.I('s_cbranch_scc1', 'K1_A')
    st = a.save()
    k1_b_issue(a)
    a.I('s_branch', 'K1_B2')
    stb = a.save(); nb = Stamps.n
    a.label('K1_A'); a.restore(st); Stamps.n = 1
    k1_a(a)
    a.label('K1_B2'); a.restore(stb); Stamps.n = nb
    k1_b_rest(a)
    a.label('K1_END')
    a.I('s_endpgm')

KR, VR, WR = 12, 34, 52
def k1_b_issue(a):
    a.I('s_cmp_ge_u32', 's3', 5); a.I('s_cbranch_scc1', 'K1_END')
    a.I('s_bfe_u32', 's17', 's2', hex(3 | (3 << 16)))
    a.I('s_lshl3_add_u32', 's16', 's16', 's17')
    a.I('s_bfe_u32', 's17', 's2', hex(6 | (1 << 16)))
    a.I('s_mul_i32', 's17', 's17', 5)
    a.I('s_add_u32', 's17', 's17', 's3')
    a.I('s_lshl_b32', 's17', 's17', 6)
    a.I('s_lshl_b32', 's16', 's16', 5)
    a.I('v_and_b32', 'v3', 15, 'v1')
    a.I('v_lshrrev_b32', 'v4', 4, 'v1')
    a.I('v_lshl_add_u32', 'v5', 'v3', 2, 's17')
    a.I('v_lshl_add_u32', 'v6', 'v4', 3, 's16')
    a.I('v_mul_u32_u24', 'v7', 1280, 'v6')
    a.I('v_lshl_add_u32', 'v7', 'v5', 1, 'v7')
    a.I('v_subrev_u32', 'v8', 3840, 'v7')
    a.I('s_movk_i32', 's18', 5120)
    srd_tail(a, 20, NBYTES); srd_tail(a, 24, NBYTES)
    for j in range(8):
        a.I('buffer_load_dwordx2', V(KR+6+2*j,2), 'v7', S(20,4), 's18' if j >= 4 else 0, mods=M(f'offen offset:{1280*(j%4)}', LD_IN))
    for j in range(3):
        a.I('buffer_load_dwordx2', V(KR+2*j,2), 'v8', S(20,4), 0, mods=M(f'offen offset:{1280*j}', LD_IN))
    a.I('v_lshlrev_b32', 'v9', 3, 'v5')
    srd_tail(a, 28, 640*8)
    a.I('buffer_load_dwordx4', V(WR,4), 'v9', S(28,4), 0, mods=M('offen', LD_IN))
    a.I('buffer_load_dwordx4', V(WR+4,4), 'v9', S(28,4), 0, mods=M('offen offset:16', LD_IN))
    for j in range(8):
        a.I('buffer_load_dwordx2', V(VR+2*j,2), 'v7', S(24,4), 's18' if j >= 4 else 0, mods=M(f'offen offset:{1280*(j%4)}', LD_IN))
    stamp(a)

def k1_b_rest(a):
    KU, WU, KS, TMP, O = 60, 104, 120, 152, 160
    a.I('v_lshlrev_b32', 'v10', 12, 'v5')
    a.I('v_lshl_add_u32', 'v10', 'v6', 1, 'v10')
    srd_tail(a, 40, WS_BYTES)
    for ch in range(4): a.I('s_mov_b32', S(44+ch), hex(U_OFF + 4096*ch))
    a.I('s_mov_b32', 's48', '0xffff0000')
    def unpack(dst_lo, dst_hi, src):
        a.I('v_lshlrev_b32', V(dst_lo), 16, V(src)); a.I('v_and_b32', V(dst_hi), 's48', V(src))
    def unk(j):
        unpack(KU+4*j, KU+4*j+1, KR+2*j); unpack(KU+4*j+2, KU+4*j+3, KR+2*j+1)
    for j in list(range(3, 11)) + [0, 1, 2]: unk(j)
    stamp(a)
    for ch in range(4):
        unpack(WU+0*4+ch, WU+1*4+ch, WR+2*ch)
        unpack(WU+2*4+ch, WU+3*4+ch, WR+2*ch+1)
    for j in range(8):
        for p in range(2):
            a.I('v_pk_mul_f32', V(KS+4*j+2*p, 2), V(KU+4*j+2*p,2), V(WU+3*4+2*p,2))
        for t in range(1, 4):
            for p in range(2):
                d = V(KS+4*j+2*p, 2)
                a.I('v_pk_fma_f32', d, V(KU+4*(j+t)+2*p,2), V(WU+(3-t)*4+2*p,2), d)
    stamp(a)
    for j in range(8):
        t = TMP + 4*(j & 1)
        unpack(t, t+1, VR+2*j); unpack(t+2, t+3, VR+2*j+1)
        for p in range(2):
            d = V(KS+4*j+2*p, 2)
            a.I('v_pk_mul_f32', d, d, V(t+2*p,2))
        if j & 1:
            for ch in range(4):
                a.I('v_cvt_pk_bf16_f32', V(O+4*ch+j//2), V(KS+4*(j-1)+ch), V(KS+4*j+ch))
    for ch in range(4):
        a.I('buffer_store_dwordx4', V(O+4*ch,4), 'v10', S(40,4), S(44+ch), mods=M('offen', ST_I))
    stamp(a)
    stamp_out(a, 0, 40)
    a.I('s_endpgm')

def k1_a(a):
    a.I('s_mov_b32', 's50', 's16')
    a.I('s_lshr_b32', 's17', 's2', 4)
    a.I('s_lshl3_add_u32', 's16', 's17', 's16')
    a.I('s_sub_u32', 's18', 128, 's16')
    a.I('s_cmp_eq_u32', 's16', 0)
    a.I('s_cselect_b32', 's18', 64, 's18')
    a.I('s_and_b32', 's19', 's3', 3)
    a.I('s_lshr_b32', 's6', 's3', 2)
    a.I('v_lshrrev_b32', 'v4', 3, 'v1')
    a.I('v_and_b32', 'v5', 7, 'v1')
    a.I('v_and_b32', 'v6', 2, 'v4')
    a.I('s_and_b32', 's7', 's19', 1); a.I('s_lshl_b32', 's7', 's7', 2)
    a.I('v_xor_b32', 'v5', 'v5', 'v6')
    a.I('v_xor_b32', 'v5', 's7', 'v5')
    a.I('v_mul_u32_u24', 'v6', 128*1280, 'v4')
    a.I('v_lshl_add_u32', 'v6', 'v5', 4, 'v6')
    a.I('s_cmp_ge_u32', 's19', 2)
    a.I('s_cselect_b32', 's30', 's18', 's16')
    a.I('s_lshl_b32', 's31', 's7', 8)
    a.I('s_add_u32', 's30', 's30', 's31')
    a.I('s_lshl1_add_u32', 's30', 's30', 's6')
    a.I('s_mul_i32', 's30', 's30', 640)
    a.I('s_lshl1_add_u32', 's31', 's19', 's6')
    a.I('s_mul_i32', 's31', 's31', 5120)
    srd_tail(a, 36, NBYTES)
    for i in range(5):
        a.I('s_add_u32', 'm0', 's31', K1_X + i*(1024-128))
        a.I('buffer_load_dwordx4', 'v6', S(36,4), 's30', mods=M(f'offen offset:{128*i}', LD_IN, 'lds'), tag='x')
    a.I('s_add_u32', 's24', 's4', 'TBL1-k1_kernel-4'); a.I('s_addc_u32', 's25', 's5', 0)
    srd_tail(a, 24, 17*1024)
    a.I('v_lshlrev_b32', 'v3', 4, 'v1')
    a.I('s_lshl_b32', 's21', 's3', 10)
    a.I('s_add_u32', 'm0', 's21', K1_T)
    a.I('s_add_u32', 's22', 's21', 8192)
    a.I('buffer_load_dwordx4', 'v3', S(24,4), 's21', mods='offen nt lds', tag='tbl')
    a.I('s_add_u32', 'm0', 's22', K1_T)
    a.I('s_movk_i32', 's23', 16*1024)
    a.I('buffer_load_dwordx4', 'v3', S(24,4), 's22', mods='offen nt lds', tag='tbl')
    a.I('s_mov_b32', 'm0', K1_T + 16*1024)
    a.I('buffer_load_dwordx4', 'v3', S(24,4), 's23', mods='offen nt lds', tag='tbl')
    stamp(a)
    if PF:
        a.I('s_load_dwordx2', S(52,2), S(0,2), 72)
        a.I('s_load_dwordx2', S(56,2), S(0,2), 40)
        a.I('s_lshr_b32', 's51', 's2', 3); a.I('s_lshl3_add_u32', 's51', 's51', 's3')
        a.I('s_lshr_b32', 's60', 's50', 1); a.I('s_lshl1_add_u32', 's60', 's50', 's60')
        srd_tail(a, 52, NBYTES); srd_tail(a, 56, NBYTES)
        a.I('v_lshlrev_b32', 'v4', 6, 'v1')
        a.I('v_cmp_gt_u32', 'vcc', 48, 'v1')
        a.I('v_mov_b32', 'v5', '0x7ff00000')
        a.I('v_cndmask_b32', 'v4', 'v5', 'v4', 'vcc')
        a.I('s_lshl_b32', 's61', 's60', 17); a.I('s_mul_i32', 's62', 's51', 3072); a.I('s_add_u32', 's61', 's61', 's62')
        a.I('buffer_load_dword', V(DUMMY), 'v4', S(52,4), 's61', mods='offen nt', notrack=True)
        if PF >= 2:
            a.I('v_and_b32', 'v6', 15, 'v1'); a.I('v_mul_u32_u24', 'v6', 1280, 'v6')
            a.I('v_lshrrev_b32', 'v7', 4, 'v1'); a.I('v_lshl_add_u32', 'v6', 'v7', 6, 'v6')
            a.I('v_cndmask_b32', 'v6', 'v5', 'v6', 'vcc')
            a.I('s_mul_i32', 's61', 's51', 16*1280); a.I('s_lshl_b32', 's62', 's60', 6); a.I('s_add_u32', 's61', 's61', 's62')
            a.I('buffer_load_dword', V(DUMMY), 'v6', S(56,4), 's61', mods='offen nt', notrack=True)
        a.I('s_add_u32', 's52', 's4', 'k2_kernel-k1_kernel-4'); a.I('s_addc_u32', 's53', 's5', 0)
        a.I('s_mov_b32', 's54', 'K2_CODE_END-k2_kernel')
        a.I('s_lshl_b32', 's61', 's51', 12)
        a.I('v_lshlrev_b32', 'v4', 6, 'v1')
        a.I('buffer_load_dword', V(DUMMY), 'v4', S(52,4), 's61', mods='offen nt', notrack=True)
    a.I('s_bfe_u32', 's17', 's2', hex(3 | (1 << 16)))
    a.I('s_mul_i32', 's32', 's6', 5120)
    AL = 8
    TM = 16
    a.I('v_and_b32', 'v4', 15, 'v1')
    a.I('v_lshrrev_b32', 'v5', 4, 'v1')
    a.I('v_cmp_gt_u32', 'vcc', 2, 'v5')
    a.I('v_mov_b32', 'v6', 's18')
    a.I('v_mov_b32', 'v7', 's16')
    a.I('v_cndmask_b32', 'v6', 'v6', 'v7', 'vcc')
    a.I('v_and_b32', 'v7', 1, 'v5')
    a.I('v_lshl_add_u32', 'v6', 'v7', 10, 'v6')
    a.I('v_mul_u32_u24', 'v6', 'v6', 'v4')
    a.I('s_cmp_lg_u32', 's16', 0); a.I('s_cselect_b32', 's33', 's17', 0)
    a.I('s_mul_i32', 's34', 's33', 512); a.I('s_mul_i32', 's35', 's33', 1536)
    a.I('v_mov_b32', 'v7', 's35'); a.I('v_mov_b32', V(TM), 's34')
    a.I('v_cndmask_b32', 'v7', 'v7', V(TM), 'vcc')
    a.I('v_add_u32', 'v6', 'v6', 'v7')
    a.I('v_cvt_f32_u32', 'v6', 'v6')
    a.I('v_mul_f32', 'v6', '0x3a000000', 'v6')
    a.I('v_cvt_f32_u32', 'v7', 'v4')
    a.I('v_mul_f32', 'v7', '0x3d800000', 'v7')
    a.I('s_cmp_eq_u32', 's17', 0); a.I('s_cselect_b32', 's34', -1, 0); a.I('s_cselect_b32', 's35', 0, -1)
    a.I('s_cmp_lg_u32', 's16', 0); a.I('s_cselect_b32', 's34', -1, 's34'); a.I('s_cselect_b32', 's35', -1, 's35')
    a.I('v_mov_b32', V(TM), 's35'); a.I('v_mov_b32', V(TM+1), 's34')
    a.I('v_cndmask_b32', 'v2', V(TM), V(TM+1), 'vcc')
    for e in range(8):
        a.I('v_cos_f32', V(TM+e), 'v6')
        a.I('v_sin_f32', V(TM+8+e), '-v6')
        if e < 7: a.I('v_add_f32', 'v6', 'v6', 'v7')
    for h in range(2):
        for j in range(4):
            a.I('v_cvt_pk_bf16_f32', V(AL+4*h+j), V(TM+8*h+2*j), V(TM+8*h+2*j+1))
    for j in range(8):
        a.I('v_and_b32', V(AL+j), 'v2', V(AL+j))
    VA, VW, VD, VD2, VS = 4, 5, 6, 7, 2
    a.I('v_lshrrev_b32', V(TM), 4, 'v1')
    a.I('v_bfe_u32', V(TM+1), 'v1', 2, 2)
    a.I('v_and_b32', V(TM+2), 3, 'v1')
    a.I('v_and_b32', V(TM+3), 15, 'v1')
    a.I('v_bfe_u32', V(TM+4), 'v1', 3, 2)
    a.I('v_xor_b32', V(TM+4), 's19', V(TM+4))
    a.I('v_mul_u32_u24', V(VA), 10240, V(TM))
    a.I('v_lshl_add_u32', V(VA), V(TM+1), 7, V(VA))
    a.I('v_lshl_add_u32', V(VA), V(TM+4), 5, V(VA))
    a.I('v_lshl_add_u32', V(VA), V(TM+2), 3, V(VA))
    a.I('v_add_u32', V(VA), 's32', V(VA))
    a.I('v_mul_u32_u24', V(VW), RS, V(TM+3))
    a.I('v_lshl_add_u32', V(VW), V(TM), 3, V(VW))
    a.I('s_lshl_b32', 's33', 's19', 5); a.I('s_mul_i32', 's34', 's6', 640); a.I('s_add_u32', 's33', 's33', 's34')
    a.I('v_add_u32', V(VW), 's33', V(VW))
    a.I('v_lshrrev_b32', V(TM+5), 1, V(TM))
    a.I('v_mul_u32_u24', V(VD), 1280, V(TM+5))
    a.I('v_and_b32', V(TM+5), 1, V(TM))
    a.I('v_lshl_add_u32', V(TM+5), V(TM+5), 3, V(TM+1))
    a.I('v_mul_u32_u24', V(TM+5), 80, V(TM+5))
    a.I('v_add_u32', V(VD), V(VD), V(TM+5))
    a.I('s_mul_i32', 's33', 's3', 2*RS)
    a.I('v_add_u32', V(VD), 's33', V(VD))
    a.I('v_and_b32', V(TM+5), 1, V(TM+2))
    a.I('v_lshl_add_u32', V(VD2), V(TM+5), 3, V(VD))
    a.I('v_lshl_add_u32', V(VD), V(TM+2), 3, V(VD))
    a.I('v_lshrrev_b32', V(TM+5), 1, V(TM+3))
    a.I('v_lshlrev_b32', V(VS), 6, V(TM+5))
    a.I('v_and_b32', V(TM+5), 1, V(TM)); a.I('v_lshl_add_u32', V(VS), V(TM+5), 5, V(VS))
    a.I('v_and_b32', V(TM+5), 1, V(TM+3)); a.I('v_lshl_add_u32', V(VS), V(TM+5), 4, V(VS))
    a.I('v_lshrrev_b32', V(TM+5), 1, V(TM)); a.I('v_lshl_add_u32', V(VS), V(TM+5), 3, V(VS))
    VS2 = 1
    a.I('v_cmp_gt_u32', 'vcc', 8, V(TM+3))
    a.I('v_mov_b32', V(TM+5), '0x7ff00000')
    a.I('v_cndmask_b32', V(VS2), V(TM+5), V(VS), 'vcc')
    srd_tail(a, 40, WS_BYTES)
    a.I('s_lshl_b32', 's33', 's3', 8); a.I('s_lshl_b32', 's34', 's17', 6)
    a.I('s_add_u32', 's33', 's33', 's34'); a.I('s_add_u32', 's33', 's33', 's16')
    a.I('s_mul_i32', 's44', 's33', 1280); a.I('s_add_u32', 's45', 's44', 128*1280)
    assert H_OFF == 0
    D1B, TW, D2B = 48, 56, 80
    stamp(a)
    a.wait_tag('tbl'); stamp(a); a.I('s_barrier')
    stamp(a)
    AF, AD, PK = 116, 136, 176
    for i in range(5):
        for h in range(2):
            a.I(TR, V(AF+4*i+2*h,2), V(VA), mods=f'offset:{K1_X+1024*i+512*h}')
    tl = [(lambda i=i: a.I('ds_read_b128', V(D1B+4*i,4), 'v3', mods=f'offset:{K1_T+1024*i}')) for i in range(17)]
    def fin(i):
        for cp in range(2):
            d = AD+8*i+4*cp; p = PK+4*i+2*cp
            a.I('v_cvt_pk_bf16_f32', V(p), V(d), V(d+1)); a.I('v_cvt_pk_bf16_f32', V(p+1), V(d+2), V(d+3))
            a.I('ds_write_b64', V(VW), V(p,2), mods=f'offset:{K1_R+1280*cp+128*i}')
    for i in range(7):
        if i < 5:
            for cp in range(2):
                a.I(MF, V(AD+8*i+4*cp,4), V(AF+4*i,4), V(AL+4*cp,4), 0)
        if i == 4:
            for t in tl[:2]: t()
        if i >= 2: fin(i-2)
    a.barrier()
    stamp(a)
    DF, D1, WP, D2, OP, TT = 116, 140, 188, 212, 236, 16
    for r in range(2):
        for tau in range(3):
            for h in range(2):
                a.I(TR, V(DF+12*r+4*tau+2*h,2), V(VD2 if tau == 2 else VD), mods=f'offset:{K1_R+RS*r+320*h+32*tau}')
    def d1(r):
        return [(lambda tau=tau, cp=cp: a.I(MF, V(D1+24*r+8*tau+4*cp,4), V(DF+12*r+4*tau,4), V(D1B+4*cp,4), 0)) for tau in range(3) for cp in range(2)]
    def twd(r):
        l = []
        for tau in range(3):
            re = D1+24*r+8*tau; im = re+4; tc = TW+8*tau; ts = tc+4; t = TT+8*(tau & 1)+16*r
            for j in range(4): l.append(lambda j=j, re=re, tc=tc, t=t: a.I('v_mul_f32', V(t+j), V(re+j), V(tc+j)))
            for j in range(4): l.append(lambda j=j, im=im, tc=tc, t=t: a.I('v_mul_f32', V(t+4+j), V(im+j), V(tc+j)))
            for j in range(4): l.append(lambda j=j, im=im, ts=ts, t=t: a.I('v_fmac_f32', V(t+j), V(im+j), V(ts+j)))
            for j in range(4): l.append(lambda j=j, re=re, ts=ts, t=t: a.I('v_fma_f32', V(t+4+j), '-'+V(re+j), V(ts+j), V(t+4+j)))
            for j in range(4): l.append(lambda j=j, t=t, tau=tau: a.I('v_cvt_pk_bf16_f32', V(WP+12*r+4*tau+j), V(t+2*j), V(t+2*j+1)))
        return l
    def d2(r):
        return [(lambda tau=tau, jt=jt: a.I(MF, V(D2+12*r+4*jt,4), V(WP+12*r+4*tau,4), V(D2B+12*tau+4*jt,4), 0 if tau == 0 else V(D2+12*r+4*jt,4)))
                for tau in range(3) for jt in range(3)]
    def outp(r):
        l = []
        for jt in range(3):
            d = D2+12*r+4*jt; p = OP+6*r+2*jt
            l.append(lambda d=d, p=p: a.I('v_cvt_pk_bf16_f32', V(p), V(d), V(d+1)))
            l.append(lambda d=d, p=p: a.I('v_cvt_pk_bf16_f32', V(p+1), V(d+2), V(d+3)))
            l.append(lambda p=p, jt=jt: a.I('buffer_store_dwordx2', V(p,2), V(VS2 if jt == 2 else VS), S(40,4), S(44+r), mods=M(f'offen offset:{512*jt}', ST_I)))
        return l
    merge(a, d1(0) + d1(1), tl[2:])
    merge(a, twd(0))
    merge(a, d2(0), twd(1))
    merge(a, d2(1), outp(0))
    merge(a, outp(1))
    stamp(a)
    stamp_out(a, 0, 40)
    a.I('s_endpgm')

CR = 8480
K2_A = 0
K2_Y = 16384
YS = 5*512 + 64
K2_C = K2_Y + 8*YS
K2_LDS = K2_C + 8*CR
PARTS = [
    dict(groups=[[0,1,2,3,4,5,6,7],[8,9,10,11],[12,13,14,15],[16,17]], first=0, a2=True),
    dict(groups=[[17,18,19,20,21],[22,23,24,25]], first=18, a2=True),
    dict(groups=[[25,26,27,28,29],[30,31]], first=26, a2=False),
]

def k2(a):
    a.raw(".globl k2_kernel\n.p2align 8\n.type k2_kernel,@function\nk2_kernel:")
    a.reset_state()
    a.I('s_load_dwordx2', S(28,2), S(0,2), 104)
    a.I('s_load_dwordx2', S(24,2), S(0,2), 72)
    a.I('s_load_dwordx2', S(10,2), S(0,2), 80)
    a.I('s_load_dwordx2', S(36,2), S(0,2), 40)
    a.I('s_load_dwordx2', S(40,2), S(0,2), 88)
    a.I('s_cmp_ge_u32', 's2', 256); a.I('s_cbranch_scc1', 'K2_END')
    stamp(a, True)
    a.I('v_lshrrev_b32', 'v2', 6, 'v0')
    a.I('v_and_b32', 'v1', 63, 'v0')
    a.I('v_readfirstlane_b32', 's3', 'v2')
    a.I('s_and_b32', 's16', 's2', 7)
    a.I('s_lshr_b32', 's17', 's2', 5)
    a.I('s_and_b32', 's18', 's16', 1)
    a.I('s_add_u32', 's18', 's18', 's17')
    a.I('s_cmp_ge_u32', 's18', 8); a.I('s_cbranch_scc1', 'K2_END')
    a.I('s_mul_i32', 's16', 's16', 15); a.I('s_add_u32', 's16', 's16', 1); a.I('s_lshr_b32', 's16', 's16', 1)
    a.I('s_add_u32', 's16', 's16', 's17')
    a.I('s_mul_i32', 's17', 's16', 43); a.I('s_lshr_b32', 's17', 's17', 7)
    a.I('s_mul_i32', 's18', 's17', 3); a.I('s_sub_u32', 's18', 's16', 's18')
    a.I('s_bfe_u32', 's19', 's2', hex(3 | (2 << 16)))
    a.I('s_lshl2_add_u32', 's17', 's17', 's19')
    a.I('v_lshlrev_b32', 'v3', 4, 'v1')
    a.I('s_lshl3_add_u32', 's20', 's17', 's3')
    a.I('s_lshl_b32', 's21', 's20', 12)
    a.I('s_add_u32', 's12', 's21', hex(U_OFF))
    a.I('s_mul_i32', 's22', 's3', CR)
    a.I('s_add_u32', 's22', 's22', K2_C)
    srd_tail(a, 24, NBYTES); srd_tail(a, 28, WS_BYTES)
    a.I('s_cmp_eq_u32', 's18', 1); a.I('s_cbranch_scc1', 'K2_P1')
    a.I('s_cmp_eq_u32', 's18', 2); a.I('s_cbranch_scc1', 'K2_P2')
    st = a.save()
    for p in range(3):
        if p:
            a.raw(".p2align 6"); a.label(f'K2_P{p}')
            a.restore(st)
        Stamps.n = 1
        k2_part(a, p)
    a.label('K2_END')
    a.I('s_endpgm')
    a.label('K2_CODE_END')

def k2_part(a, p):
    P = PARTS[p]
    tiles = [t for g in P['groups'] for t in g]
    jmax = max(tiles)
    nkb = (64*(jmax+1)*2 + 1023)//1024
    quads = []; gq = []
    for g in P['groups']:
        v = [t for t in g if t >= P['first']]
        gq.append([])
        for i in range(0, len(v), 4):
            gq[-1].append(len(quads)); quads.append(v[i:i+4])
    nq = len(quads)
    A2C = 8
    if P['a2']:
        a.I('s_add_u32', 's44', 's17', 80*p)
        a.I('s_mul_i32', 's45', 's44', 205); a.I('s_lshr_b32', 's45', 's45', 11)
        a.I('s_mul_i32', 's46', 's45', 10); a.I('s_sub_u32', 's46', 's44', 's46')
        a.I('v_lshrrev_b32', 'v4', 3, 'v1'); a.I('v_and_b32', 'v5', 7, 'v1'); a.I('v_and_b32', 'v6', 2, 'v4')
        a.I('v_xor_b32', 'v5', 'v5', 'v6')
        a.I('v_mul_u32_u24', 'v6', 1280, 'v4')
        a.I('v_lshl_add_u32', 'v6', 'v5', 4, 'v6')
        a.I('v_xor_b32', 'v7', 64, 'v6')
        a.I('s_lshl3_add_u32', 's47', 's45', 's3')
        a.I('s_mul_i32', 's47', 's47', 16*1280); a.I('s_lshl_b32', 's48', 's46', 7); a.I('s_add_u32', 's47', 's47', 's48')
        a.I('s_add_u32', 's48', 's47', 8*1280)
        a.I('s_lshl_b32', 's49', 's3', 11)
        a.I('s_add_u32', 'm0', 's49', K2_A)
        a.I('buffer_load_dwordx4', 'v6', S(28,4), 's47', mods=M('offen', LD_I, 'lds'), tag='a2')
        a.I('s_add_u32', 'm0', 's49', K2_A + 1024)
        a.I('buffer_load_dwordx4', 'v7', S(28,4), 's48', mods=M('offen', LD_I, 'lds'), tag='a2')
    hb = 32; ub = 32 + 4096 + 256
    if p == 0: order = [('u',0),('h',0),('u',1),('u',2),('h',1),('h',2)]
    else:
        order = [('u', nkb-1), ('h', 0)] + [('u', nkb-1-i) for i in range(1, nkb)] + [('h', i) for i in range(1, nkb)]
    assert sorted(order) == sorted([(x, i) for x in 'hu' for i in range(nkb)])
    a.I('s_add_u32', 's52', 's22', hb); a.I('s_add_u32', 's53', 's22', ub)
    cur = None
    for (x, i) in order:
        if cur != x: a.I('s_mov_b32', 'm0', 's52' if x == 'h' else 's53'); cur = x
        if x == 'h': a.I('buffer_load_dwordx4', 'v3', S(24,4), 's21', mods=M(f'offen offset:{1024*i}', LD_IN, 'lds'), tag=f'{x}{i}')
        else: a.I('buffer_load_dwordx4', 'v3', S(28,4), 's12', mods=M(f'offen offset:{1024*i}', LD_I, 'lds'), tag=f'{x}{i}')
    stamp(a)
    a.I('s_load_dword', 's14', S(24,2), 's21')
    a.I('s_lshl_b32', 's23', 's20', 1); a.I('s_and_b32', 's23', 's23', -4)
    a.I('s_load_dword', 's15', S(10,2), 's23')
    T0 = 52
    HF, UF = 64, 128
    if P['a2']:
        CT = 64
        a.I('v_and_b32', 'v4', 15, 'v1'); a.I('v_lshl_add_u32', 'v4', 'v2', 4, 'v4')
        a.I('v_cvt_f32_u32', 'v5', 'v4'); a.I('v_mul_f32', 'v5', '0x3c000000', 'v5')
        a.I('v_lshrrev_b32', 'v6', 4, 'v1'); a.I('v_cvt_f32_u32', 'v6', 'v6')
        a.I('v_mul_f32', 'v6', 'v6', 'v5'); a.I('v_mul_f32', 'v6', '0x41000000', 'v6')
        a.I('v_mul_f32', 'v7', '0x42000000', 'v5'); a.I('v_add_f32', 'v7', 'v7', 'v6')
        for e in range(8):
            a.I('v_cos_f32', V(CT+e), 'v6'); a.I('v_cos_f32', V(CT+8+e), 'v7')
            a.I('v_sin_f32', V(CT+16+e), 'v6'); a.I('v_sin_f32', V(CT+24+e), 'v7')
            if e < 7: a.I('v_add_f32', 'v6', 'v6', 'v5'); a.I('v_add_f32', 'v7', 'v7', 'v5')
        a.I('v_lshlrev_b32', 'v4', 31, 'v4'); a.I('v_or_b32', 'v4', 1.0, 'v4')
        a.I('v_cmp_gt_u32', 'vcc', 16, 'v1')
        a.I('v_cndmask_b32', V(CT+16), V(CT+16), 'v4', 'vcc')
        for j in range(16): a.I('v_cvt_pk_bf16_f32', V(A2C+j), V(CT+2*j), V(CT+2*j+1))
    QR = 24
    VQ, VO = 44, 45
    srd_tail(a, 36, NBYTES); srd_tail(a, 40, 2*NBYTES)
    a.I('v_and_b32', 'v4', 3, 'v1')
    a.I('v_lshrrev_b32', 'v5', 3, 'v1')
    a.I('v_lshl_add_u32', 'v5', 'v4', 6, 'v5')
    a.I('v_lshl_add_u32', 'v5', 'v2', 3, 'v5')
    a.I('v_mul_u32_u24', 'v6', 1280, 'v5')
    a.I('v_and_b32', 'v7', 7, 'v1')
    a.I('v_mov_b32', V(46), '0x3ff00000')
    lens = sorted(set(len(q) for q in quads))
    assert len(lens) <= 2
    vq = {}
    for n, ln in enumerate(lens):
        a.I('v_cmp_gt_u32', 'vcc', ln, 'v7')
        rq, ro_ = [(VQ, VO), (0, 3)][n]
        a.I('v_cndmask_b32', V(rq), V(46), 'v6', 'vcc')
        a.I('v_lshlrev_b32', V(ro_), 1, V(rq))
        vq[ln] = (rq, ro_)
    a.I('s_lshl_b32', 's54', 's17', 4)
    def qload(qi):
        q = quads[qi]
        a.I('s_add_u32', S(56+qi), 's54', hex(q[0]*64*1280))
        a.I('buffer_load_dwordx4', V(QR+4*qi,4), V(vq[len(q)][0]), S(36,4), S(56+qi), mods=M('offen', LD_IN))
        a.I('s_add_u32', S(56+qi), 's54', hex(q[0]*64*2560 + 1280))
    a.I('v_mov_b32', 'v4', 0)
    a.I('v_lshl_add_u32', 'v5', 'v1', 2, 's22')
    a.I('ds_write_b32', 'v5', 'v4', mods=f'offset:{ub-256}')
    a.I('v_lshl_add_u32', 'v6', 'v7', 2, 's22')
    a.I('ds_write_b32', 'v6', 'v4')
    VH, VU, VYW, VYR = 4, 5, 6, 7
    a.I('v_lshrrev_b32', V(T0), 4, 'v1')
    a.I('v_bfe_u32', V(T0+1), 'v1', 2, 2)
    a.I('v_and_b32', V(T0+2), 3, 'v1')
    if P['a2']:
        VA2 = 56
        a.I('v_bfe_u32', V(T0+3), 'v1', 3, 2)
        a.I('v_lshlrev_b32', V(VA2), 10, V(T0))
        a.I('v_lshl_add_u32', V(VA2), V(T0+1), 7, V(VA2))
        a.I('v_lshl_add_u32', V(VA2), V(T0+2), 3, V(VA2))
        a.I('v_lshl_add_u32', V(VA2), V(T0+3), 5, V(VA2))
        for tau in range(1, 4): a.I('v_xor_b32', V(VA2+tau), 32*tau, V(VA2))
        VAO = 60
        a.I('v_and_b32', V(VAO), 15, 'v1')
        a.I('v_lshl_add_u32', V(VAO), 'v2', 4, V(VAO))
        a.I('v_mul_u32_u24', V(VAO), 16*2560, V(VAO))
        a.I('v_lshl_add_u32', V(VAO), V(T0), 4, V(VAO))
        a.I('s_mul_i32', 's47', 's45', 2560); a.I('s_lshl_b32', 's48', 's46', 7); a.I('s_add_u32', 's47', 's47', 's48')
    a.I('v_add_u32', V(VH), V(T0+1), V(T0+2))
    a.I('v_lshl_add_u32', V(VH), V(T0), 3, V(VH))
    a.I('s_add_u32', 's23', 's22', hb-24)
    a.I('v_lshl_add_u32', V(VH), V(VH), 3, 's23')
    a.I('v_lshlrev_b32', V(VU), 2, V(T0+2))
    a.I('v_sub_u32', V(VU), V(VU), V(T0+1))
    a.I('v_lshlrev_b32', V(T0+3), 3, V(T0))
    a.I('v_sub_u32', V(VU), V(VU), V(T0+3))
    a.I('s_add_u32', 's23', 's22', ub-8)
    a.I('v_lshl_add_u32', V(VU), V(VU), 3, 's23')
    a.I('s_mul_i32', 's23', 's3', YS)
    a.I('v_lshl_add_u32', V(VYW), 'v1', 3, 's23')
    a.I('v_and_b32', V(T0+3), 1, V(T0+2))
    a.I('v_lshl_add_u32', V(T0+3), V(T0+3), 2, V(T0+1))
    a.I('v_mul_u32_u24', V(VYR), YS, V(T0+3))
    a.I('v_lshrrev_b32', V(T0+3), 1, V(T0+2))
    a.I('v_lshl_add_u32', V(T0+3), V(T0), 1, V(T0+3))
    a.I('v_lshl_add_u32', V(T0+3), 'v2', 3, V(T0+3))
    a.I('v_lshl_add_u32', V(VYR), V(T0+3), 3, V(VYR))
    a.I('s_lshl_b32', 's14', 's14', 16)
    a.I('s_bitcmp1_b32', 's20', 0)
    a.I('s_cselect_b32', 's23', 0, 16)
    a.I('s_lshl_b32', 's15', 's15', 's23'); a.I('s_and_b32', 's15', 's15', '0xffff0000')
    a.I('v_mov_b32', V(T0), 's14'); a.I('v_add_f32', V(T0), 's15', V(T0))
    a.I('v_cvt_pk_bf16_f32', V(47), V(T0), V(T0))
    a.I('v_mov_b32', V(46), 's52')
    a.I('s_mov_b32', 's55', '0xffff0000')
    stamp(a)
    if P['a2']:
        AF, AD = 128, 192
        a.wait_tag('a2'); a.I('s_barrier')
        stamp(a)
        rd = [(lambda st=st, tau=tau, h=h: a.I(TR, V(AF+16*st+4*tau+2*h,2), V(VA2+tau), mods=f'offset:{K2_A+4096*st+512*h}'))
              for st in range(4) for tau in range(4) for h in range(2)]
        mm = [(lambda st=st, tau=tau: a.I(MF, V(AD+4*tau,4), V(AF+16*st+4*tau,4), V(A2C+4*st,4), 0 if st == 0 else V(AD+4*tau,4)))
              for st in range(4) for tau in range(4)]
        merge(a, rd[:12]); merge(a, rd[12:], mm[:10]); merge(a, mm[10:])
        for pr in range(2):
            for tb in range(2):
                d = AD+4*(2*pr+tb); o = A2C+4*pr+2*tb
                a.I('v_cvt_pk_bf16_f32', V(o), V(d), V(d+1)); a.I('v_cvt_pk_bf16_f32', V(o+1), V(d+2), V(d+3))
            a.I('buffer_store_dwordx4', V(A2C+4*pr,4), V(VAO), S(40,4), 's47', mods=M(f'offen offset:{64*pr}', ST_A))
    else: stamp(a)
    stamp(a)
    if STAMP: a.wait_tag('h0'); stamp(a)
    free = list(range(UF + 4*(jmax+1), 256, 4)) + list(range(HF + 4*(jmax//2+1), 128, 4))
    accs = [16, 20, 8, 12, 56, 60] + ([40] if p else []) + [f for f in free if f < 248]
    assert len(accs) >= len(tiles)
    FT = 248 if p == 0 else 32
    have = set(); patched = [False]
    def need_bytes(x, lo, hi):
        for kb in range(max(lo, 0)//1024, hi//1024 + 1): a.wait_tag(f'{x}{kb}')
    def loadH(s):
        if ('h', s) in have: return
        have.add(('h', s))
        need_bytes('h', 256*s-24, 256*s+255)
        if s == 0 and not patched[0]:
            a.I('ds_write_b16', V(46), V(47)); patched[0] = True
        for h in range(2): a.I(TR, V(HF+4*s+2*h,2), V(VH), mods=f'offset:{256*s+32*h}')
    def loadU(m):
        if ('u', m) in have: return
        have.add(('u', m))
        need_bytes('u', 128*m-224, 128*m+127)
        for h in range(2): a.I(TR, V(UF+4*m+2*h,2), V(VU), mods=f'offset:{128*m+32*(1-h)}')
    acc_of = {}; seq = []; gi_end = []; nxt = 0
    for g in P['groups']:
        for J in g: acc_of[J] = accs[nxt]; nxt += 1
        for s in range(max(g)//2+1):
            for J in g:
                if J - 2*s >= 0: seq.append((J, s))
        gi_end.append(len(seq))
    S2a, S1a, S2b, S1b = 48, 49, 50, 51
    YR = 52
    DP = 'row_mask:0xf bank_mask:0xf'
    def reduce_ops(gi):
        l = []
        for J in P['groups'][gi]:
            d = acc_of[J]
            s2, s1 = (S2a, S1a) if J & 1 else (S2b, S1b)
            ps2, ps1 = (S2b, S1b) if J & 1 else (S2a, S1a)
            hasprev = (J-1) in acc_of
            qi = next((k for k in gq[gi] if J in quads[k]), None)
            def lvl(dst, prev, cur_src, add, hasprev=hasprev):
                if hasprev:
                    l.append(lambda: a.I('v_add_f32_dpp', V(dst), V(prev), V(add), mods='wave_ror:1 ' + DP))
                    l.append(lambda: a.I('v_add_f32_dpp', V(dst), V(cur_src), V(add), mods='wave_shr:1 ' + DP))
                else:
                    l.append(lambda: a.I('v_add_f32_dpp', V(dst), V(cur_src), V(add), mods='wave_shr:1 ' + DP + ' bound_ctrl:0'))
            lvl(s2, acc_of[J-1]+3 if hasprev else None, d+3, d+2)
            lvl(s1, ps2, s2, d+1)
            if qi is not None:
                q = quads[qi]
                lvl(YR + q.index(J), ps1, s1, d)
                if J == q[-1]:
                    l.append(lambda: a.I('v_cvt_pk_bf16_f32', V(YR), V(YR), V(YR+1)))
                    if len(q) > 2: l.append(lambda: a.I('v_cvt_pk_bf16_f32', V(YR+1), V(YR+2), V(YR+3)))
                    l.append(lambda qi=qi: a.I('ds_write_b64', V(VYW), V(YR,2), mods=f'offset:{K2_Y+512*qi}'))
        l.append(lambda: a.barrier())
        return l
    def qprep_ops(qi):
        qr = QR+4*qi
        l = []
        l.append(lambda: a.I('v_mov_b32_dpp', V(qr), V(qr+2), mods='row_shr:4 row_mask:0xf bank_mask:0xa'))
        l.append(lambda: a.I('v_mov_b32_dpp', V(qr+1), V(qr+3), mods='row_shr:4 row_mask:0xf bank_mask:0xa'))
        l.append(lambda: a.I('v_and_b32', V(qr+3), 's55', V(qr+1)))
        l.append(lambda: a.I('v_lshlrev_b32', V(qr+2), 16, V(qr+1)))
        l.append(lambda: a.I('v_and_b32', V(qr+1), 's55', V(qr)))
        l.append(lambda: a.I('v_lshlrev_b32', V(qr), 16, V(qr)))
        return l
    def flush_ops(qi, tmp, prep=True):
        l = []
        q = quads[qi]; qr = QR+4*qi
        l.append(lambda: a.I(TR, V(tmp,2), V(VYR), mods=f'offset:{K2_Y+512*qi}'))
        if prep: l += qprep_ops(qi)
        l.append(lambda: a.I('v_lshlrev_b32', V(tmp+4), 16, V(tmp)))
        l.append(lambda: a.I('v_and_b32', V(tmp+5), 's55', V(tmp)))
        l.append(lambda: a.I('v_lshlrev_b32', V(tmp+6), 16, V(tmp+1)))
        l.append(lambda: a.I('v_and_b32', V(tmp+7), 's55', V(tmp+1)))
        for j in range(4): l.append(lambda j=j: a.I('v_mul_f32', V(tmp+4+j), V(tmp+4+j), V(qr+j)))
        l.append(lambda: a.I('v_cvt_pk_bf16_f32', V(qr), V(tmp+4), V(tmp+5)))
        l.append(lambda: a.I('v_cvt_pk_bf16_f32', V(qr+1), V(tmp+6), V(tmp+7)))
        l.append(lambda: a.I('v_mov_b32_dpp', V(qr+2), V(qr), mods='row_shl:4 ' + DP))
        l.append(lambda: a.I('v_mov_b32_dpp', V(qr+3), V(qr+1), mods='row_shl:4 ' + DP))
        l.append(lambda: a.I('buffer_store_dwordx4', V(qr,4), V(vq[len(q)][1]), S(40,4), S(56+qi), mods=M('offen', ST_O)))
        return l
    AHEAD = opt('ahead', 6)
    started = set()
    qpos = {}
    n = len(seq)
    if p == 0: pos = [0, 6, 24, 44, 66]
    else: pos = [n//4, n//2]
    for qi in range(nq): qpos.setdefault(pos[qi], []).append(qi)
    def mf_thunk(idx):
        def f():
            for k in range(idx, min(idx+AHEAD, len(seq))):
                J, s = seq[k]; loadH(s); loadU(J-2*s)
            for qi in qpos.get(idx, []): qload(qi)
            J, s = seq[idx]
            d = V(acc_of[J],4)
            a.I(MF, d, V(UF+4*(J-2*s),4), V(HF+4*s,4), d if J in started else 0)
            started.add(J)
        return f
    pend = []; lo = 0
    ng = len(P['groups'])
    for gi, g in enumerate(P['groups']):
        mfs = [mf_thunk(i) for i in range(lo, gi_end[gi])]; lo = gi_end[gi]
        if gi == ng-1:
            for qi in gq[gi]: pend = pend + qprep_ops(qi)
        if pend: merge(a, mfs[:2]); merge(a, mfs[2:], pend)
        else: merge(a, mfs)
        if gi == 0 or gi == ng-1: stamp(a)
        pend = reduce_ops(gi)
        for qi in gq[gi]: pend = pend + flush_ops(qi, FT, prep=(gi != ng-1))
    merge(a, pend)
    stamp(a)
    stamp_out(a, 1, 28)
    a.I('s_endpgm')

def main():
    a = Asm()
    hdr = open('concat_heads__spectral_fnet__ssm_conv_h3__prompt.s.ref').read().split('; Override')[0]
    a.raw(hdr.rstrip())
    for k in opt('seq', '12'):
        if k == '1': a.raw(f"; @launch kernel=k1_kernel grid=(256,1,1) block=(512,1,1) lds={K1_LDS}")
        if k == '2': a.raw(f"; @launch kernel=k2_kernel grid=(256,1,1) block=(512,1,1) lds={K2_LDS}")
    a.raw('.amdgcn_target "amdgcn-amd-amdhsa--gfx950"\n.text')
    k1(a); k2(a)
    a.raw(".p2align 8\n.type TBL1,@object\nTBL1:")
    a.raw(T.as_asm(T.t1_d1()) + T.as_asm(T.t1_tw()) + T.as_asm(T.t1_d2()))
    a.raw(".size TBL1, .-TBL1")
    a.raw('.section .rodata,"a"')
    for k in ('k1_kernel', 'k2_kernel'):
        a.raw(f""".p2align 6
.amdhsa_kernel {k}
  .amdhsa_next_free_vgpr 256
  .amdhsa_next_free_sgpr 96
  .amdhsa_accum_offset 256
  .amdhsa_group_segment_fixed_size 0
  .amdhsa_kernarg_size 112
  .amdhsa_user_sgpr_count 2
  .amdhsa_user_sgpr_kernarg_segment_ptr 1
  .amdhsa_system_sgpr_workgroup_id_x 1
.end_amdhsa_kernel""")
    open(sys.argv[1], 'w').write(a.text())
    print("instrs", a.nins, a.stats, "LDS", K1_LDS, K2_LDS)
main()
```

```python
import sys
from emit import Asm, V, S
import tables as T

OPT = dict(a.split('=') for a in sys.argv[2:])
def opt(k, d): return type(d)(OPT.get(k, d))
def flag(k, d):
    v = opt(k, d)
    return '' if v == 'p' else v.replace('_', ' ')

H_OFF = 0
U_OFF = 0x280000
NBYTES = 2048 * 640 * 2
WS_BYTES = U_OFF + NBYTES
ST_I = flag('st_i', 'sc1')
ST_O = flag('st_o', 'p')
ST_A = flag('st_a', 'p')
LD_IN = flag('ld_in', 'nt')
LD_I = flag('ld_i', 'p')
PF = opt('pf', 1)
def M(*xs): return ' '.join(x for x in xs if x)

def srd_tail(a, d, nbytes):
    a.I('s_mov_b32', S(d+2), hex(nbytes)); a.I('s_mov_b32', S(d+3), '0x20000')

def merge(a, *lists):
    lists = [l for l in lists if l]
    pos = [0]*len(lists)
    total = sum(len(l) for l in lists)
    for _ in range(total):
        k = min((i for i in range(len(lists)) if pos[i] < len(lists[i])), key=lambda i: (pos[i] + 0.5) / len(lists[i]))
        lists[k][pos[k]](); pos[k] += 1

STAMP = opt('stamp', 0)
class Stamps: n = 0
def stamp(a, first=False):
    if not STAMP: return
    if first: Stamps.n = 0
    a.I('s_memrealtime', S(66+2*Stamps.n, 2)); Stamps.n += 1
    assert Stamps.n <= 14
def stamp_out(a, kern, wsreg):
    if not STAMP: return
    a.waitcnt(vm=0)
    stamp(a)
    a.waitcnt(lg=0)
    a.I('s_lshl_b32', 's94', 's2', 3); a.I('s_add_u32', 's94', 's94', 's3'); a.I('s_lshl_b32', 's94', 's94', 6)
    a.I('s_add_u32', 's94', 's94', hex(0x1000000 + kern*0x40000))
    a.I('v_mov_b32', 'v0', 's94')
    a.I('s_mov_b64', 'exec', 1)
    for i in range(Stamps.n):
        a.I('v_mov_b32', 'v1', S(66+2*i))
        a.I('global_store_dword', 'v0', 'v1', S(wsreg,2), mods=f'offset:{4*i}')
    a.I('v_mov_b32', 'v1', Stamps.n)
    a.I('global_store_dword', 'v0', 'v1', S(wsreg,2), mods='offset:60')

MF = 'v_mfma_f32_16x16x32_bf16'
TR = 'ds_read_b64_tr_b16'
DUMMY = 252

K1_T = 0
K1_X = 17*1024
K1_R = K1_X + 40960
RS = 2568
K1_LDS = K1_R + 16*RS + 64

def k1(a):
    a.raw(".globl k1_kernel\n.p2align 8\n.type k1_kernel,@function\nk1_kernel:")
    a.reset_state()
    a.I('s_getpc_b64', S(4,2))
    a.I('s_load_dwordx2', S(20,2), S(0,2), 48)
    a.I('s_load_dwordx2', S(24,2), S(0,2), 56)
    a.I('s_load_dwordx2', S(36,2), S(0,2), 0)
    a.I('s_load_dwordx2', S(28,2), S(0,2), 64)
    a.I('s_load_dwordx2', S(40,2), S(0,2), 104)
    a.I('s_cmp_ge_u32', 's2', 256); a.I('s_cbranch_scc1', 'K1_END')
    stamp(a, True)
    a.I('v_lshlrev_b32', 'v3', 4, 'v0')
    a.I('global_load_dwordx4', V(DUMMY,4), 'v3', S(4,2), mods='nt', notrack=True)
    a.I('v_lshrrev_b32', 'v2', 6, 'v0')
    a.I('v_and_b32', 'v1', 63, 'v0')
    a.I('v_readfirstlane_b32', 's3', 'v2')
    a.I('s_and_b32', 's16', 's2', 7)
    a.I('s_cmp_lt_u32', 's2', 128); a.I('s_cbranch_scc1', 'K1_A')
    st = a.save()
    k1_b_issue(a)
    a.I('s_branch', 'K1_B2')
    stb = a.save(); nb = Stamps.n
    a.label('K1_A'); a.restore(st); Stamps.n = 1
    k1_a(a)
    a.label('K1_B2'); a.restore(stb); Stamps.n = nb
    k1_b_rest(a)
    a.label('K1_END')
    a.I('s_endpgm')

KR, VR, WR = 12, 34, 52
def k1_b_issue(a):
    a.I('s_cmp_ge_u32', 's3', 5); a.I('s_cbranch_scc1', 'K1_END')
    a.I('s_bfe_u32', 's17', 's2', hex(3 | (3 << 16)))
    a.I('s_lshl3_add_u32', 's16', 's16', 's17')
    a.I('s_bfe_u32', 's17', 's2', hex(6 | (1 << 16)))
    a.I('s_mul_i32', 's17', 's17', 5)
    a.I('s_add_u32', 's17', 's17', 's3')
    a.I('s_lshl_b32', 's17', 's17', 6)
    a.I('s_lshl_b32', 's16', 's16', 5)
    a.I('v_and_b32', 'v3', 15, 'v1')
    a.I('v_lshrrev_b32', 'v4', 4, 'v1')
    a.I('v_lshl_add_u32', 'v5', 'v3', 2, 's17')
    a.I('v_lshl_add_u32', 'v6', 'v4', 3, 's16')
    a.I('v_mul_u32_u24', 'v7', 1280, 'v6')
    a.I('v_lshl_add_u32', 'v7', 'v5', 1, 'v7')
    a.I('v_subrev_u32', 'v8', 3840, 'v7')
    a.I('s_movk_i32', 's18', 5120)
    srd_tail(a, 20, NBYTES); srd_tail(a, 24, NBYTES)
    for j in range(8):
        a.I('buffer_load_dwordx2', V(KR+6+2*j,2), 'v7', S(20,4), 's18' if j >= 4 else 0, mods=M(f'offen offset:{1280*(j%4)}', LD_IN))
    for j in range(3):
        a.I('buffer_load_dwordx2', V(KR+2*j,2), 'v8', S(20,4), 0, mods=M(f'offen offset:{1280*j}', LD_IN))
    a.I('v_lshlrev_b32', 'v9', 3, 'v5')
    srd_tail(a, 28, 640*8)
    a.I('buffer_load_dwordx4', V(WR,4), 'v9', S(28,4), 0, mods=M('offen', LD_IN))
    a.I('buffer_load_dwordx4', V(WR+4,4), 'v9', S(28,4), 0, mods=M('offen offset:16', LD_IN))
    for j in range(8):
        a.I('buffer_load_dwordx2', V(VR+2*j,2), 'v7', S(24,4), 's18' if j >= 4 else 0, mods=M(f'offen offset:{1280*(j%4)}', LD_IN))
    stamp(a)

def k1_b_rest(a):
    KU, WU, KS, TMP, O = 60, 104, 120, 152, 160
    a.I('v_lshlrev_b32', 'v10', 12, 'v5')
    a.I('v_lshl_add_u32', 'v10', 'v6', 1, 'v10')
    srd_tail(a, 40, WS_BYTES)
    for ch in range(4): a.I('s_mov_b32', S(44+ch), hex(U_OFF + 4096*ch))
    a.I('s_mov_b32', 's48', '0xffff0000')
    def unpack(dst_lo, dst_hi, src):
        a.I('v_lshlrev_b32', V(dst_lo), 16, V(src)); a.I('v_and_b32', V(dst_hi), 's48', V(src))
    def unk(j):
        unpack(KU+4*j, KU+4*j+1, KR+2*j); unpack(KU+4*j+2, KU+4*j+3, KR+2*j+1)
    for j in list(range(3, 11)) + [0, 1, 2]: unk(j)
    stamp(a)
    for ch in range(4):
        unpack(WU+0*4+ch, WU+1*4+ch, WR+2*ch)
        unpack(WU+2*4+ch, WU+3*4+ch, WR+2*ch+1)
    for j in range(8):
        for p in range(2):
            a.I('v_pk_mul_f32', V(KS+4*j+2*p, 2), V(KU+4*j+2*p,2), V(WU+3*4+2*p,2))
        for t in range(1, 4):
            for p in range(2):
                d = V(KS+4*j+2*p, 2)
                a.I('v_pk_fma_f32', d, V(KU+4*(j+t)+2*p,2), V(WU+(3-t)*4+2*p,2), d)
    stamp(a)
    for j in range(8):
        t = TMP + 4*(j & 1)
        unpack(t, t+1, VR+2*j); unpack(t+2, t+3, VR+2*j+1)
        for p in range(2):
            d = V(KS+4*j+2*p, 2)
            a.I('v_pk_mul_f32', d, d, V(t+2*p,2))
        if j & 1:
            for ch in range(4):
                a.I('v_cvt_pk_bf16_f32', V(O+4*ch+j//2), V(KS+4*(j-1)+ch), V(KS+4*j+ch))
    for ch in range(4):
        a.I('buffer_store_dwordx4', V(O+4*ch,4), 'v10', S(40,4), S(44+ch), mods=M('offen', ST_I))
    stamp(a)
    stamp_out(a, 0, 40)
    a.I('s_endpgm')

def k1_a(a):
    a.I('s_mov_b32', 's50', 's16')
    a.I('s_lshr_b32', 's17', 's2', 4)
    a.I('s_lshl3_add_u32', 's16', 's17', 's16')
    a.I('s_sub_u32', 's18', 128, 's16')
    a.I('s_cmp_eq_u32', 's16', 0)
    a.I('s_cselect_b32', 's18', 64, 's18')
    a.I('s_and_b32', 's19', 's3', 3)
    a.I('s_lshr_b32', 's6', 's3', 2)
    a.I('v_lshrrev_b32', 'v4', 3, 'v1')
    a.I('v_and_b32', 'v5', 7, 'v1')
    a.I('v_and_b32', 'v6', 2, 'v4')
    a.I('s_and_b32', 's7', 's19', 1); a.I('s_lshl_b32', 's7', 's7', 2)
    a.I('v_xor_b32', 'v5', 'v5', 'v6')
    a.I('v_xor_b32', 'v5', 's7', 'v5')
    a.I('v_mul_u32_u24', 'v6', 128*1280, 'v4')
    a.I('v_lshl_add_u32', 'v6', 'v5', 4, 'v6')
    a.I('s_cmp_ge_u32', 's19', 2)
    a.I('s_cselect_b32', 's30', 's18', 's16')
    a.I('s_lshl_b32', 's31', 's7', 8)
    a.I('s_add_u32', 's30', 's30', 's31')
    a.I('s_lshl1_add_u32', 's30', 's30', 's6')
    a.I('s_mul_i32', 's30', 's30', 640)
    a.I('s_lshl1_add_u32', 's31', 's19', 's6')
    a.I('s_mul_i32', 's31', 's31', 5120)
    srd_tail(a, 36, NBYTES)
    for i in range(5):
        a.I('s_add_u32', 'm0', 's31', K1_X + i*(1024-128))
        a.I('buffer_load_dwordx4', 'v6', S(36,4), 's30', mods=M(f'offen offset:{128*i}', LD_IN, 'lds'), tag='x')
    a.I('s_add_u32', 's24', 's4', 'TBL1-k1_kernel-4'); a.I('s_addc_u32', 's25', 's5', 0)
    srd_tail(a, 24, 17*1024)
    a.I('v_lshlrev_b32', 'v3', 4, 'v1')
    a.I('s_lshl_b32', 's21', 's3', 10)
    a.I('s_add_u32', 'm0', 's21', K1_T)
    a.I('s_add_u32', 's22', 's21', 8192)
    a.I('buffer_load_dwordx4', 'v3', S(24,4), 's21', mods='offen nt lds', tag='tbl')
    a.I('s_add_u32', 'm0', 's22', K1_T)
    a.I('s_movk_i32', 's23', 16*1024)
    a.I('buffer_load_dwordx4', 'v3', S(24,4), 's22', mods='offen nt lds', tag='tbl')
    a.I('s_mov_b32', 'm0', K1_T + 16*1024)
    a.I('buffer_load_dwordx4', 'v3', S(24,4), 's23', mods='offen nt lds', tag='tbl')
    stamp(a)
    if PF:
        a.I('s_load_dwordx2', S(52,2), S(0,2), 72)
        a.I('s_load_dwordx2', S(56,2), S(0,2), 40)
        a.I('s_lshr_b32', 's51', 's2', 3); a.I('s_lshl3_add_u32', 's51', 's51', 's3')
        a.I('s_lshr_b32', 's60', 's50', 1); a.I('s_lshl1_add_u32', 's60', 's50', 's60')
        srd_tail(a, 52, NBYTES); srd_tail(a, 56, NBYTES)
        a.I('v_lshlrev_b32', 'v4', 6, 'v1')
        a.I('v_cmp_gt_u32', 'vcc', 48, 'v1')
        a.I('v_mov_b32', 'v5', '0x7ff00000')
        a.I('v_cndmask_b32', 'v4', 'v5', 'v4', 'vcc')
        a.I('s_lshl_b32', 's61', 's60', 17); a.I('s_mul_i32', 's62', 's51', 3072); a.I('s_add_u32', 's61', 's61', 's62')
        a.I('buffer_load_dword', V(DUMMY), 'v4', S(52,4), 's61', mods='offen nt', notrack=True)
        if PF >= 2:
            a.I('v_and_b32', 'v6', 15, 'v1'); a.I('v_mul_u32_u24', 'v6', 1280, 'v6')
            a.I('v_lshrrev_b32', 'v7', 4, 'v1'); a.I('v_lshl_add_u32', 'v6', 'v7', 6, 'v6')
            a.I('v_cndmask_b32', 'v6', 'v5', 'v6', 'vcc')
            a.I('s_mul_i32', 's61', 's51', 16*1280); a.I('s_lshl_b32', 's62', 's60', 6); a.I('s_add_u32', 's61', 's61', 's62')
            a.I('buffer_load_dword', V(DUMMY), 'v6', S(56,4), 's61', mods='offen nt', notrack=True)
        a.I('s_add_u32', 's52', 's4', 'k2_kernel-k1_kernel-4'); a.I('s_addc_u32', 's53', 's5', 0)
        a.I('s_mov_b32', 's54', 'K2_CODE_END-k2_kernel')
        a.I('s_lshl_b32', 's61', 's51', 12)
        a.I('v_lshlrev_b32', 'v4', 6, 'v1')
        a.I('buffer_load_dword', V(DUMMY), 'v4', S(52,4), 's61', mods='offen nt', notrack=True)
    a.I('s_bfe_u32', 's17', 's2', hex(3 | (1 << 16)))
    a.I('s_mul_i32', 's32', 's6', 5120)
    AL = 8
    TM = 16
    a.I('v_and_b32', 'v4', 15, 'v1')
    a.I('v_lshrrev_b32', 'v5', 4, 'v1')
    a.I('v_cmp_gt_u32', 'vcc', 2, 'v5')
    a.I('v_mov_b32', 'v6', 's18')
    a.I('v_mov_b32', 'v7', 's16')
    a.I('v_cndmask_b32', 'v6', 'v6', 'v7', 'vcc')
    a.I('v_and_b32', 'v7', 1, 'v5')
    a.I('v_lshl_add_u32', 'v6', 'v7', 10, 'v6')
    a.I('v_mul_u32_u24', 'v6', 'v6', 'v4')
    a.I('s_cmp_lg_u32', 's16', 0); a.I('s_cselect_b32', 's33', 's17', 0)
    a.I('s_mul_i32', 's34', 's33', 512); a.I('s_mul_i32', 's35', 's33', 1536)
    a.I('v_mov_b32', 'v7', 's35'); a.I('v_mov_b32', V(TM), 's34')
    a.I('v_cndmask_b32', 'v7', 'v7', V(TM), 'vcc')
    a.I('v_add_u32', 'v6', 'v6', 'v7')
    a.I('v_cvt_f32_u32', 'v6', 'v6')
    a.I('v_mul_f32', 'v6', '0x3a000000', 'v6')
    a.I('v_cvt_f32_u32', 'v7', 'v4')
    a.I('v_mul_f32', 'v7', '0x3d800000', 'v7')
    a.I('s_cmp_eq_u32', 's17', 0); a.I('s_cselect_b32', 's34', -1, 0); a.I('s_cselect_b32', 's35', 0, -1)
    a.I('s_cmp_lg_u32', 's16', 0); a.I('s_cselect_b32', 's34', -1, 's34'); a.I('s_cselect_b32', 's35', -1, 's35')
    a.I('v_mov_b32', V(TM), 's35'); a.I('v_mov_b32', V(TM+1), 's34')
    a.I('v_cndmask_b32', 'v2', V(TM), V(TM+1), 'vcc')
    for e in range(8):
        a.I('v_cos_f32', V(TM+e), 'v6')
        a.I('v_sin_f32', V(TM+8+e), '-v6')
        if e < 7: a.I('v_add_f32', 'v6', 'v6', 'v7')
    for h in range(2):
        for j in range(4):
            a.I('v_cvt_pk_bf16_f32', V(AL+4*h+j), V(TM+8*h+2*j), V(TM+8*h+2*j+1))
    for j in range(8):
        a.I('v_and_b32', V(AL+j), 'v2', V(AL+j))
    VA, VW, VD, VD2, VS = 4, 5, 6, 7, 2
    a.I('v_lshrrev_b32', V(TM), 4, 'v1')
    a.I('v_bfe_u32', V(TM+1), 'v1', 2, 2)
    a.I('v_and_b32', V(TM+2), 3, 'v1')
    a.I('v_and_b32', V(TM+3), 15, 'v1')
    a.I('v_bfe_u32', V(TM+4), 'v1', 3, 2)
    a.I('v_xor_b32', V(TM+4), 's19', V(TM+4))
    a.I('v_mul_u32_u24', V(VA), 10240, V(TM))
    a.I('v_lshl_add_u32', V(VA), V(TM+1), 7, V(VA))
    a.I('v_lshl_add_u32', V(VA), V(TM+4), 5, V(VA))
    a.I('v_lshl_add_u32', V(VA), V(TM+2), 3, V(VA))
    a.I('v_add_u32', V(VA), 's32', V(VA))
    a.I('v_mul_u32_u24', V(VW), RS, V(TM+3))
    a.I('v_lshl_add_u32', V(VW), V(TM), 3, V(VW))
    a.I('s_lshl_b32', 's33', 's19', 5); a.I('s_mul_i32', 's34', 's6', 640); a.I('s_add_u32', 's33', 's33', 's34')
    a.I('v_add_u32', V(VW), 's33', V(VW))
    a.I('v_lshrrev_b32', V(TM+5), 1, V(TM))
    a.I('v_mul_u32_u24', V(VD), 1280, V(TM+5))
    a.I('v_and_b32', V(TM+5), 1, V(TM))
    a.I('v_lshl_add_u32', V(TM+5), V(TM+5), 3, V(TM+1))
    a.I('v_mul_u32_u24', V(TM+5), 80, V(TM+5))
    a.I('v_add_u32', V(VD), V(VD), V(TM+5))
    a.I('s_mul_i32', 's33', 's3', 2*RS)
    a.I('v_add_u32', V(VD), 's33', V(VD))
    a.I('v_and_b32', V(TM+5), 1, V(TM+2))
    a.I('v_lshl_add_u32', V(VD2), V(TM+5), 3, V(VD))
    a.I('v_lshl_add_u32', V(VD), V(TM+2), 3, V(VD))
    a.I('v_lshrrev_b32', V(TM+5), 1, V(TM+3))
    a.I('v_lshlrev_b32', V(VS), 6, V(TM+5))
    a.I('v_and_b32', V(TM+5), 1, V(TM)); a.I('v_lshl_add_u32', V(VS), V(TM+5), 5, V(VS))
    a.I('v_and_b32', V(TM+5), 1, V(TM+3)); a.I('v_lshl_add_u32', V(VS), V(TM+5), 4, V(VS))
    a.I('v_lshrrev_b32', V(TM+5), 1, V(TM)); a.I('v_lshl_add_u32', V(VS), V(TM+5), 3, V(VS))
    VS2 = 1
    a.I('v_cmp_gt_u32', 'vcc', 8, V(TM+3))
    a.I('v_mov_b32', V(TM+5), '0x7ff00000')
    a.I('v_cndmask_b32', V(VS2), V(TM+5), V(VS), 'vcc')
    srd_tail(a, 40, WS_BYTES)
    a.I('s_lshl_b32', 's33', 's3', 8); a.I('s_lshl_b32', 's34', 's17', 6)
    a.I('s_add_u32', 's33', 's33', 's34'); a.I('s_add_u32', 's33', 's33', 's16')
    a.I('s_mul_i32', 's44', 's33', 1280); a.I('s_add_u32', 's45', 's44', 128*1280)
    assert H_OFF == 0
    D1B, TW, D2B = 48, 56, 80
    stamp(a)
    a.wait_tag('tbl'); stamp(a); a.I('s_barrier')
    stamp(a)
    AF, AD, PK = 116, 136, 176
    for i in range(5):
        for h in range(2):
            a.I(TR, V(AF+4*i+2*h,2), V(VA), mods=f'offset:{K1_X+1024*i+512*h}')
    tl = [(lambda i=i: a.I('ds_read_b128', V(D1B+4*i,4), 'v3', mods=f'offset:{K1_T+1024*i}')) for i in range(17)]
    def fin(i):
        for cp in range(2):
            d = AD+8*i+4*cp; p = PK+4*i+2*cp
            a.I('v_cvt_pk_bf16_f32', V(p), V(d), V(d+1)); a.I('v_cvt_pk_bf16_f32', V(p+1), V(d+2), V(d+3))
            a.I('ds_write_b64', V(VW), V(p,2), mods=f'offset:{K1_R+1280*cp+128*i}')
    for i in range(7):
        if i < 5:
            for cp in range(2):
                a.I(MF, V(AD+8*i+4*cp,4), V(AF+4*i,4), V(AL+4*cp,4), 0)
        if i == 4:
            for t in tl[:2]: t()
        if i >= 2: fin(i-2)
    a.barrier()
    stamp(a)
    DF, D1, WP, D2, OP, TT = 116, 140, 188, 212, 236, 16
    for r in range(2):
        for tau in range(3):
            for h in range(2):
                a.I(TR, V(DF+12*r+4*tau+2*h,2), V(VD2 if tau == 2 else VD), mods=f'offset:{K1_R+RS*r+320*h+32*tau}')
    def d1(r):
        return [(lambda tau=tau, cp=cp: a.I(MF, V(D1+24*r+8*tau+4*cp,4), V(DF+12*r+4*tau,4), V(D1B+4*cp,4), 0)) for tau in range(3) for cp in range(2)]
    def twd(r):
        l = []
        for tau in range(3):
            re = D1+24*r+8*tau; im = re+4; tc = TW+8*tau; ts = tc+4; t = TT+8*(tau & 1)+16*r
            for j in range(4): l.append(lambda j=j, re=re, tc=tc, t=t: a.I('v_mul_f32', V(t+j), V(re+j), V(tc+j)))
            for j in range(4): l.append(lambda j=j, im=im, tc=tc, t=t: a.I('v_mul_f32', V(t+4+j), V(im+j), V(tc+j)))
            for j in range(4): l.append(lambda j=j, im=im, ts=ts, t=t: a.I('v_fmac_f32', V(t+j), V(im+j), V(ts+j)))
            for j in range(4): l.append(lambda j=j, re=re, ts=ts, t=t: a.I('v_fma_f32', V(t+4+j), '-'+V(re+j), V(ts+j), V(t+4+j)))
            for j in range(4): l.append(lambda j=j, t=t, tau=tau: a.I('v_cvt_pk_bf16_f32', V(WP+12*r+4*tau+j), V(t+2*j), V(t+2*j+1)))
        return l
    def d2(r):
        return [(lambda tau=tau, jt=jt: a.I(MF, V(D2+12*r+4*jt,4), V(WP+12*r+4*tau,4), V(D2B+12*tau+4*jt,4), 0 if tau == 0 else V(D2+12*r+4*jt,4)))
                for tau in range(3) for jt in range(3)]
    def outp(r):
        l = []
        for jt in range(3):
            d = D2+12*r+4*jt; p = OP+6*r+2*jt
            l.append(lambda d=d, p=p: a.I('v_cvt_pk_bf16_f32', V(p), V(d), V(d+1)))
            l.append(lambda d=d, p=p: a.I('v_cvt_pk_bf16_f32', V(p+1), V(d+2), V(d+3)))
            l.append(lambda p=p, jt=jt: a.I('buffer_store_dwordx2', V(p,2), V(VS2 if jt == 2 else VS), S(40,4), S(44+r), mods=M(f'offen offset:{512*jt}', ST_I)))
        return l
    merge(a, d1(0) + d1(1), tl[2:])
    merge(a, twd(0))
    merge(a, d2(0), twd(1))
    merge(a, d2(1), outp(0))
    merge(a, outp(1))
    stamp(a)
    stamp_out(a, 0, 40)
    a.I('s_endpgm')

CR = 8480
K2_A = 0
K2_Y = 16384
YS = 5*512 + 64
K2_C = K2_Y + 8*YS
K2_LDS = K2_C + 8*CR
PARTS = [
    dict(groups=[[0,1,2,3,4,5,6,7],[8,9,10,11],[12,13,14,15],[16,17]], first=0, a2=True),
    dict(groups=[[17,18,19,20,21],[22,23,24,25]], first=18, a2=True),
    dict(groups=[[25,26,27,28,29],[30,31]], first=26, a2=False),
]

def k2(a):
    a.raw(".globl k2_kernel\n.p2align 8\n.type k2_kernel,@function\nk2_kernel:")
    a.reset_state()
    a.I('s_load_dwordx2', S(28,2), S(0,2), 104)
    a.I('s_load_dwordx2', S(24,2), S(0,2), 72)
    a.I('s_load_dwordx2', S(10,2), S(0,2), 80)
    a.I('s_load_dwordx2', S(36,2), S(0,2), 40)
    a.I('s_load_dwordx2', S(40,2), S(0,2), 88)
    a.I('s_cmp_ge_u32', 's2', 256); a.I('s_cbranch_scc1', 'K2_END')
    stamp(a, True)
    if opt('scr', 0):
        a.I('s_lshr_b32', 's16', 's2', 5); a.I('s_lshl_b32', 's2', 's2', 3); a.I('s_and_b32', 's2', 's2', 255); a.I('s_or_b32', 's2', 's2', 's16')
    a.I('v_lshrrev_b32', 'v2', 6, 'v0')
    a.I('v_and_b32', 'v1', 63, 'v0')
    a.I('v_readfirstlane_b32', 's3', 'v2')
    a.I('s_and_b32', 's16', 's2', 7)
    a.I('s_lshr_b32', 's17', 's2', 5)
    a.I('s_and_b32', 's18', 's16', 1)
    a.I('s_add_u32', 's18', 's18', 's17')
    a.I('s_cmp_ge_u32', 's18', 8); a.I('s_cbranch_scc1', 'K2_END')
    a.I('s_mul_i32', 's16', 's16', 15); a.I('s_add_u32', 's16', 's16', 1); a.I('s_lshr_b32', 's16', 's16', 1)
    a.I('s_add_u32', 's16', 's16', 's17')
    a.I('s_mul_i32', 's17', 's16', 43); a.I('s_lshr_b32', 's17', 's17', 7)
    a.I('s_mul_i32', 's18', 's17', 3); a.I('s_sub_u32', 's18', 's16', 's18')
    a.I('s_bfe_u32', 's19', 's2', hex(3 | (2 << 16)))
    a.I('s_lshl2_add_u32', 's17', 's17', 's19')
    a.I('v_lshlrev_b32', 'v3', 4, 'v1')
    a.I('s_lshl3_add_u32', 's20', 's17', 's3')
    a.I('s_lshl_b32', 's21', 's20', 12)
    a.I('s_add_u32', 's12', 's21', hex(U_OFF))
    a.I('s_mul_i32', 's22', 's3', CR)
    a.I('s_add_u32', 's22', 's22', K2_C)
    srd_tail(a, 24, NBYTES); srd_tail(a, 28, WS_BYTES)
    a.I('s_cmp_eq_u32', 's18', 1); a.I('s_cbranch_scc1', 'K2_P1')
    a.I('s_cmp_eq_u32', 's18', 2); a.I('s_cbranch_scc1', 'K2_P2')
    st = a.save()
    for p in range(3):
        if p:
            a.raw(".p2align 6"); a.label(f'K2_P{p}')
            a.restore(st)
        Stamps.n = 1
        k2_part(a, p)
    a.label('K2_END')
    a.I('s_endpgm')
    a.label('K2_CODE_END')

def k2_part(a, p):
    P = PARTS[p]
    tiles = [t for g in P['groups'] for t in g]
    jmax = max(tiles)
    nkb = (64*(jmax+1)*2 + 1023)//1024
    quads = []; gq = []
    for g in P['groups']:
        v = [t for t in g if t >= P['first']]
        gq.append([])
        for i in range(0, len(v), 4):
            gq[-1].append(len(quads)); quads.append(v[i:i+4])
    nq = len(quads)
    A2C = 8
    if P['a2']:
        a.I('s_add_u32', 's44', 's17', 80*p)
        a.I('s_mul_i32', 's45', 's44', 205); a.I('s_lshr_b32', 's45', 's45', 11)
        a.I('s_mul_i32', 's46', 's45', 10); a.I('s_sub_u32', 's46', 's44', 's46')
        a.I('v_lshrrev_b32', 'v4', 3, 'v1'); a.I('v_and_b32', 'v5', 7, 'v1'); a.I('v_and_b32', 'v6', 2, 'v4')
        a.I('v_xor_b32', 'v5', 'v5', 'v6')
        a.I('v_mul_u32_u24', 'v6', 1280, 'v4')
        a.I('v_lshl_add_u32', 'v6', 'v5', 4, 'v6')
        a.I('v_xor_b32', 'v7', 64, 'v6')
        a.I('s_lshl3_add_u32', 's47', 's45', 's3')
        a.I('s_mul_i32', 's47', 's47', 16*1280); a.I('s_lshl_b32', 's48', 's46', 7); a.I('s_add_u32', 's47', 's47', 's48')
        a.I('s_add_u32', 's48', 's47', 8*1280)
        a.I('s_lshl_b32', 's49', 's3', 11)
        a.I('s_add_u32', 'm0', 's49', K2_A)
        a.I('buffer_load_dwordx4', 'v6', S(28,4), 's47', mods=M('offen', LD_I, 'lds'), tag='a2')
        a.I('s_add_u32', 'm0', 's49', K2_A + 1024)
        a.I('buffer_load_dwordx4', 'v7', S(28,4), 's48', mods=M('offen', LD_I, 'lds'), tag='a2')
    hb = 32; ub = 32 + 4096 + 256
    if p == 0: order = [('u',0),('h',0),('u',1),('u',2),('h',1),('h',2)]
    else:
        order = [('u', nkb-1), ('h', 0)] + [('u', nkb-1-i) for i in range(1, nkb)] + [('h', i) for i in range(1, nkb)]
    assert sorted(order) == sorted([(x, i) for x in 'hu' for i in range(nkb)])
    a.I('s_add_u32', 's52', 's22', hb); a.I('s_add_u32', 's53', 's22', ub)
    cur = None
    for (x, i) in order:
        if cur != x: a.I('s_mov_b32', 'm0', 's52' if x == 'h' else 's53'); cur = x
        if x == 'h': a.I('buffer_load_dwordx4', 'v3', S(24,4), 's21', mods=M(f'offen offset:{1024*i}', LD_IN, 'lds'), tag=f'{x}{i}')
        else: a.I('buffer_load_dwordx4', 'v3', S(28,4), 's12', mods=M(f'offen offset:{1024*i}', LD_I, 'lds'), tag=f'{x}{i}')
    stamp(a)
    a.I('s_load_dword', 's14', S(24,2), 's21')
    a.I('s_lshl_b32', 's23', 's20', 1); a.I('s_and_b32', 's23', 's23', -4)
    a.I('s_load_dword', 's15', S(10,2), 's23')
    T0 = 52
    HF, UF = 64, 128
    if P['a2']:
        CT = 64
        a.I('v_and_b32', 'v4', 15, 'v1'); a.I('v_lshl_add_u32', 'v4', 'v2', 4, 'v4')
        a.I('v_cvt_f32_u32', 'v5', 'v4'); a.I('v_mul_f32', 'v5', '0x3c000000', 'v5')
        a.I('v_lshrrev_b32', 'v6', 4, 'v1'); a.I('v_cvt_f32_u32', 'v6', 'v6')
        a.I('v_mul_f32', 'v6', 'v6', 'v5'); a.I('v_mul_f32', 'v6', '0x41000000', 'v6')
        a.I('v_mul_f32', 'v7', '0x42000000', 'v5'); a.I('v_add_f32', 'v7', 'v7', 'v6')
        for e in range(8):
            a.I('v_cos_f32', V(CT+e), 'v6'); a.I('v_cos_f32', V(CT+8+e), 'v7')
            a.I('v_sin_f32', V(CT+16+e), 'v6'); a.I('v_sin_f32', V(CT+24+e), 'v7')
            if e < 7: a.I('v_add_f32', 'v6', 'v6', 'v5'); a.I('v_add_f32', 'v7', 'v7', 'v5')
        a.I('v_lshlrev_b32', 'v4', 31, 'v4'); a.I('v_or_b32', 'v4', 1.0, 'v4')
        a.I('v_cmp_gt_u32', 'vcc', 16, 'v1')
        a.I('v_cndmask_b32', V(CT+16), V(CT+16), 'v4', 'vcc')
        for j in range(16): a.I('v_cvt_pk_bf16_f32', V(A2C+j), V(CT+2*j), V(CT+2*j+1))
    QR = 24
    VQ, VO = 44, 45
    srd_tail(a, 36, NBYTES); srd_tail(a, 40, 2*NBYTES)
    a.I('v_and_b32', 'v4', 3, 'v1')
    a.I('v_lshrrev_b32', 'v5', 3, 'v1')
    a.I('v_lshl_add_u32', 'v5', 'v4', 6, 'v5')
    a.I('v_lshl_add_u32', 'v5', 'v2', 3, 'v5')
    a.I('v_mul_u32_u24', 'v6', 1280, 'v5')
    a.I('v_and_b32', 'v7', 7, 'v1')
    a.I('v_mov_b32', V(46), '0x3ff00000')
    lens = sorted(set(len(q) for q in quads))
    assert len(lens) <= 2
    vq = {}
    for n, ln in enumerate(lens):
        a.I('v_cmp_gt_u32', 'vcc', ln, 'v7')
        rq, ro_ = [(VQ, VO), (0, 3)][n]
        a.I('v_cndmask_b32', V(rq), V(46), 'v6', 'vcc')
        a.I('v_lshlrev_b32', V(ro_), 1, V(rq))
        vq[ln] = (rq, ro_)
    a.I('s_lshl_b32', 's54', 's17', 4)
    def qload(qi):
        q = quads[qi]
        a.I('s_add_u32', S(56+qi), 's54', hex(q[0]*64*1280))
        a.I('buffer_load_dwordx4', V(QR+4*qi,4), V(vq[len(q)][0]), S(36,4), S(56+qi), mods=M('offen', LD_IN))
        a.I('s_add_u32', S(56+qi), 's54', hex(q[0]*64*2560 + 1280))
    a.I('v_mov_b32', 'v4', 0)
    a.I('v_lshl_add_u32', 'v5', 'v1', 2, 's22')
    a.I('ds_write_b32', 'v5', 'v4', mods=f'offset:{ub-256}')
    a.I('v_lshl_add_u32', 'v6', 'v7', 2, 's22')
    a.I('ds_write_b32', 'v6', 'v4')
    VH, VU, VYW, VYR = 4, 5, 6, 7
    a.I('v_lshrrev_b32', V(T0), 4, 'v1')
    a.I('v_bfe_u32', V(T0+1), 'v1', 2, 2)
    a.I('v_and_b32', V(T0+2), 3, 'v1')
    if P['a2']:
        VA2 = 56
        a.I('v_bfe_u32', V(T0+3), 'v1', 3, 2)
        a.I('v_lshlrev_b32', V(VA2), 10, V(T0))
        a.I('v_lshl_add_u32', V(VA2), V(T0+1), 7, V(VA2))
        a.I('v_lshl_add_u32', V(VA2), V(T0+2), 3, V(VA2))
        a.I('v_lshl_add_u32', V(VA2), V(T0+3), 5, V(VA2))
        for tau in range(1, 4): a.I('v_xor_b32', V(VA2+tau), 32*tau, V(VA2))
        VAO = 60
        a.I('v_and_b32', V(VAO), 15, 'v1')
        a.I('v_lshl_add_u32', V(VAO), 'v2', 4, V(VAO))
        a.I('v_mul_u32_u24', V(VAO), 16*2560, V(VAO))
        a.I('v_lshl_add_u32', V(VAO), V(T0), 4, V(VAO))
        a.I('s_mul_i32', 's47', 's45', 2560); a.I('s_lshl_b32', 's48', 's46', 7); a.I('s_add_u32', 's47', 's47', 's48')
    a.I('v_add_u32', V(VH), V(T0+1), V(T0+2))
    a.I('v_lshl_add_u32', V(VH), V(T0), 3, V(VH))
    a.I('s_add_u32', 's23', 's22', hb-24)
    a.I('v_lshl_add_u32', V(VH), V(VH), 3, 's23')
    a.I('v_lshlrev_b32', V(VU), 2, V(T0+2))
    a.I('v_sub_u32', V(VU), V(VU), V(T0+1))
    a.I('v_lshlrev_b32', V(T0+3), 3, V(T0))
    a.I('v_sub_u32', V(VU), V(VU), V(T0+3))
    a.I('s_add_u32', 's23', 's22', ub-8)
    a.I('v_lshl_add_u32', V(VU), V(VU), 3, 's23')
    a.I('s_mul_i32', 's23', 's3', YS)
    a.I('v_lshl_add_u32', V(VYW), 'v1', 3, 's23')
    a.I('v_and_b32', V(T0+3), 1, V(T0+2))
    a.I('v_lshl_add_u32', V(T0+3), V(T0+3), 2, V(T0+1))
    a.I('v_mul_u32_u24', V(VYR), YS, V(T0+3))
    a.I('v_lshrrev_b32', V(T0+3), 1, V(T0+2))
    a.I('v_lshl_add_u32', V(T0+3), V(T0), 1, V(T0+3))
    a.I('v_lshl_add_u32', V(T0+3), 'v2', 3, V(T0+3))
    a.I('v_lshl_add_u32', V(VYR), V(T0+3), 3, V(VYR))
    a.I('s_lshl_b32', 's14', 's14', 16)
    a.I('s_bitcmp1_b32', 's20', 0)
    a.I('s_cselect_b32', 's23', 0, 16)
    a.I('s_lshl_b32', 's15', 's15', 's23'); a.I('s_and_b32', 's15', 's15', '0xffff0000')
    a.I('v_mov_b32', V(T0), 's14'); a.I('v_add_f32', V(T0), 's15', V(T0))
    a.I('v_cvt_pk_bf16_f32', V(47), V(T0), V(T0))
    a.I('v_mov_b32', V(46), 's52')
    a.I('s_mov_b32', 's55', '0xffff0000')
    stamp(a)
    if P['a2']:
        AF, AD = 128, 192
        a.wait_tag('a2'); a.I('s_barrier')
        stamp(a)
        rd = [(lambda st=st, tau=tau, h=h: a.I(TR, V(AF+16*st+4*tau+2*h,2), V(VA2+tau), mods=f'offset:{K2_A+4096*st+512*h}'))
              for st in range(4) for tau in range(4) for h in range(2)]
        mm = [(lambda st=st, tau=tau: a.I(MF, V(AD+4*tau,4), V(AF+16*st+4*tau,4), V(A2C+4*st,4), 0 if st == 0 else V(AD+4*tau,4)))
              for st in range(4) for tau in range(4)]
        merge(a, rd[:12]); merge(a, rd[12:], mm[:10]); merge(a, mm[10:])
        for pr in range(2):
            for tb in range(2):
                d = AD+4*(2*pr+tb); o = A2C+4*pr+2*tb
                a.I('v_cvt_pk_bf16_f32', V(o), V(d), V(d+1)); a.I('v_cvt_pk_bf16_f32', V(o+1), V(d+2), V(d+3))
            a.I('buffer_store_dwordx4', V(A2C+4*pr,4), V(VAO), S(40,4), 's47', mods=M(f'offen offset:{64*pr}', ST_A))
    else: stamp(a)
    stamp(a)
    if STAMP: a.wait_tag('h0'); stamp(a)
    free = list(range(UF + 4*(jmax+1), 256, 4)) + list(range(HF + 4*(jmax//2+1), 128, 4))
    accs = [16, 20, 8, 12, 56, 60] + ([40] if p else []) + [f for f in free if f < 248]
    assert len(accs) >= len(tiles)
    FT = 248 if p == 0 else 32
    have = set(); patched = [False]
    def need_bytes(x, lo, hi):
        for kb in range(max(lo, 0)//1024, hi//1024 + 1): a.wait_tag(f'{x}{kb}')
    def loadH(s):
        if ('h', s) in have: return
        have.add(('h', s))
        need_bytes('h', 256*s-24, 256*s+255)
        if s == 0 and not patched[0]:
            a.I('ds_write_b16', V(46), V(47)); patched[0] = True
        for h in range(2): a.I(TR, V(HF+4*s+2*h,2), V(VH), mods=f'offset:{256*s+32*h}')
    def loadU(m):
        if ('u', m) in have: return
        have.add(('u', m))
        need_bytes('u', 128*m-224, 128*m+127)
        for h in range(2): a.I(TR, V(UF+4*m+2*h,2), V(VU), mods=f'offset:{128*m+32*(1-h)}')
    acc_of = {}; seq = []; gi_end = []; nxt = 0
    for g in P['groups']:
        for J in g: acc_of[J] = accs[nxt]; nxt += 1
        for s in range(max(g)//2+1):
            for J in g:
                if J - 2*s >= 0: seq.append((J, s))
        gi_end.append(len(seq))
    S2a, S1a, S2b, S1b = 48, 49, 50, 51
    YR = 52
    DP = 'row_mask:0xf bank_mask:0xf'
    def reduce_ops(gi):
        l = []
        for J in P['groups'][gi]:
            d = acc_of[J]
            s2, s1 = (S2a, S1a) if J & 1 else (S2b, S1b)
            ps2, ps1 = (S2b, S1b) if J & 1 else (S2a, S1a)
            hasprev = (J-1) in acc_of
            qi = next((k for k in gq[gi] if J in quads[k]), None)
            def lvl(dst, prev, cur_src, add, hasprev=hasprev):
                if hasprev:
                    l.append(lambda: a.I('v_add_f32_dpp', V(dst), V(prev), V(add), mods='wave_ror:1 ' + DP))
                    l.append(lambda: a.I('v_add_f32_dpp', V(dst), V(cur_src), V(add), mods='wave_shr:1 ' + DP))
                else:
                    l.append(lambda: a.I('v_add_f32_dpp', V(dst), V(cur_src), V(add), mods='wave_shr:1 ' + DP + ' bound_ctrl:0'))
            lvl(s2, acc_of[J-1]+3 if hasprev else None, d+3, d+2)
            lvl(s1, ps2, s2, d+1)
            if qi is not None:
                q = quads[qi]
                lvl(YR + q.index(J), ps1, s1, d)
                if J == q[-1]:
                    l.append(lambda: a.I('v_cvt_pk_bf16_f32', V(YR), V(YR), V(YR+1)))
                    if len(q) > 2: l.append(lambda: a.I('v_cvt_pk_bf16_f32', V(YR+1), V(YR+2), V(YR+3)))
                    l.append(lambda qi=qi: a.I('ds_write_b64', V(VYW), V(YR,2), mods=f'offset:{K2_Y+512*qi}'))
        l.append(lambda: a.barrier())
        return l
    def qprep_ops(qi):
        qr = QR+4*qi
        l = []
        l.append(lambda: a.I('v_mov_b32_dpp', V(qr), V(qr+2), mods='row_shr:4 row_mask:0xf bank_mask:0xa'))
        l.append(lambda: a.I('v_mov_b32_dpp', V(qr+1), V(qr+3), mods='row_shr:4 row_mask:0xf bank_mask:0xa'))
        l.append(lambda: a.I('v_and_b32', V(qr+3), 's55', V(qr+1)))
        l.append(lambda: a.I('v_lshlrev_b32', V(qr+2), 16, V(qr+1)))
        l.append(lambda: a.I('v_and_b32', V(qr+1), 's55', V(qr)))
        l.append(lambda: a.I('v_lshlrev_b32', V(qr), 16, V(qr)))
        return l
    def flush_ops(qi, tmp, prep=True):
        l = []
        q = quads[qi]; qr = QR+4*qi
        l.append(lambda: a.I(TR, V(tmp,2), V(VYR), mods=f'offset:{K2_Y+512*qi}'))
        if prep: l += qprep_ops(qi)
        l.append(lambda: a.I('v_lshlrev_b32', V(tmp+4), 16, V(tmp)))
        l.append(lambda: a.I('v_and_b32', V(tmp+5), 's55', V(tmp)))
        l.append(lambda: a.I('v_lshlrev_b32', V(tmp+6), 16, V(tmp+1)))
        l.append(lambda: a.I('v_and_b32', V(tmp+7), 's55', V(tmp+1)))
        for j in range(4): l.append(lambda j=j: a.I('v_mul_f32', V(tmp+4+j), V(tmp+4+j), V(qr+j)))
        l.append(lambda: a.I('v_cvt_pk_bf16_f32', V(qr), V(tmp+4), V(tmp+5)))
        l.append(lambda: a.I('v_cvt_pk_bf16_f32', V(qr+1), V(tmp+6), V(tmp+7)))
        l.append(lambda: a.I('v_mov_b32_dpp', V(qr+2), V(qr), mods='row_shl:4 ' + DP))
        l.append(lambda: a.I('v_mov_b32_dpp', V(qr+3), V(qr+1), mods='row_shl:4 ' + DP))
        l.append(lambda: a.I('buffer_store_dwordx4', V(qr,4), V(vq[len(q)][1]), S(40,4), S(56+qi), mods=M('offen', ST_O)))
        return l
    AHEAD = opt('ahead', 6)
    started = set()
    qpos = {}
    n = len(seq)
    if p == 0: pos = [0, 6, 24, 44, 66]
    else: pos = [n//4, n//2]
    for qi in range(nq): qpos.setdefault(pos[qi], []).append(qi)
    def mf_thunk(idx):
        def f():
            for k in range(idx, min(idx+AHEAD, len(seq))):
                J, s = seq[k]; loadH(s); loadU(J-2*s)
            for qi in qpos.get(idx, []): qload(qi)
            J, s = seq[idx]
            d = V(acc_of[J],4)
            a.I(MF, d, V(UF+4*(J-2*s),4), V(HF+4*s,4), d if J in started else 0)
            started.add(J)
        return f
    pend = []; lo = 0
    ng = len(P['groups'])
    for gi, g in enumerate(P['groups']):
        mfs = [mf_thunk(i) for i in range(lo, gi_end[gi])]; lo = gi_end[gi]
        if gi == ng-1:
            for qi in gq[gi]: pend = pend + qprep_ops(qi)
        if pend: merge(a, mfs[:2]); merge(a, mfs[2:], pend)
        else: merge(a, mfs)
        if gi == 0 or gi == ng-1: stamp(a)
        pend = reduce_ops(gi)
        for qi in gq[gi]: pend = pend + flush_ops(qi, FT, prep=(gi != ng-1))
    merge(a, pend)
    stamp(a)
    stamp_out(a, 1, 28)
    a.I('s_endpgm')

def main():
    a = Asm()
    hdr = open('concat_heads__spectral_fnet__ssm_conv_h3__prompt.s.ref').read().split('; Override')[0]
    a.raw(hdr.rstrip())
    for k in opt('seq', '12'):
        if k == '1': a.raw(f"; @launch kernel=k1_kernel grid=(256,1,1) block=(512,1,1) lds={K1_LDS}")
        if k == '2': a.raw(f"; @launch kernel=k2_kernel grid=(256,1,1) block=(512,1,1) lds={K2_LDS}")
        if k == '3': a.raw(f"; @launch kernel=k3_kernel grid=(256,1,1) block=(64,1,1) lds=0")
    a.raw('.amdgcn_target "amdgcn-amd-amdhsa--gfx950"\n.text')
    k1(a); k2(a)
    a.raw(".globl k3_kernel\n.p2align 8\n.type k3_kernel,@function\nk3_kernel:\n  s_endpgm")
    a.raw(".p2align 8\n.type TBL1,@object\nTBL1:")
    a.raw(T.as_asm(T.t1_d1()) + T.as_asm(T.t1_tw()) + T.as_asm(T.t1_d2()))
    a.raw(".size TBL1, .-TBL1")
    a.raw('.section .rodata,"a"')
    for k in ('k1_kernel', 'k2_kernel', 'k3_kernel'):
        a.raw(f""".p2align 6
.amdhsa_kernel {k}
  .amdhsa_next_free_vgpr 256
  .amdhsa_next_free_sgpr 96
  .amdhsa_accum_offset 256
  .amdhsa_group_segment_fixed_size 0
  .amdhsa_kernarg_size 112
  .amdhsa_user_sgpr_count 2
  .amdhsa_user_sgpr_kernarg_segment_ptr 1
  .amdhsa_system_sgpr_workgroup_id_x 1
.end_amdhsa_kernel""")
    open(sys.argv[1], 'w').write(a.text())
    print("instrs", a.nins, a.stats, "LDS", K1_LDS, K2_LDS)
main()
```

```python
import sys
from emit import Asm, V, S
import tables as T

OPT = dict(a.split('=') for a in sys.argv[2:])
def opt(k, d): return type(d)(OPT.get(k, d))
def flag(k, d):
    v = opt(k, d)
    return '' if v == 'p' else v.replace('_', ' ')

H_OFF = 0
U_OFF = 0x280000
NBYTES = 2048 * 640 * 2
WS_BYTES = U_OFF + NBYTES
ST_I = flag('st_i', 'sc1')
ST_O = flag('st_o', 'p')
ST_A = flag('st_a', 'p')
LD_IN = flag('ld_in', 'nt')
LD_I = flag('ld_i', 'p')
PF = opt('pf', 1)
def M(*xs): return ' '.join(x for x in xs if x)

def srd_tail(a, d, nbytes):
    a.I('s_mov_b32', S(d+2), hex(nbytes)); a.I('s_mov_b32', S(d+3), '0x20000')

def merge(a, *lists):
    lists = [l for l in lists if l]
    pos = [0]*len(lists)
    total = sum(len(l) for l in lists)
    for _ in range(total):
        k = min((i for i in range(len(lists)) if pos[i] < len(lists[i])), key=lambda i: (pos[i] + 0.5) / len(lists[i]))
        lists[k][pos[k]](); pos[k] += 1

STAMP = opt('stamp', 0)
class Stamps: n = 0
def stamp(a, first=False):
    if not STAMP: return
    if first: Stamps.n = 0
    a.I('s_memrealtime', S(66+2*Stamps.n, 2)); Stamps.n += 1
    assert Stamps.n <= 14
def stamp_out(a, kern, wsreg, dbg=None):
    if not STAMP: return
    a.waitcnt(vm=0)
    stamp(a)
    a.waitcnt(lg=0)
    if STAMP == 2:
        if dbg is None: return
        wg, slot, idxs = dbg
        lab = f'DBG_SKIP_{kern}_{slot}'
        a.I('s_cmp_lg_u32', 's2', wg); a.I('s_cbranch_scc1', lab)
        a.I('s_cmp_lg_u32', 's3', 0); a.I('s_cbranch_scc1', lab)
        a.I('s_load_dwordx2', S(94,2), S(0,2), 96)
        a.I('v_mov_b32', 'v0', 0)
        a.I('s_mov_b64', 'exec', 1)
        a.waitcnt(lg=0)
        for n, i in enumerate(idxs):
            a.I('v_mov_b32', 'v1', S(66+2*(i % Stamps.n)))
            a.I('global_store_dword', 'v0', 'v1', S(94,2), mods=f'offset:{4*(slot+n) + 512*(1-kern)}')
        a.label(lab)
        return
    a.I('s_lshl_b32', 's94', 's2', 3); a.I('s_add_u32', 's94', 's94', 's3'); a.I('s_lshl_b32', 's94', 's94', 6)
    a.I('s_add_u32', 's94', 's94', hex(0x1000000 + kern*0x40000))
    a.I('v_mov_b32', 'v0', 's94')
    a.I('s_mov_b64', 'exec', 1)
    for i in range(Stamps.n):
        a.I('v_mov_b32', 'v1', S(66+2*i))
        a.I('global_store_dword', 'v0', 'v1', S(wsreg,2), mods=f'offset:{4*i}')
    a.I('v_mov_b32', 'v1', Stamps.n)
    a.I('global_store_dword', 'v0', 'v1', S(wsreg,2), mods='offset:60')

MF = 'v_mfma_f32_16x16x32_bf16'
TR = 'ds_read_b64_tr_b16'
DUMMY = 252

K1_T = 0
K1_X = 17*1024
K1_R = K1_X + 40960
RS = 2568
K1_LDS = K1_R + 16*RS + 64

def k1(a):
    a.raw(".globl k1_kernel\n.p2align 8\n.type k1_kernel,@function\nk1_kernel:")
    a.reset_state()
    a.I('s_getpc_b64', S(4,2))
    a.I('s_load_dwordx2', S(20,2), S(0,2), 48)
    a.I('s_load_dwordx2', S(24,2), S(0,2), 56)
    a.I('s_load_dwordx2', S(36,2), S(0,2), 0)
    a.I('s_load_dwordx2', S(28,2), S(0,2), 64)
    a.I('s_load_dwordx2', S(40,2), S(0,2), 104)
    a.I('s_cmp_ge_u32', 's2', 256); a.I('s_cbranch_scc1', 'K1_END')
    stamp(a, True)
    a.I('v_lshlrev_b32', 'v3', 4, 'v0')
    a.I('global_load_dwordx4', V(DUMMY,4), 'v3', S(4,2), mods='nt', notrack=True)
    a.I('v_lshrrev_b32', 'v2', 6, 'v0')
    a.I('v_and_b32', 'v1', 63, 'v0')
    a.I('v_readfirstlane_b32', 's3', 'v2')
    a.I('s_and_b32', 's16', 's2', 7)
    a.I('s_cmp_lt_u32', 's2', 128); a.I('s_cbranch_scc1', 'K1_A')
    st = a.save()
    k1_b_issue(a)
    a.I('s_branch', 'K1_B2')
    stb = a.save(); nb = Stamps.n
    a.label('K1_A'); a.restore(st); Stamps.n = 1
    k1_a(a)
    a.label('K1_B2'); a.restore(stb); Stamps.n = nb
    k1_b_rest(a)
    a.label('K1_END')
    a.I('s_endpgm')

KR, VR, WR = 12, 34, 52
def k1_b_issue(a):
    a.I('s_cmp_ge_u32', 's3', 5); a.I('s_cbranch_scc1', 'K1_END')
    a.I('s_bfe_u32', 's17', 's2', hex(3 | (3 << 16)))
    a.I('s_lshl3_add_u32', 's16', 's16', 's17')
    a.I('s_bfe_u32', 's17', 's2', hex(6 | (1 << 16)))
    a.I('s_mul_i32', 's17', 's17', 5)
    a.I('s_add_u32', 's17', 's17', 's3')
    a.I('s_lshl_b32', 's17', 's17', 6)
    a.I('s_lshl_b32', 's16', 's16', 5)
    a.I('v_and_b32', 'v3', 15, 'v1')
    a.I('v_lshrrev_b32', 'v4', 4, 'v1')
    a.I('v_lshl_add_u32', 'v5', 'v3', 2, 's17')
    a.I('v_lshl_add_u32', 'v6', 'v4', 3, 's16')
    a.I('v_mul_u32_u24', 'v7', 1280, 'v6')
    a.I('v_lshl_add_u32', 'v7', 'v5', 1, 'v7')
    a.I('v_subrev_u32', 'v8', 3840, 'v7')
    a.I('s_movk_i32', 's18', 5120)
    srd_tail(a, 20, NBYTES); srd_tail(a, 24, NBYTES)
    for j in range(8):
        a.I('buffer_load_dwordx2', V(KR+6+2*j,2), 'v7', S(20,4), 's18' if j >= 4 else 0, mods=M(f'offen offset:{1280*(j%4)}', LD_IN))
    for j in range(3):
        a.I('buffer_load_dwordx2', V(KR+2*j,2), 'v8', S(20,4), 0, mods=M(f'offen offset:{1280*j}', LD_IN))
    a.I('v_lshlrev_b32', 'v9', 3, 'v5')
    srd_tail(a, 28, 640*8)
    a.I('buffer_load_dwordx4', V(WR,4), 'v9', S(28,4), 0, mods=M('offen', LD_IN))
    a.I('buffer_load_dwordx4', V(WR+4,4), 'v9', S(28,4), 0, mods=M('offen offset:16', LD_IN))
    for j in range(8):
        a.I('buffer_load_dwordx2', V(VR+2*j,2), 'v7', S(24,4), 's18' if j >= 4 else 0, mods=M(f'offen offset:{1280*(j%4)}', LD_IN))
    stamp(a)

def k1_b_rest(a):
    KU, WU, KS, TMP, O = 60, 104, 120, 152, 160
    a.I('v_lshlrev_b32', 'v10', 12, 'v5')
    a.I('v_lshl_add_u32', 'v10', 'v6', 1, 'v10')
    srd_tail(a, 40, WS_BYTES)
    for ch in range(4): a.I('s_mov_b32', S(44+ch), hex(U_OFF + 4096*ch))
    a.I('s_mov_b32', 's48', '0xffff0000')
    def unpack(dst_lo, dst_hi, src):
        a.I('v_lshlrev_b32', V(dst_lo), 16, V(src)); a.I('v_and_b32', V(dst_hi), 's48', V(src))
    def unk(j):
        unpack(KU+4*j, KU+4*j+1, KR+2*j); unpack(KU+4*j+2, KU+4*j+3, KR+2*j+1)
    for j in list(range(3, 11)) + [0, 1, 2]: unk(j)
    stamp(a)
    for ch in range(4):
        unpack(WU+0*4+ch, WU+1*4+ch, WR+2*ch)
        unpack(WU+2*4+ch, WU+3*4+ch, WR+2*ch+1)
    for j in range(8):
        for p in range(2):
            a.I('v_pk_mul_f32', V(KS+4*j+2*p, 2), V(KU+4*j+2*p,2), V(WU+3*4+2*p,2))
        for t in range(1, 4):
            for p in range(2):
                d = V(KS+4*j+2*p, 2)
                a.I('v_pk_fma_f32', d, V(KU+4*(j+t)+2*p,2), V(WU+(3-t)*4+2*p,2), d)
    stamp(a)
    for j in range(8):
        t = TMP + 4*(j & 1)
        unpack(t, t+1, VR+2*j); unpack(t+2, t+3, VR+2*j+1)
        for p in range(2):
            d = V(KS+4*j+2*p, 2)
            a.I('v_pk_mul_f32', d, d, V(t+2*p,2))
        if j & 1:
            for ch in range(4):
                a.I('v_cvt_pk_bf16_f32', V(O+4*ch+j//2), V(KS+4*(j-1)+ch), V(KS+4*j+ch))
    for ch in range(4):
        a.I('buffer_store_dwordx4', V(O+4*ch,4), 'v10', S(40,4), S(44+ch), mods=M('offen', ST_I))
    stamp(a)
    stamp_out(a, 0, 40, (128, 4, [0, 2, -2, -1]))
    a.I('s_endpgm')

def k1_a(a):
    a.I('s_mov_b32', 's50', 's16')
    a.I('s_lshr_b32', 's17', 's2', 4)
    a.I('s_lshl3_add_u32', 's16', 's17', 's16')
    a.I('s_sub_u32', 's18', 128, 's16')
    a.I('s_cmp_eq_u32', 's16', 0)
    a.I('s_cselect_b32', 's18', 64, 's18')
    a.I('s_and_b32', 's19', 's3', 3)
    a.I('s_lshr_b32', 's6', 's3', 2)
    a.I('v_lshrrev_b32', 'v4', 3, 'v1')
    a.I('v_and_b32', 'v5', 7, 'v1')
    a.I('v_and_b32', 'v6', 2, 'v4')
    a.I('s_and_b32', 's7', 's19', 1); a.I('s_lshl_b32', 's7', 's7', 2)
    a.I('v_xor_b32', 'v5', 'v5', 'v6')
    a.I('v_xor_b32', 'v5', 's7', 'v5')
    a.I('v_mul_u32_u24', 'v6', 128*1280, 'v4')
    a.I('v_lshl_add_u32', 'v6', 'v5', 4, 'v6')
    a.I('s_cmp_ge_u32', 's19', 2)
    a.I('s_cselect_b32', 's30', 's18', 's16')
    a.I('s_lshl_b32', 's31', 's7', 8)
    a.I('s_add_u32', 's30', 's30', 's31')
    a.I('s_lshl1_add_u32', 's30', 's30', 's6')
    a.I('s_mul_i32', 's30', 's30', 640)
    a.I('s_lshl1_add_u32', 's31', 's19', 's6')
    a.I('s_mul_i32', 's31', 's31', 5120)
    srd_tail(a, 36, NBYTES)
    for i in range(5):
        a.I('s_add_u32', 'm0', 's31', K1_X + i*(1024-128))
        a.I('buffer_load_dwordx4', 'v6', S(36,4), 's30', mods=M(f'offen offset:{128*i}', LD_IN, 'lds'), tag='x')
    a.I('s_add_u32', 's24', 's4', 'TBL1-k1_kernel-4'); a.I('s_addc_u32', 's25', 's5', 0)
    srd_tail(a, 24, 17*1024)
    a.I('v_lshlrev_b32', 'v3', 4, 'v1')
    a.I('s_lshl_b32', 's21', 's3', 10)
    a.I('s_add_u32', 'm0', 's21', K1_T)
    a.I('s_add_u32', 's22', 's21', 8192)
    a.I('buffer_load_dwordx4', 'v3', S(24,4), 's21', mods='offen nt lds', tag='tbl')
    a.I('s_add_u32', 'm0', 's22', K1_T)
    a.I('s_movk_i32', 's23', 16*1024)
    a.I('buffer_load_dwordx4', 'v3', S(24,4), 's22', mods='offen nt lds', tag='tbl')
    a.I('s_mov_b32', 'm0', K1_T + 16*1024)
    a.I('buffer_load_dwordx4', 'v3', S(24,4), 's23', mods='offen nt lds', tag='tbl')
    stamp(a)
    if PF:
        a.I('s_load_dwordx2', S(52,2), S(0,2), 72)
        a.I('s_load_dwordx2', S(56,2), S(0,2), 40)
        a.I('s_lshr_b32', 's51', 's2', 3); a.I('s_lshl3_add_u32', 's51', 's51', 's3')
        a.I('s_lshr_b32', 's60', 's50', 1); a.I('s_lshl1_add_u32', 's60', 's50', 's60')
        srd_tail(a, 52, NBYTES); srd_tail(a, 56, NBYTES)
        a.I('v_lshlrev_b32', 'v4', 6, 'v1')
        a.I('v_cmp_gt_u32', 'vcc', 48, 'v1')
        a.I('v_mov_b32', 'v5', '0x7ff00000')
        a.I('v_cndmask_b32', 'v4', 'v5', 'v4', 'vcc')
        a.I('s_lshl_b32', 's61', 's60', 17); a.I('s_mul_i32', 's62', 's51', 3072); a.I('s_add_u32', 's61', 's61', 's62')
        a.I('buffer_load_dword', V(DUMMY), 'v4', S(52,4), 's61', mods='offen nt', notrack=True)
        if PF >= 2:
            a.I('v_and_b32', 'v6', 15, 'v1'); a.I('v_mul_u32_u24', 'v6', 1280, 'v6')
            a.I('v_lshrrev_b32', 'v7', 4, 'v1'); a.I('v_lshl_add_u32', 'v6', 'v7', 6, 'v6')
            a.I('v_cndmask_b32', 'v6', 'v5', 'v6', 'vcc')
            a.I('s_mul_i32', 's61', 's51', 16*1280); a.I('s_lshl_b32', 's62', 's60', 6); a.I('s_add_u32', 's61', 's61', 's62')
            a.I('buffer_load_dword', V(DUMMY), 'v6', S(56,4), 's61', mods='offen nt', notrack=True)
        a.I('s_add_u32', 's52', 's4', 'k2_kernel-k1_kernel-4'); a.I('s_addc_u32', 's53', 's5', 0)
        a.I('s_mov_b32', 's54', 'K2_CODE_END-k2_kernel')
        a.I('s_lshl_b32', 's61', 's51', 12)
        a.I('v_lshlrev_b32', 'v4', 6, 'v1')
        a.I('buffer_load_dword', V(DUMMY), 'v4', S(52,4), 's61', mods='offen nt', notrack=True)
    a.I('s_bfe_u32', 's17', 's2', hex(3 | (1 << 16)))
    a.I('s_mul_i32', 's32', 's6', 5120)
    AL = 8
    TM = 16
    a.I('v_and_b32', 'v4', 15, 'v1')
    a.I('v_lshrrev_b32', 'v5', 4, 'v1')
    a.I('v_cmp_gt_u32', 'vcc', 2, 'v5')
    a.I('v_mov_b32', 'v6', 's18')
    a.I('v_mov_b32', 'v7', 's16')
    a.I('v_cndmask_b32', 'v6', 'v6', 'v7', 'vcc')
    a.I('v_and_b32', 'v7', 1, 'v5')
    a.I('v_lshl_add_u32', 'v6', 'v7', 10, 'v6')
    a.I('v_mul_u32_u24', 'v6', 'v6', 'v4')
    a.I('s_cmp_lg_u32', 's16', 0); a.I('s_cselect_b32', 's33', 's17', 0)
    a.I('s_mul_i32', 's34', 's33', 512); a.I('s_mul_i32', 's35', 's33', 1536)
    a.I('v_mov_b32', 'v7', 's35'); a.I('v_mov_b32', V(TM), 's34')
    a.I('v_cndmask_b32', 'v7', 'v7', V(TM), 'vcc')
    a.I('v_add_u32', 'v6', 'v6', 'v7')
    a.I('v_cvt_f32_u32', 'v6', 'v6')
    a.I('v_mul_f32', 'v6', '0x3a000000', 'v6')
    a.I('v_cvt_f32_u32', 'v7', 'v4')
    a.I('v_mul_f32', 'v7', '0x3d800000', 'v7')
    a.I('s_cmp_eq_u32', 's17', 0); a.I('s_cselect_b32', 's34', -1, 0); a.I('s_cselect_b32', 's35', 0, -1)
    a.I('s_cmp_lg_u32', 's16', 0); a.I('s_cselect_b32', 's34', -1, 's34'); a.I('s_cselect_b32', 's35', -1, 's35')
    a.I('v_mov_b32', V(TM), 's35'); a.I('v_mov_b32', V(TM+1), 's34')
    a.I('v_cndmask_b32', 'v2', V(TM), V(TM+1), 'vcc')
    for e in range(8):
        a.I('v_cos_f32', V(TM+e), 'v6')
        a.I('v_sin_f32', V(TM+8+e), '-v6')
        if e < 7: a.I('v_add_f32', 'v6', 'v6', 'v7')
    for h in range(2):
        for j in range(4):
            a.I('v_cvt_pk_bf16_f32', V(AL+4*h+j), V(TM+8*h+2*j), V(TM+8*h+2*j+1))
    for j in range(8):
        a.I('v_and_b32', V(AL+j), 'v2', V(AL+j))
    VA, VW, VD, VD2, VS = 4, 5, 6, 7, 2
    a.I('v_lshrrev_b32', V(TM), 4, 'v1')
    a.I('v_bfe_u32', V(TM+1), 'v1', 2, 2)
    a.I('v_and_b32', V(TM+2), 3, 'v1')
    a.I('v_and_b32', V(TM+3), 15, 'v1')
    a.I('v_bfe_u32', V(TM+4), 'v1', 3, 2)
    a.I('v_xor_b32', V(TM+4), 's19', V(TM+4))
    a.I('v_mul_u32_u24', V(VA), 10240, V(TM))
    a.I('v_lshl_add_u32', V(VA), V(TM+1), 7, V(VA))
    a.I('v_lshl_add_u32', V(VA), V(TM+4), 5, V(VA))
    a.I('v_lshl_add_u32', V(VA), V(TM+2), 3, V(VA))
    a.I('v_add_u32', V(VA), 's32', V(VA))
    a.I('v_mul_u32_u24', V(VW), RS, V(TM+3))
    a.I('v_lshl_add_u32', V(VW), V(TM), 3, V(VW))
    a.I('s_lshl_b32', 's33', 's19', 5); a.I('s_mul_i32', 's34', 's6', 640); a.I('s_add_u32', 's33', 's33', 's34')
    a.I('v_add_u32', V(VW), 's33', V(VW))
    a.I('v_lshrrev_b32', V(TM+5), 1, V(TM))
    a.I('v_mul_u32_u24', V(VD), 1280, V(TM+5))
    a.I('v_and_b32', V(TM+5), 1, V(TM))
    a.I('v_lshl_add_u32', V(TM+5), V(TM+5), 3, V(TM+1))
    a.I('v_mul_u32_u24', V(TM+5), 80, V(TM+5))
    a.I('v_add_u32', V(VD), V(VD), V(TM+5))
    a.I('s_mul_i32', 's33', 's3', 2*RS)
    a.I('v_add_u32', V(VD), 's33', V(VD))
    a.I('v_and_b32', V(TM+5), 1, V(TM+2))
    a.I('v_lshl_add_u32', V(VD2), V(TM+5), 3, V(VD))
    a.I('v_lshl_add_u32', V(VD), V(TM+2), 3, V(VD))
    a.I('v_lshrrev_b32', V(TM+5), 1, V(TM+3))
    a.I('v_lshlrev_b32', V(VS), 6, V(TM+5))
    a.I('v_and_b32', V(TM+5), 1, V(TM)); a.I('v_lshl_add_u32', V(VS), V(TM+5), 5, V(VS))
    a.I('v_and_b32', V(TM+5), 1, V(TM+3)); a.I('v_lshl_add_u32', V(VS), V(TM+5), 4, V(VS))
    a.I('v_lshrrev_b32', V(TM+5), 1, V(TM)); a.I('v_lshl_add_u32', V(VS), V(TM+5), 3, V(VS))
    VS2 = 1
    a.I('v_cmp_gt_u32', 'vcc', 8, V(TM+3))
    a.I('v_mov_b32', V(TM+5), '0x7ff00000')
    a.I('v_cndmask_b32', V(VS2), V(TM+5), V(VS), 'vcc')
    srd_tail(a, 40, WS_BYTES)
    a.I('s_lshl_b32', 's33', 's3', 8); a.I('s_lshl_b32', 's34', 's17', 6)
    a.I('s_add_u32', 's33', 's33', 's34'); a.I('s_add_u32', 's33', 's33', 's16')
    a.I('s_mul_i32', 's44', 's33', 1280); a.I('s_add_u32', 's45', 's44', 128*1280)
    assert H_OFF == 0
    D1B, TW, D2B = 48, 56, 80
    stamp(a)
    a.wait_tag('tbl'); stamp(a); a.I('s_barrier')
    stamp(a)
    AF, AD, PK = 116, 136, 176
    for i in range(5):
        for h in range(2):
            a.I(TR, V(AF+4*i+2*h,2), V(VA), mods=f'offset:{K1_X+1024*i+512*h}')
    tl = [(lambda i=i: a.I('ds_read_b128', V(D1B+4*i,4), 'v3', mods=f'offset:{K1_T+1024*i}')) for i in range(17)]
    def fin(i):
        for cp in range(2):
            d = AD+8*i+4*cp; p = PK+4*i+2*cp
            a.I('v_cvt_pk_bf16_f32', V(p), V(d), V(d+1)); a.I('v_cvt_pk_bf16_f32', V(p+1), V(d+2), V(d+3))
            a.I('ds_write_b64', V(VW), V(p,2), mods=f'offset:{K1_R+1280*cp+128*i}')
    for i in range(7):
        if i < 5:
            for cp in range(2):
                a.I(MF, V(AD+8*i+4*cp,4), V(AF+4*i,4), V(AL+4*cp,4), 0)
        if i == 4:
            for t in tl[:2]: t()
        if i >= 2: fin(i-2)
    a.barrier()
    stamp(a)
    DF, D1, WP, D2, OP, TT = 116, 140, 188, 212, 236, 16
    for r in range(2):
        for tau in range(3):
            for h in range(2):
                a.I(TR, V(DF+12*r+4*tau+2*h,2), V(VD2 if tau == 2 else VD), mods=f'offset:{K1_R+RS*r+320*h+32*tau}')
    def d1(r):
        return [(lambda tau=tau, cp=cp: a.I(MF, V(D1+24*r+8*tau+4*cp,4), V(DF+12*r+4*tau,4), V(D1B+4*cp,4), 0)) for tau in range(3) for cp in range(2)]
    def twd(r):
        l = []
        for tau in range(3):
            re = D1+24*r+8*tau; im = re+4; tc = TW+8*tau; ts = tc+4; t = TT+8*(tau & 1)+16*r
            for j in range(4): l.append(lambda j=j, re=re, tc=tc, t=t: a.I('v_mul_f32', V(t+j), V(re+j), V(tc+j)))
            for j in range(4): l.append(lambda j=j, im=im, tc=tc, t=t: a.I('v_mul_f32', V(t+4+j), V(im+j), V(tc+j)))
            for j in range(4): l.append(lambda j=j, im=im, ts=ts, t=t: a.I('v_fmac_f32', V(t+j), V(im+j), V(ts+j)))
            for j in range(4): l.append(lambda j=j, re=re, ts=ts, t=t: a.I('v_fma_f32', V(t+4+j), '-'+V(re+j), V(ts+j), V(t+4+j)))
            for j in range(4): l.append(lambda j=j, t=t, tau=tau: a.I('v_cvt_pk_bf16_f32', V(WP+12*r+4*tau+j), V(t+2*j), V(t+2*j+1)))
        return l
    def d2(r):
        return [(lambda tau=tau, jt=jt: a.I(MF, V(D2+12*r+4*jt,4), V(WP+12*r+4*tau,4), V(D2B+12*tau+4*jt,4), 0 if tau == 0 else V(D2+12*r+4*jt,4)))
                for tau in range(3) for jt in range(3)]
    def outp(r):
        l = []
        for jt in range(3):
            d = D2+12*r+4*jt; p = OP+6*r+2*jt
            l.append(lambda d=d, p=p: a.I('v_cvt_pk_bf16_f32', V(p), V(d), V(d+1)))
            l.append(lambda d=d, p=p: a.I('v_cvt_pk_bf16_f32', V(p+1), V(d+2), V(d+3)))
            l.append(lambda p=p, jt=jt: a.I('buffer_store_dwordx2', V(p,2), V(VS2 if jt == 2 else VS), S(40,4), S(44+r), mods=M(f'offen offset:{512*jt}', ST_I)))
        return l
    merge(a, d1(0) + d1(1), tl[2:])
    merge(a, twd(0))
    merge(a, d2(0), twd(1))
    merge(a, d2(1), outp(0))
    merge(a, outp(1))
    stamp(a)
    stamp_out(a, 0, 40, (0, 0, [0, 4, -2, -1]))
    a.I('s_endpgm')

CR = 8480
K2_A = 0
K2_Y = 16384
YS = 5*512 + 64
K2_C = K2_Y + 8*YS
K2_LDS = K2_C + 8*CR
PARTS = [
    dict(groups=[[0,1,2,3,4,5,6,7],[8,9,10,11],[12,13,14,15],[16,17]], first=0, a2=True),
    dict(groups=[[17,18,19,20,21],[22,23,24,25]], first=18, a2=True),
    dict(groups=[[25,26,27,28,29],[30,31]], first=26, a2=False),
]

def k2(a):
    a.raw(".globl k2_kernel\n.p2align 8\n.type k2_kernel,@function\nk2_kernel:")
    a.reset_state()
    a.I('s_load_dwordx2', S(28,2), S(0,2), 104)
    a.I('s_load_dwordx2', S(24,2), S(0,2), 72)
    a.I('s_load_dwordx2', S(10,2), S(0,2), 80)
    a.I('s_load_dwordx2', S(36,2), S(0,2), 40)
    a.I('s_load_dwordx2', S(40,2), S(0,2), 88)
    a.I('s_cmp_ge_u32', 's2', 256); a.I('s_cbranch_scc1', 'K2_END')
    stamp(a, True)
    if opt('scr', 0):
        a.I('s_lshr_b32', 's16', 's2', 5); a.I('s_lshl_b32', 's2', 's2', 3); a.I('s_and_b32', 's2', 's2', 255); a.I('s_or_b32', 's2', 's2', 's16')
    a.I('v_lshrrev_b32', 'v2', 6, 'v0')
    a.I('v_and_b32', 'v1', 63, 'v0')
    a.I('v_readfirstlane_b32', 's3', 'v2')
    a.I('s_and_b32', 's16', 's2', 7)
    a.I('s_lshr_b32', 's17', 's2', 5)
    a.I('s_and_b32', 's18', 's16', 1)
    a.I('s_add_u32', 's18', 's18', 's17')
    a.I('s_cmp_ge_u32', 's18', 8); a.I('s_cbranch_scc1', 'K2_END')
    a.I('s_mul_i32', 's16', 's16', 15); a.I('s_add_u32', 's16', 's16', 1); a.I('s_lshr_b32', 's16', 's16', 1)
    a.I('s_add_u32', 's16', 's16', 's17')
    a.I('s_mul_i32', 's17', 's16', 43); a.I('s_lshr_b32', 's17', 's17', 7)
    a.I('s_mul_i32', 's18', 's17', 3); a.I('s_sub_u32', 's18', 's16', 's18')
    a.I('s_bfe_u32', 's19', 's2', hex(3 | (2 << 16)))
    a.I('s_lshl2_add_u32', 's17', 's17', 's19')
    a.I('v_lshlrev_b32', 'v3', 4, 'v1')
    a.I('s_lshl3_add_u32', 's20', 's17', 's3')
    a.I('s_lshl_b32', 's21', 's20', 12)
    a.I('s_add_u32', 's12', 's21', hex(U_OFF))
    a.I('s_mul_i32', 's22', 's3', CR)
    a.I('s_add_u32', 's22', 's22', K2_C)
    srd_tail(a, 24, NBYTES); srd_tail(a, 28, WS_BYTES)
    a.I('s_cmp_eq_u32', 's18', 1); a.I('s_cbranch_scc1', 'K2_P1')
    a.I('s_cmp_eq_u32', 's18', 2); a.I('s_cbranch_scc1', 'K2_P2')
    st = a.save()
    for p in range(3):
        if p:
            a.raw(".p2align 6"); a.label(f'K2_P{p}')
            a.restore(st)
        Stamps.n = 1
        k2_part(a, p)
    a.label('K2_END')
    a.I('s_endpgm')
    a.label('K2_CODE_END')

def k2_part(a, p):
    P = PARTS[p]
    tiles = [t for g in P['groups'] for t in g]
    jmax = max(tiles)
    nkb = (64*(jmax+1)*2 + 1023)//1024
    quads = []; gq = []
    for g in P['groups']:
        v = [t for t in g if t >= P['first']]
        gq.append([])
        for i in range(0, len(v), 4):
            gq[-1].append(len(quads)); quads.append(v[i:i+4])
    nq = len(quads)
    A2C = 8
    if P['a2']:
        a.I('s_add_u32', 's44', 's17', 80*p)
        a.I('s_mul_i32', 's45', 's44', 205); a.I('s_lshr_b32', 's45', 's45', 11)
        a.I('s_mul_i32', 's46', 's45', 10); a.I('s_sub_u32', 's46', 's44', 's46')
        a.I('v_lshrrev_b32', 'v4', 3, 'v1'); a.I('v_and_b32', 'v5', 7, 'v1'); a.I('v_and_b32', 'v6', 2, 'v4')
        a.I('v_xor_b32', 'v5', 'v5', 'v6')
        a.I('v_mul_u32_u24', 'v6', 1280, 'v4')
        a.I('v_lshl_add_u32', 'v6', 'v5', 4, 'v6')
        a.I('v_xor_b32', 'v7', 64, 'v6')
        a.I('s_lshl3_add_u32', 's47', 's45', 's3')
        a.I('s_mul_i32', 's47', 's47', 16*1280); a.I('s_lshl_b32', 's48', 's46', 7); a.I('s_add_u32', 's47', 's47', 's48')
        a.I('s_add_u32', 's48', 's47', 8*1280)
        a.I('s_lshl_b32', 's49', 's3', 11)
        a.I('s_add_u32', 'm0', 's49', K2_A)
        a.I('buffer_load_dwordx4', 'v6', S(28,4), 's47', mods=M('offen', LD_I, 'lds'), tag='a2')
        a.I('s_add_u32', 'm0', 's49', K2_A + 1024)
        a.I('buffer_load_dwordx4', 'v7', S(28,4), 's48', mods=M('offen', LD_I, 'lds'), tag='a2')
    hb = 32; ub = 32 + 4096 + 256
    if p == 0: order = [('u',0),('h',0),('u',1),('u',2),('h',1),('h',2)]
    else:
        order = [('u', nkb-1), ('h', 0)] + [('u', nkb-1-i) for i in range(1, nkb)] + [('h', i) for i in range(1, nkb)]
    assert sorted(order) == sorted([(x, i) for x in 'hu' for i in range(nkb)])
    a.I('s_add_u32', 's52', 's22', hb); a.I('s_add_u32', 's53', 's22', ub)
    cur = None
    for (x, i) in order:
        if cur != x: a.I('s_mov_b32', 'm0', 's52' if x == 'h' else 's53'); cur = x
        if x == 'h': a.I('buffer_load_dwordx4', 'v3', S(24,4), 's21', mods=M(f'offen offset:{1024*i}', LD_IN, 'lds'), tag=f'{x}{i}')
        else: a.I('buffer_load_dwordx4', 'v3', S(28,4), 's12', mods=M(f'offen offset:{1024*i}', LD_I, 'lds'), tag=f'{x}{i}')
    stamp(a)
    a.I('s_load_dword', 's14', S(24,2), 's21')
    a.I('s_lshl_b32', 's23', 's20', 1); a.I('s_and_b32', 's23', 's23', -4)
    a.I('s_load_dword', 's15', S(10,2), 's23')
    T0 = 52
    HF, UF = 64, 128
    if P['a2']:
        CT = 64
        a.I('v_and_b32', 'v4', 15, 'v1'); a.I('v_lshl_add_u32', 'v4', 'v2', 4, 'v4')
        a.I('v_cvt_f32_u32', 'v5', 'v4'); a.I('v_mul_f32', 'v5', '0x3c000000', 'v5')
        a.I('v_lshrrev_b32', 'v6', 4, 'v1'); a.I('v_cvt_f32_u32', 'v6', 'v6')
        a.I('v_mul_f32', 'v6', 'v6', 'v5'); a.I('v_mul_f32', 'v6', '0x41000000', 'v6')
        a.I('v_mul_f32', 'v7', '0x42000000', 'v5'); a.I('v_add_f32', 'v7', 'v7', 'v6')
        for e in range(8):
            a.I('v_cos_f32', V(CT+e), 'v6'); a.I('v_cos_f32', V(CT+8+e), 'v7')
            a.I('v_sin_f32', V(CT+16+e), 'v6'); a.I('v_sin_f32', V(CT+24+e), 'v7')
            if e < 7: a.I('v_add_f32', 'v6', 'v6', 'v5'); a.I('v_add_f32', 'v7', 'v7', 'v5')
        a.I('v_lshlrev_b32', 'v4', 31, 'v4'); a.I('v_or_b32', 'v4', 1.0, 'v4')
        a.I('v_cmp_gt_u32', 'vcc', 16, 'v1')
        a.I('v_cndmask_b32', V(CT+16), V(CT+16), 'v4', 'vcc')
        for j in range(16): a.I('v_cvt_pk_bf16_f32', V(A2C+j), V(CT+2*j), V(CT+2*j+1))
    QR = 24
    VQ, VO = 44, 45
    srd_tail(a, 36, NBYTES); srd_tail(a, 40, 2*NBYTES)
    a.I('v_and_b32', 'v4', 3, 'v1')
    a.I('v_lshrrev_b32', 'v5', 3, 'v1')
    a.I('v_lshl_add_u32', 'v5', 'v4', 6, 'v5')
    a.I('v_lshl_add_u32', 'v5', 'v2', 3, 'v5')
    a.I('v_mul_u32_u24', 'v6', 1280, 'v5')
    a.I('v_and_b32', 'v7', 7, 'v1')
    a.I('v_mov_b32', V(46), '0x3ff00000')
    lens = sorted(set(len(q) for q in quads))
    assert len(lens) <= 2
    vq = {}
    for n, ln in enumerate(lens):
        a.I('v_cmp_gt_u32', 'vcc', ln, 'v7')
        rq, ro_ = [(VQ, VO), (0, 3)][n]
        a.I('v_cndmask_b32', V(rq), V(46), 'v6', 'vcc')
        a.I('v_lshlrev_b32', V(ro_), 1, V(rq))
        vq[ln] = (rq, ro_)
    a.I('s_lshl_b32', 's54', 's17', 4)
    def qload(qi):
        q = quads[qi]
        a.I('s_add_u32', S(56+qi), 's54', hex(q[0]*64*1280))
        a.I('buffer_load_dwordx4', V(QR+4*qi,4), V(vq[len(q)][0]), S(36,4), S(56+qi), mods=M('offen', LD_IN))
        a.I('s_add_u32', S(56+qi), 's54', hex(q[0]*64*2560 + 1280))
    a.I('v_mov_b32', 'v4', 0)
    a.I('v_lshl_add_u32', 'v5', 'v1', 2, 's22')
    a.I('ds_write_b32', 'v5', 'v4', mods=f'offset:{ub-256}')
    a.I('v_lshl_add_u32', 'v6', 'v7', 2, 's22')
    a.I('ds_write_b32', 'v6', 'v4')
    VH, VU, VYW, VYR = 4, 5, 6, 7
    a.I('v_lshrrev_b32', V(T0), 4, 'v1')
    a.I('v_bfe_u32', V(T0+1), 'v1', 2, 2)
    a.I('v_and_b32', V(T0+2), 3, 'v1')
    if P['a2']:
        VA2 = 56
        a.I('v_bfe_u32', V(T0+3), 'v1', 3, 2)
        a.I('v_lshlrev_b32', V(VA2), 10, V(T0))
        a.I('v_lshl_add_u32', V(VA2), V(T0+1), 7, V(VA2))
        a.I('v_lshl_add_u32', V(VA2), V(T0+2), 3, V(VA2))
        a.I('v_lshl_add_u32', V(VA2), V(T0+3), 5, V(VA2))
        for tau in range(1, 4): a.I('v_xor_b32', V(VA2+tau), 32*tau, V(VA2))
        VAO = 60
        a.I('v_and_b32', V(VAO), 15, 'v1')
        a.I('v_lshl_add_u32', V(VAO), 'v2', 4, V(VAO))
        a.I('v_mul_u32_u24', V(VAO), 16*2560, V(VAO))
        a.I('v_lshl_add_u32', V(VAO), V(T0), 4, V(VAO))
        a.I('s_mul_i32', 's47', 's45', 2560); a.I('s_lshl_b32', 's48', 's46', 7); a.I('s_add_u32', 's47', 's47', 's48')
    a.I('v_add_u32', V(VH), V(T0+1), V(T0+2))
    a.I('v_lshl_add_u32', V(VH), V(T0), 3, V(VH))
    a.I('s_add_u32', 's23', 's22', hb-24)
    a.I('v_lshl_add_u32', V(VH), V(VH), 3, 's23')
    a.I('v_lshlrev_b32', V(VU), 2, V(T0+2))
    a.I('v_sub_u32', V(VU), V(VU), V(T0+1))
    a.I('v_lshlrev_b32', V(T0+3), 3, V(T0))
    a.I('v_sub_u32', V(VU), V(VU), V(T0+3))
    a.I('s_add_u32', 's23', 's22', ub-8)
    a.I('v_lshl_add_u32', V(VU), V(VU), 3, 's23')
    a.I('s_mul_i32', 's23', 's3', YS)
    a.I('v_lshl_add_u32', V(VYW), 'v1', 3, 's23')
    a.I('v_and_b32', V(T0+3), 1, V(T0+2))
    a.I('v_lshl_add_u32', V(T0+3), V(T0+3), 2, V(T0+1))
    a.I('v_mul_u32_u24', V(VYR), YS, V(T0+3))
    a.I('v_lshrrev_b32', V(T0+3), 1, V(T0+2))
    a.I('v_lshl_add_u32', V(T0+3), V(T0), 1, V(T0+3))
    a.I('v_lshl_add_u32', V(T0+3), 'v2', 3, V(T0+3))
    a.I('v_lshl_add_u32', V(VYR), V(T0+3), 3, V(VYR))
    a.I('s_lshl_b32', 's14', 's14', 16)
    a.I('s_bitcmp1_b32', 's20', 0)
    a.I('s_cselect_b32', 's23', 0, 16)
    a.I('s_lshl_b32', 's15', 's15', 's23'); a.I('s_and_b32', 's15', 's15', '0xffff0000')
    a.I('v_mov_b32', V(T0), 's14'); a.I('v_add_f32', V(T0), 's15', V(T0))
    a.I('v_cvt_pk_bf16_f32', V(47), V(T0), V(T0))
    a.I('v_mov_b32', V(46), 's52')
    a.I('s_mov_b32', 's55', '0xffff0000')
    stamp(a)
    if P['a2']:
        AF, AD = 128, 192
        a.wait_tag('a2'); a.I('s_barrier')
        stamp(a)
        rd = [(lambda st=st, tau=tau, h=h: a.I(TR, V(AF+16*st+4*tau+2*h,2), V(VA2+tau), mods=f'offset:{K2_A+4096*st+512*h}'))
              for st in range(4) for tau in range(4) for h in range(2)]
        mm = [(lambda st=st, tau=tau: a.I(MF, V(AD+4*tau,4), V(AF+16*st+4*tau,4), V(A2C+4*st,4), 0 if st == 0 else V(AD+4*tau,4)))
              for st in range(4) for tau in range(4)]
        merge(a, rd[:12]); merge(a, rd[12:], mm[:10]); merge(a, mm[10:])
        for pr in range(2):
            for tb in range(2):
                d = AD+4*(2*pr+tb); o = A2C+4*pr+2*tb
                a.I('v_cvt_pk_bf16_f32', V(o), V(d), V(d+1)); a.I('v_cvt_pk_bf16_f32', V(o+1), V(d+2), V(d+3))
            a.I('buffer_store_dwordx4', V(A2C+4*pr,4), V(VAO), S(40,4), 's47', mods=M(f'offen offset:{64*pr}', ST_A))
    else: stamp(a)
    stamp(a)
    if STAMP: a.wait_tag('h0'); stamp(a)
    free = list(range(UF + 4*(jmax+1), 256, 4)) + list(range(HF + 4*(jmax//2+1), 128, 4))
    accs = [16, 20, 8, 12, 56, 60] + ([40] if p else []) + [f for f in free if f < 248]
    assert len(accs) >= len(tiles)
    FT = 248 if p == 0 else 32
    have = set(); patched = [False]
    def need_bytes(x, lo, hi):
        for kb in range(max(lo, 0)//1024, hi//1024 + 1): a.wait_tag(f'{x}{kb}')
    def loadH(s):
        if ('h', s) in have: return
        have.add(('h', s))
        need_bytes('h', 256*s-24, 256*s+255)
        if s == 0 and not patched[0]:
            a.I('ds_write_b16', V(46), V(47)); patched[0] = True
        for h in range(2): a.I(TR, V(HF+4*s+2*h,2), V(VH), mods=f'offset:{256*s+32*h}')
    def loadU(m):
        if ('u', m) in have: return
        have.add(('u', m))
        need_bytes('u', 128*m-224, 128*m+127)
        for h in range(2): a.I(TR, V(UF+4*m+2*h,2), V(VU), mods=f'offset:{128*m+32*(1-h)}')
    acc_of = {}; seq = []; gi_end = []; nxt = 0
    for g in P['groups']:
        for J in g: acc_of[J] = accs[nxt]; nxt += 1
        for s in range(max(g)//2+1):
            for J in g:
                if J - 2*s >= 0: seq.append((J, s))
        gi_end.append(len(seq))
    S2a, S1a, S2b, S1b = 48, 49, 50, 51
    YR = 52
    DP = 'row_mask:0xf bank_mask:0xf'
    def reduce_ops(gi):
        l = []
        for J in P['groups'][gi]:
            d = acc_of[J]
            s2, s1 = (S2a, S1a) if J & 1 else (S2b, S1b)
            ps2, ps1 = (S2b, S1b) if J & 1 else (S2a, S1a)
            hasprev = (J-1) in acc_of
            qi = next((k for k in gq[gi] if J in quads[k]), None)
            def lvl(dst, prev, cur_src, add, hasprev=hasprev):
                if hasprev:
                    l.append(lambda: a.I('v_add_f32_dpp', V(dst), V(prev), V(add), mods='wave_ror:1 ' + DP))
                    l.append(lambda: a.I('v_add_f32_dpp', V(dst), V(cur_src), V(add), mods='wave_shr:1 ' + DP))
                else:
                    l.append(lambda: a.I('v_add_f32_dpp', V(dst), V(cur_src), V(add), mods='wave_shr:1 ' + DP + ' bound_ctrl:0'))
            lvl(s2, acc_of[J-1]+3 if hasprev else None, d+3, d+2)
            lvl(s1, ps2, s2, d+1)
            if qi is not None:
                q = quads[qi]
                lvl(YR + q.index(J), ps1, s1, d)
                if J == q[-1]:
                    l.append(lambda: a.I('v_cvt_pk_bf16_f32', V(YR), V(YR), V(YR+1)))
                    if len(q) > 2: l.append(lambda: a.I('v_cvt_pk_bf16_f32', V(YR+1), V(YR+2), V(YR+3)))
                    l.append(lambda qi=qi: a.I('ds_write_b64', V(VYW), V(YR,2), mods=f'offset:{K2_Y+512*qi}'))
        l.append(lambda: a.barrier())
        return l
    def qprep_ops(qi):
        qr = QR+4*qi
        l = []
        l.append(lambda: a.I('v_mov_b32_dpp', V(qr), V(qr+2), mods='row_shr:4 row_mask:0xf bank_mask:0xa'))
        l.append(lambda: a.I('v_mov_b32_dpp', V(qr+1), V(qr+3), mods='row_shr:4 row_mask:0xf bank_mask:0xa'))
        l.append(lambda: a.I('v_and_b32', V(qr+3), 's55', V(qr+1)))
        l.append(lambda: a.I('v_lshlrev_b32', V(qr+2), 16, V(qr+1)))
        l.append(lambda: a.I('v_and_b32', V(qr+1), 's55', V(qr)))
        l.append(lambda: a.I('v_lshlrev_b32', V(qr), 16, V(qr)))
        return l
    def flush_ops(qi, tmp, prep=True):
        l = []
        q = quads[qi]; qr = QR+4*qi
        l.append(lambda: a.I(TR, V(tmp,2), V(VYR), mods=f'offset:{K2_Y+512*qi}'))
        if prep: l += qprep_ops(qi)
        l.append(lambda: a.I('v_lshlrev_b32', V(tmp+4), 16, V(tmp)))
        l.append(lambda: a.I('v_and_b32', V(tmp+5), 's55', V(tmp)))
        l.append(lambda: a.I('v_lshlrev_b32', V(tmp+6), 16, V(tmp+1)))
        l.append(lambda: a.I('v_and_b32', V(tmp+7), 's55', V(tmp+1)))
        for j in range(4): l.append(lambda j=j: a.I('v_mul_f32', V(tmp+4+j), V(tmp+4+j), V(qr+j)))
        l.append(lambda: a.I('v_cvt_pk_bf16_f32', V(qr), V(tmp+4), V(tmp+5)))
        l.append(lambda: a.I('v_cvt_pk_bf16_f32', V(qr+1), V(tmp+6), V(tmp+7)))
        l.append(lambda: a.I('v_mov_b32_dpp', V(qr+2), V(qr), mods='row_shl:4 ' + DP))
        l.append(lambda: a.I('v_mov_b32_dpp', V(qr+3), V(qr+1), mods='row_shl:4 ' + DP))
        l.append(lambda: a.I('buffer_store_dwordx4', V(qr,4), V(vq[len(q)][1]), S(40,4), S(56+qi), mods=M('offen', ST_O)))
        return l
    AHEAD = opt('ahead', 6)
    started = set()
    qpos = {}
    n = len(seq)
    if p == 0: pos = [0, 6, 24, 44, 66]
    else: pos = [n//4, n//2]
    for qi in range(nq): qpos.setdefault(pos[qi], []).append(qi)
    def mf_thunk(idx):
        def f():
            for k in range(idx, min(idx+AHEAD, len(seq))):
                J, s = seq[k]; loadH(s); loadU(J-2*s)
            for qi in qpos.get(idx, []): qload(qi)
            J, s = seq[idx]
            d = V(acc_of[J],4)
            a.I(MF, d, V(UF+4*(J-2*s),4), V(HF+4*s,4), d if J in started else 0)
            started.add(J)
        return f
    pend = []; lo = 0
    ng = len(P['groups'])
    for gi, g in enumerate(P['groups']):
        mfs = [mf_thunk(i) for i in range(lo, gi_end[gi])]; lo = gi_end[gi]
        if gi == ng-1:
            for qi in gq[gi]: pend = pend + qprep_ops(qi)
        if pend: merge(a, mfs[:2]); merge(a, mfs[2:], pend)
        else: merge(a, mfs)
        if gi == 0 or gi == ng-1: stamp(a)
        pend = reduce_ops(gi)
        for qi in gq[gi]: pend = pend + flush_ops(qi, FT, prep=(gi != ng-1))
    merge(a, pend)
    stamp(a)
    stamp_out(a, 1, 28, {0: (0, 8, [0, 3, -3, -1]), 1: None, 2: (64, 12, [0, 5, -3, -1])}[p])
    a.I('s_endpgm')

def main():
    a = Asm()
    hdr = open('concat_heads__spectral_fnet__ssm_conv_h3__prompt.s.ref').read().split('; Override')[0]
    a.raw(hdr.rstrip())
    for k in opt('seq', '12'):
        if k == '1': a.raw(f"; @launch kernel=k1_kernel grid=(256,1,1) block=(512,1,1) lds={K1_LDS}")
        if k == '2': a.raw(f"; @launch kernel=k2_kernel grid=(256,1,1) block=(512,1,1) lds={K2_LDS}")
        if k == '3': a.raw(f"; @launch kernel=k3_kernel grid=(256,1,1) block=(64,1,1) lds=0")
    a.raw('.amdgcn_target "amdgcn-amd-amdhsa--gfx950"\n.text')
    k1(a); k2(a)
    a.raw(".globl k3_kernel\n.p2align 8\n.type k3_kernel,@function\nk3_kernel:\n  s_endpgm")
    a.raw(".p2align 8\n.type TBL1,@object\nTBL1:")
    a.raw(T.as_asm(T.t1_d1()) + T.as_asm(T.t1_tw()) + T.as_asm(T.t1_d2()))
    a.raw(".size TBL1, .-TBL1")
    a.raw('.section .rodata,"a"')
    for k in ('k1_kernel', 'k2_kernel', 'k3_kernel'):
        a.raw(f""".p2align 6
.amdhsa_kernel {k}
  .amdhsa_next_free_vgpr 256
  .amdhsa_next_free_sgpr 96
  .amdhsa_accum_offset 256
  .amdhsa_group_segment_fixed_size 0
  .amdhsa_kernarg_size 112
  .amdhsa_user_sgpr_count 2
  .amdhsa_user_sgpr_kernarg_segment_ptr 1
  .amdhsa_system_sgpr_workgroup_id_x 1
.end_amdhsa_kernel""")
    open(sys.argv[1], 'w').write(a.text())
    print("instrs", a.nins, a.stats, "LDS", K1_LDS, K2_LDS)
main()
```

```python
import sys
from emit import Asm, V, S
import tables as T

OPT = dict(a.split('=') for a in sys.argv[2:])
def opt(k, d): return type(d)(OPT.get(k, d))

H_OFF = 0
U_OFF = 0x400000
NBYTES = 2048 * 640 * 2
ST_I = opt('st_i', 'sc1')
ST_O = opt('st_o', '')
ST_I = '' if ST_I == 'p' else ST_I
ST_O = '' if ST_O == 'p' else ST_O

def srd(a, d, base, nbytes, add=0):
    if add:
        a.I('s_add_u32', S(d), S(base), hex(add)); a.I('s_addc_u32', S(d+1), S(base+1), 0)
    elif d != base:
        a.I('s_mov_b32', S(d), S(base)); a.I('s_mov_b32', S(d+1), S(base+1))
    a.I('s_mov_b32', S(d+2), hex(nbytes)); a.I('s_mov_b32', S(d+3), '0x20000')

def merge(a, *lists):
    lists = [l for l in lists if l]
    pos = [0]*len(lists)
    total = sum(len(l) for l in lists)
    for _ in range(total):
        k = min((i for i in range(len(lists)) if pos[i] < len(lists[i])), key=lambda i: (pos[i] + 0.5) / len(lists[i]))
        lists[k][pos[k]](); pos[k] += 1

STAMP = opt('stamp', 0)
class Stamps:
    n = 0
def stamp(a, first=False):
    if not STAMP: return
    if first: Stamps.n = 0
    a.I('s_memrealtime', S(64+2*Stamps.n, 2)); Stamps.n += 1
    assert Stamps.n <= 14
def stamp_out(a, kern, n0=None):
    if not STAMP: return
    a.waitcnt(vm=0)
    stamp(a)
    a.waitcnt(lg=0)
    a.I('s_lshl_b32', 's94', 's2', 3); a.I('s_add_u32', 's94', 's94', 's3'); a.I('s_lshl_b32', 's94', 's94', 6)
    a.I('s_add_u32', 's94', 's94', hex(0x1000000 + kern*0x40000))
    a.I('v_mov_b32', 'v0', 's94')
    a.I('s_mov_b64', 'exec', 1)
    for i in range(Stamps.n):
        a.I('v_mov_b32', 'v1', S(64+2*i))
        a.I('global_store_dword', 'v0', 'v1', S(6,2), mods=f'offset:{4*i}')
    a.I('v_mov_b32', 'v1', Stamps.n)
    a.I('global_store_dword', 'v0', 'v1', S(6,2), mods='offset:60')

MF = 'v_mfma_f32_16x16x32_bf16'
TR = 'ds_read_b64_tr_b16'

K1_T = 0
K1_X = 17*1024
K1_R = K1_X + 40960
RS = 2568
K1_LDS = K1_R + 16*RS + 64

def k1(a):
    a.raw(".globl k1_kernel\n.p2align 8\n.type k1_kernel,@function\nk1_kernel:")
    a.reset_state()
    a.I('s_cmp_ge_u32', 's2', 256); a.I('s_cbranch_scc1', 'K1_END')
    stamp(a, True)
    a.I('s_load_dwordx2', S(4,2), S(0,2), 0)
    a.I('s_load_dwordx4', S(8,4), S(0,2), 48)
    a.I('s_load_dwordx4', S(12,4), S(0,2), 64)
    a.I('s_load_dwordx2', S(6,2), S(0,2), 104)
    a.I('v_lshrrev_b32', 'v2', 6, 'v0')
    a.I('v_and_b32', 'v1', 63, 'v0')
    a.I('v_readfirstlane_b32', 's3', 'v2')
    a.I('s_cmp_ge_u32', 's2', 128); a.I('s_cbranch_scc1', 'K1_B')
    st = (list(a.hist), list(a.vm), list(a.lg))
    k1_a(a)
    a.label('K1_B')
    a.hist, a.vm, a.lg = st
    Stamps.n = 1
    k1_b(a)
    a.label('K1_END')
    a.I('s_endpgm')

def k1_b(a):
    a.I('s_cmp_ge_u32', 's3', 5); a.I('s_cbranch_scc1', 'K1_END')
    a.I('s_and_b32', 's16', 's2', 7)
    a.I('s_bfe_u32', 's17', 's2', hex(3 | (3 << 16)))
    a.I('s_lshl_b32', 's16', 's16', 3)
    a.I('s_add_u32', 's16', 's16', 's17')
    a.I('s_bfe_u32', 's17', 's2', hex(6 | (1 << 16)))
    a.I('s_mul_i32', 's17', 's17', 320)
    a.I('s_lshl_b32', 's18', 's3', 6)
    a.I('s_add_u32', 's17', 's17', 's18')
    a.I('s_lshl_b32', 's16', 's16', 5)
    a.I('v_and_b32', 'v3', 15, 'v1')
    a.I('v_lshrrev_b32', 'v4', 4, 'v1')
    a.I('v_lshl_add_u32', 'v5', 'v3', 2, 's17')
    a.I('v_lshl_add_u32', 'v6', 'v4', 3, 's16')
    a.I('v_mul_u32_u24', 'v7', 1280, 'v6')
    a.I('v_lshl_add_u32', 'v7', 'v5', 1, 'v7')
    a.I('v_subrev_u32', 'v8', 3840, 'v7')
    a.I('v_lshlrev_b32', 'v9', 3, 'v5')
    a.I('s_mov_b32', 's36', 5120)
    srd(a, 20, 8, NBYTES); srd(a, 24, 10, NBYTES); srd(a, 28, 12, 640*8)
    KR, VR, WR = 12, 34, 52
    KU, WU, KS, TMP, O = 60, 104, 120, 152, 160
    a.I('buffer_load_dwordx4', V(WR,4), 'v9', S(28,4), 0, mods='offen')
    a.I('buffer_load_dwordx4', V(WR+4,4), 'v9', S(28,4), 0, mods='offen offset:16')
    for j in range(3):
        a.I('buffer_load_dwordx2', V(KR+2*j,2), 'v8', S(20,4), 0, mods=f'offen offset:{1280*j}')
    for j in range(8):
        a.I('buffer_load_dwordx2', V(KR+6+2*j,2), 'v7', S(20,4), 's36' if j >= 4 else 0, mods=f'offen offset:{1280*(j%4)}')
    for j in range(8):
        a.I('buffer_load_dwordx2', V(VR+2*j,2), 'v7', S(24,4), 's36' if j >= 4 else 0, mods=f'offen offset:{1280*(j%4)}')
    stamp(a)
    a.I('v_lshlrev_b32', 'v10', 12, 'v5')
    a.I('v_lshl_add_u32', 'v10', 'v6', 1, 'v10')
    srd(a, 32, 6, NBYTES, add=U_OFF)
    a.I('s_mov_b32', 's37', 4096); a.I('s_mov_b32', 's38', 8192); a.I('s_mov_b32', 's39', 12288)
    a.I('s_mov_b32', 's40', '0xffff0000')
    def unpack(dst_lo, dst_hi, src):
        a.I('v_lshlrev_b32', V(dst_lo), 16, V(src)); a.I('v_and_b32', V(dst_hi), 's40', V(src))
    for ch in range(4):
        unpack(WU+0*4+ch, WU+1*4+ch, WR+2*ch)
        unpack(WU+2*4+ch, WU+3*4+ch, WR+2*ch+1)
    def unk(j):
        unpack(KU+4*j, KU+4*j+1, KR+2*j); unpack(KU+4*j+2, KU+4*j+3, KR+2*j+1)
    stamp(a)
    for j in range(3): unk(j)
    for j in range(8):
        unk(j+3)
        for p in range(2):
            d = V(KS+4*j+2*p, 2)
            a.I('v_pk_mul_f32', d, V(KU+4*j+2*p,2), V(WU+3*4+2*p,2))
        for t in range(1, 4):
            for p in range(2):
                d = V(KS+4*j+2*p, 2)
                a.I('v_pk_fma_f32', d, V(KU+4*(j+t)+2*p,2), V(WU+(3-t)*4+2*p,2), d)
    stamp(a)
    for j in range(8):
        t = TMP + 4*(j & 1)
        unpack(t, t+1, VR+2*j); unpack(t+2, t+3, VR+2*j+1)
        for p in range(2):
            d = V(KS+4*j+2*p, 2)
            a.I('v_pk_mul_f32', d, d, V(t+2*p,2))
        if j & 1:
            for ch in range(4):
                a.I('v_cvt_pk_bf16_f32', V(O+4*ch+j//2), V(KS+4*(j-1)+ch), V(KS+4*j+ch))
    for ch in range(4):
        a.I('buffer_store_dwordx4', V(O+4*ch,4), 'v10', S(32,4), ['0','s37','s38','s39'][ch], mods=('offen ' + ST_I).strip())
    stamp(a)
    stamp_out(a, 0)
    a.I('s_endpgm')

def k1_a(a):
    a.I('s_and_b32', 's16', 's2', 7)
    a.I('s_lshr_b32', 's17', 's2', 4)
    a.I('s_lshl_b32', 's17', 's17', 3)
    a.I('s_or_b32', 's16', 's16', 's17')
    a.I('s_bfe_u32', 's17', 's2', hex(3 | (1 << 16)))
    a.I('s_sub_u32', 's18', 128, 's16')
    a.I('s_cmp_eq_u32', 's16', 0)
    a.I('s_cselect_b32', 's18', 64, 's18')
    a.I('s_and_b32', 's19', 's3', 3)
    a.I('s_lshr_b32', 's20', 's3', 2)
    a.I('s_getpc_b64', S(24,2))
    a.label('K1_PC')
    a.I('s_add_u32', 's24', 's24', 'TBL1-K1_PC'); a.I('s_addc_u32', 's25', 's25', 0)
    a.I('s_mov_b32', 's26', 17*1024); a.I('s_mov_b32', 's27', '0x20000')
    a.I('v_lshlrev_b32', 'v3', 4, 'v1')
    a.I('s_lshl_b32', 's21', 's3', 10)
    a.I('s_add_u32', 'm0', 's21', K1_T)
    a.I('s_add_u32', 's22', 's21', 8192)
    a.I('buffer_load_dwordx4', 'v3', S(24,4), 's21', mods='offen lds', tag='tbl')
    a.I('s_add_u32', 'm0', 's22', K1_T)
    a.I('s_add_u32', 's23', 's22', 8192)
    a.I('buffer_load_dwordx4', 'v3', S(24,4), 's22', mods='offen lds', tag='tbl')
    a.I('s_mov_b32', 'm0', K1_T + 16*1024)
    a.I('s_mov_b32', 's23', 16*1024)
    a.I('buffer_load_dwordx4', 'v3', S(24,4), 's23', mods='offen lds', tag='tbl')
    a.I('v_lshrrev_b32', 'v4', 3, 'v1')
    a.I('v_and_b32', 'v5', 7, 'v1')
    a.I('v_and_b32', 'v6', 2, 'v4')
    a.I('s_and_b32', 's28', 's19', 1); a.I('s_lshl_b32', 's28', 's28', 2)
    a.I('v_xor_b32', 'v5', 'v5', 'v6')
    a.I('v_xor_b32', 'v5', 's28', 'v5')
    a.I('s_mov_b32', 's29', 128*1280)
    a.I('v_mul_lo_u32', 'v6', 'v4', 's29')
    a.I('v_lshl_add_u32', 'v6', 'v5', 4, 'v6')
    a.I('s_cmp_ge_u32', 's19', 2)
    a.I('s_cselect_b32', 's30', 's18', 's16')
    a.I('s_lshl_b32', 's31', 's28', 8)
    a.I('s_add_u32', 's30', 's30', 's31')
    a.I('s_mul_i32', 's30', 's30', 1280)
    a.I('s_mul_i32', 's31', 's20', 640)
    a.I('s_add_u32', 's30', 's30', 's31')
    a.I('s_mul_i32', 's31', 's19', 10240)
    a.I('s_mul_i32', 's32', 's20', 5120)
    a.I('s_add_u32', 's31', 's31', 's32')
    srd(a, 36, 4, NBYTES)
    for i in range(5):
        a.I('s_add_u32', 'm0', 's31', K1_X + i*(1024-128))
        a.I('buffer_load_dwordx4', 'v6', S(36,4), 's30', mods=f'offen offset:{128*i} lds', tag='x')
    stamp(a)
    AL = 8
    TM = 16
    a.I('v_and_b32', 'v4', 15, 'v1')
    a.I('v_lshrrev_b32', 'v5', 4, 'v1')
    a.I('v_cmp_gt_u32', 'vcc', 2, 'v5')
    a.I('v_mov_b32', 'v6', 's18')
    a.I('v_mov_b32', 'v7', 's16')
    a.I('v_cndmask_b32', 'v6', 'v6', 'v7', 'vcc')
    a.I('v_and_b32', 'v7', 1, 'v5')
    a.I('v_lshl_add_u32', 'v6', 'v7', 10, 'v6')
    a.I('v_mul_u32_u24', 'v6', 'v6', 'v4')
    a.I('s_cmp_lg_u32', 's16', 0); a.I('s_cselect_b32', 's33', 's17', 0)
    a.I('s_mul_i32', 's34', 's33', 512); a.I('s_mul_i32', 's35', 's33', 1536)
    a.I('v_mov_b32', 'v7', 's35'); a.I('v_mov_b32', V(TM), 's34')
    a.I('v_cndmask_b32', 'v7', 'v7', V(TM), 'vcc')
    a.I('v_add_u32', 'v6', 'v6', 'v7')
    a.I('v_cvt_f32_u32', 'v6', 'v6')
    a.I('v_mul_f32', 'v6', '0x3a000000', 'v6')
    a.I('v_cvt_f32_u32', 'v7', 'v4')
    a.I('v_mul_f32', 'v7', '0x3d800000', 'v7')
    a.I('s_cmp_eq_u32', 's17', 0); a.I('s_cselect_b32', 's34', -1, 0); a.I('s_cselect_b32', 's35', 0, -1)
    a.I('s_cmp_lg_u32', 's16', 0); a.I('s_cselect_b32', 's34', -1, 's34'); a.I('s_cselect_b32', 's35', -1, 's35')
    a.I('v_mov_b32', V(TM), 's35'); a.I('v_mov_b32', V(TM+1), 's34')
    a.I('v_cndmask_b32', 'v2', V(TM), V(TM+1), 'vcc')
    for e in range(8):
        a.I('v_cos_f32', V(TM+e), 'v6')
        a.I('v_sin_f32', V(TM+8+e), '-v6')
        if e < 7: a.I('v_add_f32', 'v6', 'v6', 'v7')
    for h in range(2):
        for j in range(4):
            a.I('v_cvt_pk_bf16_f32', V(AL+4*h+j), V(TM+8*h+2*j), V(TM+8*h+2*j+1))
    for j in range(8):
        a.I('v_and_b32', V(AL+j), 'v2', V(AL+j))
    VA, VW, VD, VD2, VS = 4, 5, 6, 7, 2
    a.I('v_lshrrev_b32', V(TM), 4, 'v1')
    a.I('v_bfe_u32', V(TM+1), 'v1', 2, 2)
    a.I('v_and_b32', V(TM+2), 3, 'v1')
    a.I('v_and_b32', V(TM+3), 15, 'v1')
    a.I('v_bfe_u32', V(TM+4), 'v1', 3, 2)
    a.I('v_xor_b32', V(TM+4), 's19', V(TM+4))
    a.I('v_mul_u32_u24', V(VA), 10240, V(TM))
    a.I('v_lshl_add_u32', V(VA), V(TM+1), 7, V(VA))
    a.I('v_lshl_add_u32', V(VA), V(TM+4), 5, V(VA))
    a.I('v_lshl_add_u32', V(VA), V(TM+2), 3, V(VA))
    a.I('v_add_u32', V(VA), 's32', V(VA))
    a.I('v_mul_u32_u24', V(VW), RS, V(TM+3))
    a.I('v_lshl_add_u32', V(VW), V(TM), 3, V(VW))
    a.I('s_lshl_b32', 's33', 's19', 5); a.I('s_mul_i32', 's34', 's20', 640); a.I('s_add_u32', 's33', 's33', 's34')
    a.I('v_add_u32', V(VW), 's33', V(VW))
    a.I('v_lshrrev_b32', V(TM+5), 1, V(TM))
    a.I('v_mul_u32_u24', V(VD), 1280, V(TM+5))
    a.I('v_and_b32', V(TM+5), 1, V(TM))
    a.I('v_lshl_add_u32', V(TM+5), V(TM+5), 3, V(TM+1))
    a.I('v_mul_u32_u24', V(TM+5), 80, V(TM+5))
    a.I('v_add_u32', V(VD), V(VD), V(TM+5))
    a.I('s_mul_i32', 's33', 's3', 2*RS)
    a.I('v_add_u32', V(VD), 's33', V(VD))
    a.I('v_and_b32', V(TM+5), 1, V(TM+2))
    a.I('v_lshl_add_u32', V(VD2), V(TM+5), 3, V(VD))
    a.I('v_lshl_add_u32', V(VD), V(TM+2), 3, V(VD))
    a.I('v_lshrrev_b32', V(TM+5), 1, V(TM+3))
    a.I('v_lshlrev_b32', V(VS), 6, V(TM+5))
    a.I('v_and_b32', V(TM+5), 1, V(TM)); a.I('v_lshl_add_u32', V(VS), V(TM+5), 5, V(VS))
    a.I('v_and_b32', V(TM+5), 1, V(TM+3)); a.I('v_lshl_add_u32', V(VS), V(TM+5), 4, V(VS))
    a.I('v_lshrrev_b32', V(TM+5), 1, V(TM)); a.I('v_lshl_add_u32', V(VS), V(TM+5), 3, V(VS))
    VS2 = 1
    a.I('v_cmp_gt_u32', 'vcc', 8, V(TM+3))
    a.I('v_mov_b32', V(TM+5), '0x7ff00000')
    a.I('v_cndmask_b32', V(VS2), V(TM+5), V(VS), 'vcc')
    srd(a, 40, 6, NBYTES, add=H_OFF)
    a.I('s_lshl_b32', 's33', 's3', 8); a.I('s_lshl_b32', 's34', 's17', 6)
    a.I('s_add_u32', 's33', 's33', 's34'); a.I('s_add_u32', 's33', 's33', 's16')
    a.I('s_mul_i32', 's44', 's33', 1280); a.I('s_add_u32', 's45', 's44', 128*1280)
    D1B, TW, D2B = 48, 56, 80
    stamp(a)
    a.wait_tag('tbl'); a.I('s_barrier')
    stamp(a)
    for i in range(17):
        a.I('ds_read_b128', V(D1B+4*i,4), 'v3', mods=f'offset:{K1_T+1024*i}')
    a.wait_tag('x'); stamp(a); a.I('s_barrier')
    stamp(a)
    AF, AD, PK = 116, 136, 176
    for i in range(5):
        for h in range(2):
            a.I(TR, V(AF+4*i+2*h,2), V(VA), mods=f'offset:{K1_X+1024*i+512*h}')
    def fin(i):
        for cp in range(2):
            d = AD+8*i+4*cp; p = PK+4*i+2*cp
            a.I('v_cvt_pk_bf16_f32', V(p), V(d), V(d+1)); a.I('v_cvt_pk_bf16_f32', V(p+1), V(d+2), V(d+3))
            a.I('ds_write_b64', V(VW), V(p,2), mods=f'offset:{K1_R+1280*cp+128*i}')
    for i in range(7):
        if i < 5:
            for cp in range(2):
                a.I(MF, V(AD+8*i+4*cp,4), V(AF+4*i,4), V(AL+4*cp,4), 0)
        if i >= 2: fin(i-2)
    a.barrier()
    stamp(a)
    DF, D1, WP, D2, OP, TT = 116, 140, 188, 212, 236, 16
    for r in range(2):
        for tau in range(3):
            for h in range(2):
                a.I(TR, V(DF+12*r+4*tau+2*h,2), V(VD2 if tau == 2 else VD), mods=f'offset:{K1_R+RS*r+320*h+32*tau}')
    def d1(r):
        return [(lambda tau=tau, cp=cp: a.I(MF, V(D1+24*r+8*tau+4*cp,4), V(DF+12*r+4*tau,4), V(D1B+4*cp,4), 0)) for tau in range(3) for cp in range(2)]
    def twd(r):
        l = []
        for tau in range(3):
            re = D1+24*r+8*tau; im = re+4; tc = TW+8*tau; ts = tc+4; t = TT+8*(tau & 1)+16*r
            for j in range(4): l.append(lambda j=j, re=re, tc=tc, t=t: a.I('v_mul_f32', V(t+j), V(re+j), V(tc+j)))
            for j in range(4): l.append(lambda j=j, im=im, tc=tc, t=t: a.I('v_mul_f32', V(t+4+j), V(im+j), V(tc+j)))
            for j in range(4): l.append(lambda j=j, im=im, ts=ts, t=t: a.I('v_fmac_f32', V(t+j), V(im+j), V(ts+j)))
            for j in range(4): l.append(lambda j=j, re=re, ts=ts, t=t: a.I('v_fma_f32', V(t+4+j), '-'+V(re+j), V(ts+j), V(t+4+j)))
            for j in range(4): l.append(lambda j=j, t=t, tau=tau: a.I('v_cvt_pk_bf16_f32', V(WP+12*r+4*tau+j), V(t+2*j), V(t+2*j+1)))
        return l
    def d2(r):
        return [(lambda tau=tau, jt=jt: a.I(MF, V(D2+12*r+4*jt,4), V(WP+12*r+4*tau,4), V(D2B+12*tau+4*jt,4), 0 if tau == 0 else V(D2+12*r+4*jt,4)))
                for tau in range(3) for jt in range(3)]
    def outp(r):
        l = []
        for jt in range(3):
            d = D2+12*r+4*jt; p = OP+6*r+2*jt
            l.append(lambda d=d, p=p: a.I('v_cvt_pk_bf16_f32', V(p), V(d), V(d+1)))
            l.append(lambda d=d, p=p: a.I('v_cvt_pk_bf16_f32', V(p+1), V(d+2), V(d+3)))
            l.append(lambda p=p, jt=jt: a.I('buffer_store_dwordx2', V(p,2), V(VS2 if jt == 2 else VS), S(40,4), S(44+r), mods=(f'offen offset:{512*jt} ' + ST_I).strip()))
        return l
    merge(a, d1(0)); merge(a, d1(1))
    merge(a, twd(0))
    merge(a, d2(0), twd(1))
    merge(a, d2(1))
    merge(a, outp(0)); merge(a, outp(1))
    stamp(a)
    stamp_out(a, 0)
    a.I('s_endpgm')

CR = 8480
K2_A = 0
K2_Y = 16384
YS = 5*512 + 64
K2_C = K2_Y + 8*YS
K2_LDS = K2_C + 8*CR
PARTS = [
    dict(groups=[[0,1,2,3],[4,5,6,7],[8,9,10,11],[12,13,14,15],[16,17]], first=0, a2=True),
    dict(groups=[[17,18,19,20,21],[22,23,24,25]], first=18, a2=True),
    dict(groups=[[25,26,27,28,29],[30,31]], first=26, a2=False),
]

def k2(a):
    a.raw(".globl k2_kernel\n.p2align 8\n.type k2_kernel,@function\nk2_kernel:")
    a.reset_state()
    a.I('s_cmp_ge_u32', 's2', 256); a.I('s_cbranch_scc1', 'K2_END')
    stamp(a, True)
    a.I('s_load_dwordx2', S(4,2), S(0,2), 40)
    a.I('s_load_dwordx4', S(8,4), S(0,2), 72)
    a.I('s_load_dwordx2', S(12,2), S(0,2), 88)
    a.I('s_load_dwordx2', S(6,2), S(0,2), 104)
    a.I('v_lshrrev_b32', 'v2', 6, 'v0')
    a.I('v_and_b32', 'v1', 63, 'v0')
    a.I('v_readfirstlane_b32', 's3', 'v2')
    a.I('s_and_b32', 's16', 's2', 7)
    a.I('s_lshr_b32', 's17', 's2', 5)
    a.I('s_and_b32', 's18', 's16', 1)
    a.I('s_add_u32', 's18', 's18', 's17')
    a.I('s_cmp_ge_u32', 's18', 8); a.I('s_cbranch_scc1', 'K2_END')
    a.I('s_mul_i32', 's16', 's16', 15); a.I('s_add_u32', 's16', 's16', 1); a.I('s_lshr_b32', 's16', 's16', 1)
    a.I('s_add_u32', 's16', 's16', 's17')
    a.I('s_mul_i32', 's17', 's16', 43); a.I('s_lshr_b32', 's17', 's17', 7)
    a.I('s_mul_i32', 's18', 's17', 3); a.I('s_sub_u32', 's18', 's16', 's18')
    a.I('s_bfe_u32', 's19', 's2', hex(3 | (2 << 16)))
    a.I('s_lshl_b32', 's17', 's17', 2); a.I('s_add_u32', 's17', 's17', 's19')
    a.I('v_lshlrev_b32', 'v3', 4, 'v1')
    a.I('s_lshl_b32', 's20', 's17', 3); a.I('s_add_u32', 's20', 's20', 's3')
    a.I('s_lshl_b32', 's21', 's20', 12)
    a.I('s_mul_i32', 's22', 's3', CR)
    a.I('s_add_u32', 's22', 's22', K2_C)
    a.I('s_cmp_eq_u32', 's18', 1); a.I('s_cbranch_scc1', 'K2_P1')
    a.I('s_cmp_eq_u32', 's18', 2); a.I('s_cbranch_scc1', 'K2_P2')
    st = (list(a.hist), list(a.vm), list(a.lg))
    for p in range(3):
        if p:
            a.raw(".p2align 6"); a.label(f'K2_P{p}')
            a.hist, a.vm, a.lg = list(st[0]), list(st[1]), list(st[2])
        Stamps.n = 1
        k2_part(a, p)
    a.label('K2_END')
    a.I('s_endpgm')

def k2_part(a, p):
    P = PARTS[p]
    tiles = [t for g in P['groups'] for t in g]
    jmax = max(tiles)
    nkb = (64*(jmax+1)*2 + 1023)//1024
    quads = []
    for g in P['groups']:
        quads.append([t for t in g if t >= P['first']])
    nq = len(quads)
    srd(a, 24, 8, NBYTES)
    srd(a, 28, 6, NBYTES, add=U_OFF)
    a.I('s_load_dword', 's14', S(8,2), 's21')
    a.I('s_lshl_b32', 's23', 's20', 1); a.I('s_and_b32', 's23', 's23', -4)
    a.I('s_load_dword', 's15', S(10,2), 's23')
    A2C = 8
    if P['a2']:
        a.I('s_add_u32', 's44', 's17', 80*p)
        a.I('s_mul_i32', 's45', 's44', 205); a.I('s_lshr_b32', 's45', 's45', 11)
        a.I('s_mul_i32', 's46', 's45', 10); a.I('s_sub_u32', 's46', 's44', 's46')
        srd(a, 32, 6, NBYTES, add=H_OFF)
        a.I('v_lshrrev_b32', 'v4', 3, 'v1'); a.I('v_and_b32', 'v5', 7, 'v1'); a.I('v_and_b32', 'v6', 2, 'v4')
        a.I('v_xor_b32', 'v5', 'v5', 'v6')
        a.I('v_mul_u32_u24', 'v6', 1280, 'v4')
        a.I('v_lshl_add_u32', 'v6', 'v5', 4, 'v6')
        a.I('v_xor_b32', 'v7', 64, 'v6')
        a.I('s_lshl_b32', 's47', 's45', 7); a.I('s_lshl_b32', 's48', 's3', 4); a.I('s_add_u32', 's47', 's47', 's48')
        a.I('s_mul_i32', 's47', 's47', 1280); a.I('s_lshl_b32', 's48', 's46', 7); a.I('s_add_u32', 's47', 's47', 's48')
        a.I('s_add_u32', 's48', 's47', 8*1280)
        a.I('s_lshl_b32', 's49', 's3', 11)
        a.I('s_add_u32', 'm0', 's49', K2_A)
        a.I('buffer_load_dwordx4', 'v6', S(32,4), 's47', mods='offen lds', tag='a2')
        a.I('s_add_u32', 'm0', 's49', K2_A + 1024)
        a.I('buffer_load_dwordx4', 'v7', S(32,4), 's48', mods='offen lds', tag='a2')
        a.I('s_getpc_b64', S(50,2))
        a.label(f'K2_PC{p}')
        a.I('s_add_u32', 's50', 's50', f'TBL2-K2_PC{p}'); a.I('s_addc_u32', 's51', 's51', 0)
        a.I('v_lshl_add_u32', 'v4', 'v2', 12, 'v3')
        for st in range(4):
            a.I('global_load_dwordx4', V(A2C+4*st,4), 'v4', S(50,2), mods=f'offset:{1024*st}')
    hb = 32; ub = 32 + 4096 + 256
    if p == 0: order = [('h',0),('u',0),('u',1),('h',1),('u',2),('h',2)]
    else:
        order = []
        for i in range(nkb): order += [('h', i), ('u', nkb-1-i)]
    assert sorted(order) == sorted([(x, i) for x in 'hu' for i in range(nkb)])
    a.I('s_add_u32', 's52', 's22', hb); a.I('s_add_u32', 's53', 's22', ub)
    cur = None
    for (x, i) in order:
        if cur != x: a.I('s_mov_b32', 'm0', 's52' if x == 'h' else 's53'); cur = x
        a.I('buffer_load_dwordx4', 'v3', S(24 if x == 'h' else 28, 4), 's21', mods=f'offen offset:{1024*i} lds', tag=f'{x}{i}')
    QR = 24
    VQ, VO = 44, 45
    srd(a, 36, 4, NBYTES); srd(a, 40, 12, 2*NBYTES)
    a.I('v_and_b32', 'v4', 3, 'v1')
    a.I('v_lshrrev_b32', 'v5', 3, 'v1')
    a.I('v_lshl_add_u32', 'v5', 'v4', 6, 'v5')
    a.I('v_lshl_add_u32', 'v5', 'v2', 3, 'v5')
    a.I('v_mul_u32_u24', 'v6', 1280, 'v5')
    a.I('v_and_b32', 'v7', 7, 'v1')
    a.I('v_mov_b32', V(46), '0x3ff00000')
    lens = sorted(set(len(q) for q in quads))
    vq = {}
    for n, ln in enumerate(lens):
        a.I('v_cmp_gt_u32', 'vcc', ln, 'v7')
        rq, ro_ = [(VQ, VO), (0, 3)][n]
        a.I('v_cndmask_b32', V(rq), V(46), 'v6', 'vcc')
        a.I('v_lshlrev_b32', V(ro_), 1, V(rq))
        vq[ln] = (rq, ro_)
    a.I('s_lshl_b32', 's54', 's17', 4)
    for qi, q in enumerate(quads):
        a.I('s_add_u32', S(56+qi), 's54', hex(q[0]*64*1280))
        a.I('buffer_load_dwordx4', V(QR+4*qi,4), V(vq[len(q)][0]), S(36,4), S(56+qi), mods='offen')
        a.I('s_add_u32', S(56+qi), 's54', hex(q[0]*64*2560 + 1280))
    stamp(a)
    a.I('v_mov_b32', 'v4', 0)
    a.I('v_lshl_add_u32', 'v5', 'v1', 2, 's22')
    a.I('ds_write_b32', 'v5', 'v4', mods=f'offset:{ub-256}')
    a.I('v_and_b32', 'v6', 7, 'v1'); a.I('v_lshl_add_u32', 'v6', 'v6', 2, 's22')
    a.I('ds_write_b32', 'v6', 'v4')
    VH, VU, VYW, VYR = 4, 5, 6, 7
    T0 = 52
    a.I('v_lshrrev_b32', V(T0), 4, 'v1')
    a.I('v_bfe_u32', V(T0+1), 'v1', 2, 2)
    a.I('v_and_b32', V(T0+2), 3, 'v1')
    if P['a2']:
        VA2 = 56
        a.I('v_bfe_u32', V(T0+3), 'v1', 3, 2)
        a.I('v_lshlrev_b32', V(VA2), 10, V(T0))
        a.I('v_lshl_add_u32', V(VA2), V(T0+1), 7, V(VA2))
        a.I('v_lshl_add_u32', V(VA2), V(T0+2), 3, V(VA2))
        a.I('v_lshl_add_u32', V(VA2), V(T0+3), 5, V(VA2))
        for tau in range(1, 4): a.I('v_xor_b32', V(VA2+tau), 32*tau, V(VA2))
        VAO = 60
        a.I('v_and_b32', V(VAO), 15, 'v1')
        a.I('v_lshl_add_u32', V(VAO), 'v2', 4, V(VAO))
        a.I('v_mul_u32_u24', V(VAO), 16*2560, V(VAO))
        a.I('v_lshl_add_u32', V(VAO), V(T0), 4, V(VAO))
        a.I('s_mul_i32', 's47', 's45', 2560); a.I('s_lshl_b32', 's48', 's46', 7); a.I('s_add_u32', 's47', 's47', 's48')
    a.I('v_add_u32', V(VH), V(T0+1), V(T0+2))
    a.I('v_lshl_add_u32', V(VH), V(T0), 3, V(VH))
    a.I('s_add_u32', 's23', 's22', hb-24)
    a.I('v_lshl_add_u32', V(VH), V(VH), 3, 's23')
    a.I('v_lshlrev_b32', V(VU), 2, V(T0+2))
    a.I('v_sub_u32', V(VU), V(VU), V(T0+1))
    a.I('v_lshlrev_b32', V(T0+3), 3, V(T0))
    a.I('v_sub_u32', V(VU), V(VU), V(T0+3))
    a.I('s_add_u32', 's23', 's22', ub-8)
    a.I('v_lshl_add_u32', V(VU), V(VU), 3, 's23')
    a.I('s_mul_i32', 's23', 's3', YS)
    a.I('v_lshl_add_u32', V(VYW), 'v1', 3, 's23')
    a.I('v_and_b32', V(T0+3), 1, V(T0+2))
    a.I('v_lshl_add_u32', V(T0+3), V(T0+3), 2, V(T0+1))
    a.I('v_mul_u32_u24', V(VYR), YS, V(T0+3))
    a.I('v_lshrrev_b32', V(T0+3), 1, V(T0+2))
    a.I('v_lshl_add_u32', V(T0+3), V(T0), 1, V(T0+3))
    a.I('v_lshl_add_u32', V(T0+3), 'v2', 3, V(T0+3))
    a.I('v_lshl_add_u32', V(VYR), V(T0+3), 3, V(VYR))
    a.I('s_lshl_b32', 's14', 's14', 16)
    a.I('s_bitcmp1_b32', 's20', 0)
    a.I('s_cselect_b32', 's23', 0, 16)
    a.I('s_lshl_b32', 's15', 's15', 's23'); a.I('s_and_b32', 's15', 's15', '0xffff0000')
    a.I('v_mov_b32', V(T0), 's14'); a.I('v_add_f32', V(T0), 's15', V(T0))
    a.I('v_cvt_pk_bf16_f32', V(47), V(T0), V(T0))
    a.I('v_mov_b32', V(46), 's52')
    a.I('s_mov_b32', 's55', '0xffff0000')
    stamp(a)
    HF, UF = 64, 128
    if P['a2']:
        AF, AD = 128, 192
        a.wait_tag('a2'); a.I('s_barrier')
        stamp(a)
        for st in range(4):
            for tau in range(4):
                for h in range(2):
                    a.I(TR, V(AF+16*st+4*tau+2*h,2), V(VA2+tau), mods=f'offset:{K2_A+4096*st+512*h}')
        for st in range(4):
            for tau in range(4):
                a.I(MF, V(AD+4*tau,4), V(AF+16*st+4*tau,4), V(A2C+4*st,4), 0 if st == 0 else V(AD+4*tau,4))
        for pr in range(2):
            for tb in range(2):
                d = AD+4*(2*pr+tb); o = A2C+4*pr+2*tb
                a.I('v_cvt_pk_bf16_f32', V(o), V(d), V(d+1)); a.I('v_cvt_pk_bf16_f32', V(o+1), V(d+2), V(d+3))
            a.I('buffer_store_dwordx4', V(A2C+4*pr,4), V(VAO), S(40,4), 's47', mods=(f'offen offset:{64*pr} ' + ST_O).strip())
    else: stamp(a)
    stamp(a)
    if STAMP: a.wait_tag('h0'); stamp(a)
    free = list(range(UF + 4*(jmax+1), 256, 4)) + list(range(HF + 4*(jmax//2+1), 128, 4))
    accs = [8, 12, 16, 20, 56, 60] + ([40] if p else []) + [f for f in free if f < 248]
    assert len(accs) >= len(tiles)
    have = set(); patched = [False]
    def need_bytes(x, lo, hi):
        for kb in range(max(lo, 0)//1024, hi//1024 + 1): a.wait_tag(f'{x}{kb}')
    def loadH(s):
        if ('h', s) in have: return
        have.add(('h', s))
        need_bytes('h', 256*s-24, 256*s+255)
        if s == 0 and not patched[0]:
            a.I('ds_write_b16', V(46), V(47)); patched[0] = True
        for h in range(2): a.I(TR, V(HF+4*s+2*h,2), V(VH), mods=f'offset:{256*s+32*h}')
    def loadU(m):
        if ('u', m) in have: return
        have.add(('u', m))
        need_bytes('u', 128*m-224, 128*m+127)
        for h in range(2): a.I(TR, V(UF+4*m+2*h,2), V(VU), mods=f'offset:{128*m+32*(1-h)}')
    acc_of = {}
    seq = []
    gi_end = []
    nxt = 0
    for g in P['groups']:
        for J in g: acc_of[J] = accs[nxt % len(accs)]; nxt += 1
        for s in range(max(g)//2+1):
            for J in g:
                if J - 2*s >= 0: seq.append((J, s))
        gi_end.append(len(seq))
    SV = {}
    S2a, S1a, S2b, S1b = 48, 49, 50, 51
    assert len(lens) <= 2
    YR = 52
    def reduce_ops(g, qi):
        l = []
        q = quads[qi]
        for J in g:
            d = acc_of[J]
            s2, s1 = (S2a, S1a) if J & 1 else (S2b, S1b)
            ps2, ps1 = (S2b, S1b) if J & 1 else (S2a, S1a)
            hasprev = (J-1) in acc_of
            valid = J in q
            y = YR + q.index(J) if valid else None
            DP = 'row_mask:0xf bank_mask:0xf'
            def lvl(dst, prev, cur_src, add, hasprev=hasprev):
                if hasprev:
                    l.append(lambda: a.I('v_add_f32_dpp', V(dst), V(prev), V(add), mods='wave_ror:1 ' + DP))
                    l.append(lambda: a.I('v_add_f32_dpp', V(dst), V(cur_src), V(add), mods='wave_shr:1 ' + DP))
                else:
                    l.append(lambda: a.I('v_add_f32_dpp', V(dst), V(cur_src), V(add), mods='wave_shr:1 ' + DP + ' bound_ctrl:0'))
            lvl(s2, acc_of[J-1]+3 if hasprev else None, d+3, d+2)
            lvl(s1, ps2, s2, d+1)
            if valid: lvl(y, ps1, s1, d)
        n = len(q)
        l.append(lambda: a.I('v_cvt_pk_bf16_f32', V(YR), V(YR), V(YR+1)))
        if n > 2:
            l.append(lambda: a.I('v_cvt_pk_bf16_f32', V(YR+1), V(YR+2), V(YR+3)))
        l.append(lambda: a.I('ds_write_b64', V(VYW), V(YR,2), mods=f'offset:{K2_Y+512*qi}'))
        l.append(lambda: a.barrier())
        return l
    return_regs = None
    def flush_ops(qi, tmp):
        l = []
        q = quads[qi]; qr = QR+4*qi
        DP = 'row_mask:0xf bank_mask:0xf'
        l.append(lambda: a.I(TR, V(tmp,2), V(VYR), mods=f'offset:{K2_Y+512*qi}'))
        l.append(lambda: a.I('v_mov_b32_dpp', V(qr), V(qr+2), mods='row_shr:4 row_mask:0xf bank_mask:0xa'))
        l.append(lambda: a.I('v_mov_b32_dpp', V(qr+1), V(qr+3), mods='row_shr:4 row_mask:0xf bank_mask:0xa'))
        l.append(lambda: a.I('v_and_b32', V(qr+3), 's55', V(qr+1)))
        l.append(lambda: a.I('v_lshlrev_b32', V(qr+2), 16, V(qr+1)))
        l.append(lambda: a.I('v_and_b32', V(qr+1), 's55', V(qr)))
        l.append(lambda: a.I('v_lshlrev_b32', V(qr), 16, V(qr)))
        l.append(lambda: a.I('v_lshlrev_b32', V(tmp+4), 16, V(tmp)))
        l.append(lambda: a.I('v_and_b32', V(tmp+5), 's55', V(tmp)))
        l.append(lambda: a.I('v_lshlrev_b32', V(tmp+6), 16, V(tmp+1)))
        l.append(lambda: a.I('v_and_b32', V(tmp+7), 's55', V(tmp+1)))
        for j in range(4): l.append(lambda j=j: a.I('v_mul_f32', V(tmp+4+j), V(tmp+4+j), V(qr+j)))
        l.append(lambda: a.I('v_cvt_pk_bf16_f32', V(qr), V(tmp+4), V(tmp+5)))
        l.append(lambda: a.I('v_cvt_pk_bf16_f32', V(qr+1), V(tmp+6), V(tmp+7)))
        l.append(lambda: a.I('v_mov_b32_dpp', V(qr+2), V(qr), mods='row_shl:4 ' + DP))
        l.append(lambda: a.I('v_mov_b32_dpp', V(qr+3), V(qr+1), mods='row_shl:4 ' + DP))
        l.append(lambda: a.I('buffer_store_dwordx4', V(qr,4), V(vq[len(q)][1]), S(40,4), S(56+qi), mods=('offen ' + ST_O).strip()))
        return l
    AHEAD = opt('ahead', 6)
    started = set()
    def mf_thunk(idx):
        def f():
            for k in range(idx, min(idx+AHEAD, len(seq))+0):
                J, s = seq[k]; loadH(s); loadU(J-2*s)
            J, s = seq[idx]
            d = V(acc_of[J],4)
            a.I(MF, d, V(UF+4*(J-2*s),4), V(HF+4*s,4), d if J in started else 0)
            started.add(J)
        return f
    FT = 40 if nq <= 4 else None
    pend = []
    lo = 0
    for gi, g in enumerate(P['groups']):
        mfs = [mf_thunk(i) for i in range(lo, gi_end[gi])]; lo = gi_end[gi]
        if pend:
            merge(a, mfs[:2]); merge(a, mfs[2:], pend)
        else: merge(a, mfs)
        if gi == 0 or gi == len(P['groups'])-1: stamp(a)
        pend = reduce_ops(g, gi) + flush_ops(gi, flush_tmp(p, accs, acc_of))
    merge(a, pend)
    stamp(a)
    stamp_out(a, 1)
    a.I('s_endpgm')

def flush_tmp(p, accs, acc_of):
    return 248 if p == 0 else 32

def main():
    a = Asm()
    hdr = open('concat_heads__spectral_fnet__ssm_conv_h3__prompt.s.ref').read().split('; Override')[0]
    a.raw(hdr.rstrip())
    a.raw(f"; @launch kernel=k1_kernel grid=(256,1,1) block=(512,1,1) lds={K1_LDS}")
    a.raw(f"; @launch kernel=k2_kernel grid=(256,1,1) block=(512,1,1) lds={K2_LDS}")
    a.raw('.amdgcn_target "amdgcn-amd-amdhsa--gfx950"\n.text')
    k1(a); k2(a)
    a.raw(".p2align 8\n.type TBL1,@object\nTBL1:")
    a.raw(T.as_asm(T.t1_d1()) + T.as_asm(T.t1_tw()) + T.as_asm(T.t1_d2()))
    a.raw(".size TBL1, .-TBL1\n.type TBL2,@object\nTBL2:")
    a.raw(T.as_asm(T.t2()))
    a.raw(".size TBL2, .-TBL2")
    a.raw('.section .rodata,"a"')
    for k in ('k1_kernel', 'k2_kernel'):
        a.raw(f""".p2align 6
.amdhsa_kernel {k}
  .amdhsa_next_free_vgpr 256
  .amdhsa_next_free_sgpr 96
  .amdhsa_accum_offset 256
  .amdhsa_group_segment_fixed_size 0
  .amdhsa_kernarg_size 112
  .amdhsa_user_sgpr_count 2
  .amdhsa_user_sgpr_kernarg_segment_ptr 1
  .amdhsa_system_sgpr_workgroup_id_x 1
.end_amdhsa_kernel""")
    open(sys.argv[1], 'w').write(a.text())
    print("instrs", a.nins, a.stats, "LDS", K1_LDS, K2_LDS)
main()
```

```python
import sys
from emit import Asm, V, S
import tables as T

OPT = dict(a.split('=') for a in sys.argv[2:])
def opt(k, d): return type(d)(OPT.get(k, d))
def flag(k, d):
    v = opt(k, d)
    return '' if v == 'p' else v.replace('_', ' ')

H_OFF = 0
U_OFF = 0x280000
NBYTES = 2048 * 640 * 2
WS_BYTES = U_OFF + NBYTES
ST_I = flag('st_i', 'sc1')
ST_O = flag('st_o', 'p')
ST_A = flag('st_a', 'p')
LD_IN = flag('ld_in', 'nt')
LD_I = flag('ld_i', 'p')
PF = opt('pf', 1)
def M(*xs): return ' '.join(x for x in xs if x)

def srd_tail(a, d, nbytes):
    a.I('s_mov_b32', S(d+2), hex(nbytes)); a.I('s_mov_b32', S(d+3), '0x20000')

def merge(a, *lists):
    lists = [l for l in lists if l]
    pos = [0]*len(lists)
    total = sum(len(l) for l in lists)
    for _ in range(total):
        k = min((i for i in range(len(lists)) if pos[i] < len(lists[i])), key=lambda i: (pos[i] + 0.5) / len(lists[i]))
        lists[k][pos[k]](); pos[k] += 1

STAMP = opt('stamp', 0)
class Stamps: n = 0
def stamp(a, first=False):
    if not STAMP: return
    if first: Stamps.n = 0
    a.I('s_memrealtime', S(66+2*Stamps.n, 2)); Stamps.n += 1
    assert Stamps.n <= 14
def stamp_out(a, kern, wsreg, dbg=None):
    if not STAMP: return
    a.waitcnt(vm=0)
    stamp(a)
    a.waitcnt(lg=0)
    if STAMP == 2:
        if dbg is None: return
        wg, slot, idxs = dbg
        lab = f'DBG_SKIP_{kern}_{slot}'
        a.I('s_cmp_lg_u32', 's2', wg); a.I('s_cbranch_scc1', lab)
        a.I('s_cmp_lg_u32', 's3', 0); a.I('s_cbranch_scc1', lab)
        a.I('s_load_dwordx2', S(94,2), S(0,2), 96)
        a.I('v_mov_b32', 'v0', 0)
        a.I('s_mov_b64', 'exec', 1)
        a.waitcnt(lg=0)
        for n, i in enumerate(idxs):
            a.I('v_mov_b32', 'v1', S(66+2*(i % Stamps.n)))
            a.I('global_store_dword', 'v0', 'v1', S(94,2), mods=f'offset:{4*(slot+n) + 512*(1-kern)}')
        a.label(lab)
        return
    a.I('s_lshl_b32', 's94', 's2', 3); a.I('s_add_u32', 's94', 's94', 's3'); a.I('s_lshl_b32', 's94', 's94', 6)
    a.I('s_add_u32', 's94', 's94', hex(0x1000000 + kern*0x40000))
    a.I('v_mov_b32', 'v0', 's94')
    a.I('s_mov_b64', 'exec', 1)
    for i in range(Stamps.n):
        a.I('v_mov_b32', 'v1', S(66+2*i))
        a.I('global_store_dword', 'v0', 'v1', S(wsreg,2), mods=f'offset:{4*i}')
    a.I('global_store_dword', 'v0', 'v1', S(wsreg,2), mods='offset:56')
    a.I('v_mov_b32', 'v1', Stamps.n)
    a.I('global_store_dword', 'v0', 'v1', S(wsreg,2), mods='offset:60')

MF = 'v_mfma_f32_16x16x32_bf16'
TR = 'ds_read_b64_tr_b16'
DUMMY = 252

K1_T = 0
K1_X = 17*1024
K1_R = K1_X + 40960
RS = 2568
K1_LDS = K1_R + 16*RS + 64

def k1(a):
    a.raw(".globl k1_kernel\n.p2align 8\n.type k1_kernel,@function\nk1_kernel:")
    a.reset_state()
    a.I('s_getpc_b64', S(4,2))
    a.I('s_load_dwordx2', S(20,2), S(0,2), 48)
    a.I('s_load_dwordx2', S(24,2), S(0,2), 56)
    a.I('s_load_dwordx2', S(36,2), S(0,2), 0)
    a.I('s_load_dwordx2', S(28,2), S(0,2), 64)
    a.I('s_load_dwordx2', S(40,2), S(0,2), 104)
    a.I('s_cmp_ge_u32', 's2', 256); a.I('s_cbranch_scc1', 'K1_END')
    stamp(a, True)
    a.I('v_lshlrev_b32', 'v3', 4, 'v0')
    a.I('global_load_dwordx4', V(DUMMY,4), 'v3', S(4,2), mods='nt', notrack=True)
    a.I('v_lshrrev_b32', 'v2', 6, 'v0')
    a.I('v_and_b32', 'v1', 63, 'v0')
    a.I('v_readfirstlane_b32', 's3', 'v2')
    a.I('s_and_b32', 's16', 's2', 7)
    a.I('s_cmp_lt_u32', 's2', 128); a.I('s_cbranch_scc1', 'K1_A')
    st = a.save()
    k1_b_issue(a)
    a.I('s_branch', 'K1_B2')
    stb = a.save(); nb = Stamps.n
    a.label('K1_A'); a.restore(st); Stamps.n = 1
    k1_a(a)
    a.label('K1_B2'); a.restore(stb); Stamps.n = nb
    k1_b_rest(a)
    a.label('K1_END')
    a.I('s_endpgm')

KR, VR, WR = 12, 34, 52
def k1_b_issue(a):
    a.I('s_cmp_ge_u32', 's3', 5); a.I('s_cbranch_scc1', 'K1_END')
    a.I('s_bfe_u32', 's17', 's2', hex(3 | (3 << 16)))
    a.I('s_lshl3_add_u32', 's16', 's16', 's17')
    a.I('s_bfe_u32', 's17', 's2', hex(6 | (1 << 16)))
    a.I('s_mul_i32', 's17', 's17', 5)
    a.I('s_add_u32', 's17', 's17', 's3')
    a.I('s_lshl_b32', 's17', 's17', 6)
    a.I('s_lshl_b32', 's16', 's16', 5)
    a.I('v_and_b32', 'v3', 15, 'v1')
    a.I('v_lshrrev_b32', 'v4', 4, 'v1')
    a.I('v_lshl_add_u32', 'v5', 'v3', 2, 's17')
    a.I('v_lshl_add_u32', 'v6', 'v4', 3, 's16')
    a.I('v_mul_u32_u24', 'v7', 1280, 'v6')
    a.I('v_lshl_add_u32', 'v7', 'v5', 1, 'v7')
    a.I('v_subrev_u32', 'v8', 3840, 'v7')
    a.I('s_movk_i32', 's18', 5120)
    srd_tail(a, 20, NBYTES); srd_tail(a, 24, NBYTES)
    for j in range(8):
        a.I('buffer_load_dwordx2', V(KR+6+2*j,2), 'v7', S(20,4), 's18' if j >= 4 else 0, mods=M(f'offen offset:{1280*(j%4)}', LD_IN))
    for j in range(3):
        a.I('buffer_load_dwordx2', V(KR+2*j,2), 'v8', S(20,4), 0, mods=M(f'offen offset:{1280*j}', LD_IN))
    a.I('v_lshlrev_b32', 'v9', 3, 'v5')
    srd_tail(a, 28, 640*8)
    a.I('buffer_load_dwordx4', V(WR,4), 'v9', S(28,4), 0, mods=M('offen', LD_IN))
    a.I('buffer_load_dwordx4', V(WR+4,4), 'v9', S(28,4), 0, mods=M('offen offset:16', LD_IN))
    for j in range(8):
        a.I('buffer_load_dwordx2', V(VR+2*j,2), 'v7', S(24,4), 's18' if j >= 4 else 0, mods=M(f'offen offset:{1280*(j%4)}', LD_IN))
    stamp(a)

def k1_b_rest(a):
    KU, WU, KS, TMP, O = 60, 104, 120, 152, 160
    a.I('v_lshlrev_b32', 'v10', 12, 'v5')
    a.I('v_lshl_add_u32', 'v10', 'v6', 1, 'v10')
    srd_tail(a, 40, WS_BYTES)
    for ch in range(4): a.I('s_mov_b32', S(44+ch), hex(U_OFF + 4096*ch))
    a.I('s_mov_b32', 's48', '0xffff0000')
    def unpack(dst_lo, dst_hi, src):
        a.I('v_lshlrev_b32', V(dst_lo), 16, V(src)); a.I('v_and_b32', V(dst_hi), 's48', V(src))
    def unk(j):
        unpack(KU+4*j, KU+4*j+1, KR+2*j); unpack(KU+4*j+2, KU+4*j+3, KR+2*j+1)
    for j in list(range(3, 11)) + [0, 1, 2]: unk(j)
    stamp(a)
    for ch in range(4):
        unpack(WU+0*4+ch, WU+1*4+ch, WR+2*ch)
        unpack(WU+2*4+ch, WU+3*4+ch, WR+2*ch+1)
    for j in range(8):
        for p in range(2):
            a.I('v_pk_mul_f32', V(KS+4*j+2*p, 2), V(KU+4*j+2*p,2), V(WU+3*4+2*p,2))
        for t in range(1, 4):
            for p in range(2):
                d = V(KS+4*j+2*p, 2)
                a.I('v_pk_fma_f32', d, V(KU+4*(j+t)+2*p,2), V(WU+(3-t)*4+2*p,2), d)
    stamp(a)
    for j in range(8):
        t = TMP + 4*(j & 1)
        unpack(t, t+1, VR+2*j); unpack(t+2, t+3, VR+2*j+1)
        for p in range(2):
            d = V(KS+4*j+2*p, 2)
            a.I('v_pk_mul_f32', d, d, V(t+2*p,2))
        if j & 1:
            for ch in range(4):
                a.I('v_cvt_pk_bf16_f32', V(O+4*ch+j//2), V(KS+4*(j-1)+ch), V(KS+4*j+ch))
    for ch in range(4):
        a.I('buffer_store_dwordx4', V(O+4*ch,4), 'v10', S(40,4), S(44+ch), mods=M('offen', ST_I))
    stamp(a)
    stamp_out(a, 0, 40, (128, 4, [0, 2, -2, -1]))
    a.I('s_endpgm')

def k1_a(a):
    a.I('s_mov_b32', 's50', 's16')
    a.I('s_lshr_b32', 's17', 's2', 4)
    a.I('s_lshl3_add_u32', 's16', 's17', 's16')
    a.I('s_sub_u32', 's18', 128, 's16')
    a.I('s_cmp_eq_u32', 's16', 0)
    a.I('s_cselect_b32', 's18', 64, 's18')
    a.I('s_and_b32', 's19', 's3', 3)
    a.I('s_lshr_b32', 's6', 's3', 2)
    a.I('v_lshrrev_b32', 'v4', 3, 'v1')
    a.I('v_and_b32', 'v5', 7, 'v1')
    a.I('v_and_b32', 'v6', 2, 'v4')
    a.I('s_and_b32', 's7', 's19', 1); a.I('s_lshl_b32', 's7', 's7', 2)
    a.I('v_xor_b32', 'v5', 'v5', 'v6')
    a.I('v_xor_b32', 'v5', 's7', 'v5')
    a.I('v_mul_u32_u24', 'v6', 128*1280, 'v4')
    a.I('v_lshl_add_u32', 'v6', 'v5', 4, 'v6')
    a.I('s_cmp_ge_u32', 's19', 2)
    a.I('s_cselect_b32', 's30', 's18', 's16')
    a.I('s_lshl_b32', 's31', 's7', 8)
    a.I('s_add_u32', 's30', 's30', 's31')
    a.I('s_lshl1_add_u32', 's30', 's30', 's6')
    a.I('s_mul_i32', 's30', 's30', 640)
    a.I('s_lshl1_add_u32', 's31', 's19', 's6')
    a.I('s_mul_i32', 's31', 's31', 5120)
    srd_tail(a, 36, NBYTES)
    for i in range(5):
        a.I('s_add_u32', 'm0', 's31', K1_X + i*(1024-128))
        a.I('buffer_load_dwordx4', 'v6', S(36,4), 's30', mods=M(f'offen offset:{128*i}', LD_IN, 'lds'), tag='x')
    a.I('s_add_u32', 's24', 's4', 'TBL1-k1_kernel-4'); a.I('s_addc_u32', 's25', 's5', 0)
    srd_tail(a, 24, 17*1024)
    a.I('v_lshlrev_b32', 'v3', 4, 'v1')
    a.I('s_lshl_b32', 's21', 's3', 10)
    a.I('s_add_u32', 'm0', 's21', K1_T)
    a.I('s_add_u32', 's22', 's21', 8192)
    a.I('buffer_load_dwordx4', 'v3', S(24,4), 's21', mods='offen nt lds', tag='tbl')
    a.I('s_add_u32', 'm0', 's22', K1_T)
    a.I('s_movk_i32', 's23', 16*1024)
    a.I('buffer_load_dwordx4', 'v3', S(24,4), 's22', mods='offen nt lds', tag='tbl')
    a.I('s_mov_b32', 'm0', K1_T + 16*1024)
    a.I('buffer_load_dwordx4', 'v3', S(24,4), 's23', mods='offen nt lds', tag='tbl')
    stamp(a)
    if PF:
        a.I('s_load_dwordx2', S(52,2), S(0,2), 72)
        a.I('s_load_dwordx2', S(56,2), S(0,2), 40)
        a.I('s_lshr_b32', 's51', 's2', 3); a.I('s_lshl3_add_u32', 's51', 's51', 's3')
        a.I('s_lshr_b32', 's60', 's50', 1); a.I('s_lshl1_add_u32', 's60', 's50', 's60')
        srd_tail(a, 52, NBYTES); srd_tail(a, 56, NBYTES)
        a.I('v_lshlrev_b32', 'v4', 6, 'v1')
        a.I('v_cmp_gt_u32', 'vcc', 48, 'v1')
        a.I('v_mov_b32', 'v5', '0x7ff00000')
        a.I('v_cndmask_b32', 'v4', 'v5', 'v4', 'vcc')
        a.I('s_lshl_b32', 's61', 's60', 17); a.I('s_mul_i32', 's62', 's51', 3072); a.I('s_add_u32', 's61', 's61', 's62')
        a.I('buffer_load_dword', V(DUMMY), 'v4', S(52,4), 's61', mods='offen nt', notrack=True)
        if PF >= 2:
            a.I('v_and_b32', 'v6', 15, 'v1'); a.I('v_mul_u32_u24', 'v6', 1280, 'v6')
            a.I('v_lshrrev_b32', 'v7', 4, 'v1'); a.I('v_lshl_add_u32', 'v6', 'v7', 6, 'v6')
            a.I('v_cndmask_b32', 'v6', 'v5', 'v6', 'vcc')
            a.I('s_mul_i32', 's61', 's51', 16*1280); a.I('s_lshl_b32', 's62', 's60', 6); a.I('s_add_u32', 's61', 's61', 's62')
            a.I('buffer_load_dword', V(DUMMY), 'v6', S(56,4), 's61', mods='offen nt', notrack=True)
        a.I('s_add_u32', 's52', 's4', 'k2_kernel-k1_kernel-4'); a.I('s_addc_u32', 's53', 's5', 0)
        a.I('s_mov_b32', 's54', 'K2_CODE_END-k2_kernel')
        a.I('s_lshl_b32', 's61', 's51', 12)
        a.I('v_lshlrev_b32', 'v4', 6, 'v1')
        a.I('buffer_load_dword', V(DUMMY), 'v4', S(52,4), 's61', mods='offen nt', notrack=True)
    a.I('s_bfe_u32', 's17', 's2', hex(3 | (1 << 16)))
    a.I('s_mul_i32', 's32', 's6', 5120)
    AL = 8
    TM = 16
    a.I('v_and_b32', 'v4', 15, 'v1')
    a.I('v_lshrrev_b32', 'v5', 4, 'v1')
    a.I('v_cmp_gt_u32', 'vcc', 2, 'v5')
    a.I('v_mov_b32', 'v6', 's18')
    a.I('v_mov_b32', 'v7', 's16')
    a.I('v_cndmask_b32', 'v6', 'v6', 'v7', 'vcc')
    a.I('v_and_b32', 'v7', 1, 'v5')
    a.I('v_lshl_add_u32', 'v6', 'v7', 10, 'v6')
    a.I('v_mul_u32_u24', 'v6', 'v6', 'v4')
    a.I('s_cmp_lg_u32', 's16', 0); a.I('s_cselect_b32', 's33', 's17', 0)
    a.I('s_mul_i32', 's34', 's33', 512); a.I('s_mul_i32', 's35', 's33', 1536)
    a.I('v_mov_b32', 'v7', 's35'); a.I('v_mov_b32', V(TM), 's34')
    a.I('v_cndmask_b32', 'v7', 'v7', V(TM), 'vcc')
    a.I('v_add_u32', 'v6', 'v6', 'v7')
    a.I('v_cvt_f32_u32', 'v6', 'v6')
    a.I('v_mul_f32', 'v6', '0x3a000000', 'v6')
    a.I('v_cvt_f32_u32', 'v7', 'v4')
    a.I('v_mul_f32', 'v7', '0x3d800000', 'v7')
    a.I('s_cmp_eq_u32', 's17', 0); a.I('s_cselect_b32', 's34', -1, 0); a.I('s_cselect_b32', 's35', 0, -1)
    a.I('s_cmp_lg_u32', 's16', 0); a.I('s_cselect_b32', 's34', -1, 's34'); a.I('s_cselect_b32', 's35', -1, 's35')
    a.I('v_mov_b32', V(TM), 's35'); a.I('v_mov_b32', V(TM+1), 's34')
    a.I('v_cndmask_b32', 'v2', V(TM), V(TM+1), 'vcc')
    for e in range(8):
        a.I('v_cos_f32', V(TM+e), 'v6')
        a.I('v_sin_f32', V(TM+8+e), '-v6')
        if e < 7: a.I('v_add_f32', 'v6', 'v6', 'v7')
    for h in range(2):
        for j in range(4):
            a.I('v_cvt_pk_bf16_f32', V(AL+4*h+j), V(TM+8*h+2*j), V(TM+8*h+2*j+1))
    for j in range(8):
        a.I('v_and_b32', V(AL+j), 'v2', V(AL+j))
    VA, VW, VD, VD2, VS = 4, 5, 6, 7, 2
    a.I('v_lshrrev_b32', V(TM), 4, 'v1')
    a.I('v_bfe_u32', V(TM+1), 'v1', 2, 2)
    a.I('v_and_b32', V(TM+2), 3, 'v1')
    a.I('v_and_b32', V(TM+3), 15, 'v1')
    a.I('v_bfe_u32', V(TM+4), 'v1', 3, 2)
    a.I('v_xor_b32', V(TM+4), 's19', V(TM+4))
    a.I('v_mul_u32_u24', V(VA), 10240, V(TM))
    a.I('v_lshl_add_u32', V(VA), V(TM+1), 7, V(VA))
    a.I('v_lshl_add_u32', V(VA), V(TM+4), 5, V(VA))
    a.I('v_lshl_add_u32', V(VA), V(TM+2), 3, V(VA))
    a.I('v_add_u32', V(VA), 's32', V(VA))
    a.I('v_mul_u32_u24', V(VW), RS, V(TM+3))
    a.I('v_lshl_add_u32', V(VW), V(TM), 3, V(VW))
    a.I('s_lshl_b32', 's33', 's19', 5); a.I('s_mul_i32', 's34', 's6', 640); a.I('s_add_u32', 's33', 's33', 's34')
    a.I('v_add_u32', V(VW), 's33', V(VW))
    a.I('v_lshrrev_b32', V(TM+5), 1, V(TM))
    a.I('v_mul_u32_u24', V(VD), 1280, V(TM+5))
    a.I('v_and_b32', V(TM+5), 1, V(TM))
    a.I('v_lshl_add_u32', V(TM+5), V(TM+5), 3, V(TM+1))
    a.I('v_mul_u32_u24', V(TM+5), 80, V(TM+5))
    a.I('v_add_u32', V(VD), V(VD), V(TM+5))
    a.I('s_mul_i32', 's33', 's3', 2*RS)
    a.I('v_add_u32', V(VD), 's33', V(VD))
    a.I('v_and_b32', V(TM+5), 1, V(TM+2))
    a.I('v_lshl_add_u32', V(VD2), V(TM+5), 3, V(VD))
    a.I('v_lshl_add_u32', V(VD), V(TM+2), 3, V(VD))
    a.I('v_lshrrev_b32', V(TM+5), 1, V(TM+3))
    a.I('v_lshlrev_b32', V(VS), 6, V(TM+5))
    a.I('v_and_b32', V(TM+5), 1, V(TM)); a.I('v_lshl_add_u32', V(VS), V(TM+5), 5, V(VS))
    a.I('v_and_b32', V(TM+5), 1, V(TM+3)); a.I('v_lshl_add_u32', V(VS), V(TM+5), 4, V(VS))
    a.I('v_lshrrev_b32', V(TM+5), 1, V(TM)); a.I('v_lshl_add_u32', V(VS), V(TM+5), 3, V(VS))
    VS2 = 1
    a.I('v_cmp_gt_u32', 'vcc', 8, V(TM+3))
    a.I('v_mov_b32', V(TM+5), '0x7ff00000')
    a.I('v_cndmask_b32', V(VS2), V(TM+5), V(VS), 'vcc')
    srd_tail(a, 40, WS_BYTES)
    a.I('s_lshl_b32', 's33', 's3', 8); a.I('s_lshl_b32', 's34', 's17', 6)
    a.I('s_add_u32', 's33', 's33', 's34'); a.I('s_add_u32', 's33', 's33', 's16')
    a.I('s_mul_i32', 's44', 's33', 1280); a.I('s_add_u32', 's45', 's44', 128*1280)
    assert H_OFF == 0
    D1B, TW, D2B = 48, 56, 80
    stamp(a)
    a.wait_tag('tbl'); stamp(a); a.I('s_barrier')
    stamp(a)
    AF, AD, PK = 116, 136, 176
    for i in range(5):
        for h in range(2):
            a.I(TR, V(AF+4*i+2*h,2), V(VA), mods=f'offset:{K1_X+1024*i+512*h}')
    tl = [(lambda i=i: a.I('ds_read_b128', V(D1B+4*i,4), 'v3', mods=f'offset:{K1_T+1024*i}')) for i in range(17)]
    def fin(i):
        for cp in range(2):
            d = AD+8*i+4*cp; p = PK+4*i+2*cp
            a.I('v_cvt_pk_bf16_f32', V(p), V(d), V(d+1)); a.I('v_cvt_pk_bf16_f32', V(p+1), V(d+2), V(d+3))
            a.I('ds_write_b64', V(VW), V(p,2), mods=f'offset:{K1_R+1280*cp+128*i}')
    for i in range(7):
        if i < 5:
            for cp in range(2):
                a.I(MF, V(AD+8*i+4*cp,4), V(AF+4*i,4), V(AL+4*cp,4), 0)
        if i == 4:
            for t in tl[:2]: t()
        if i >= 2: fin(i-2)
    a.barrier()
    stamp(a)
    DF, D1, WP, D2, OP, TT = 116, 140, 188, 212, 236, 16
    for r in range(2):
        for tau in range(3):
            for h in range(2):
                a.I(TR, V(DF+12*r+4*tau+2*h,2), V(VD2 if tau == 2 else VD), mods=f'offset:{K1_R+RS*r+320*h+32*tau}')
    def d1(r):
        return [(lambda tau=tau, cp=cp: a.I(MF, V(D1+24*r+8*tau+4*cp,4), V(DF+12*r+4*tau,4), V(D1B+4*cp,4), 0)) for tau in range(3) for cp in range(2)]
    def twd(r):
        l = []
        for tau in range(3):
            re = D1+24*r+8*tau; im = re+4; tc = TW+8*tau; ts = tc+4; t = TT+8*(tau & 1)+16*r
            for j in range(4): l.append(lambda j=j, re=re, tc=tc, t=t: a.I('v_mul_f32', V(t+j), V(re+j), V(tc+j)))
            for j in range(4): l.append(lambda j=j, im=im, tc=tc, t=t: a.I('v_mul_f32', V(t+4+j), V(im+j), V(tc+j)))
            for j in range(4): l.append(lambda j=j, im=im, ts=ts, t=t: a.I('v_fmac_f32', V(t+j), V(im+j), V(ts+j)))
            for j in range(4): l.append(lambda j=j, re=re, ts=ts, t=t: a.I('v_fma_f32', V(t+4+j), '-'+V(re+j), V(ts+j), V(t+4+j)))
            for j in range(4): l.append(lambda j=j, t=t, tau=tau: a.I('v_cvt_pk_bf16_f32', V(WP+12*r+4*tau+j), V(t+2*j), V(t+2*j+1)))
        return l
    def d2(r):
        return [(lambda tau=tau, jt=jt: a.I(MF, V(D2+12*r+4*jt,4), V(WP+12*r+4*tau,4), V(D2B+12*tau+4*jt,4), 0 if tau == 0 else V(D2+12*r+4*jt,4)))
                for tau in range(3) for jt in range(3)]
    def outp(r):
        l = []
        for jt in range(3):
            d = D2+12*r+4*jt; p = OP+6*r+2*jt
            l.append(lambda d=d, p=p: a.I('v_cvt_pk_bf16_f32', V(p), V(d), V(d+1)))
            l.append(lambda d=d, p=p: a.I('v_cvt_pk_bf16_f32', V(p+1), V(d+2), V(d+3)))
            l.append(lambda p=p, jt=jt: a.I('buffer_store_dwordx2', V(p,2), V(VS2 if jt == 2 else VS), S(40,4), S(44+r), mods=M(f'offen offset:{512*jt}', ST_I)))
        return l
    merge(a, d1(0) + d1(1), tl[2:])
    merge(a, twd(0))
    merge(a, d2(0), twd(1))
    merge(a, d2(1), outp(0))
    merge(a, outp(1))
    stamp(a)
    stamp_out(a, 0, 40, (0, 0, [0, 4, -2, -1]))
    a.I('s_endpgm')

CR = 8480
K2_A = 0
K2_Y = 16384
YS = 5*512 + 64
K2_C = K2_Y + 8*YS
K2_LDS = K2_C + 8*CR
PARTS = [
    dict(groups=[[0,1,2,3,4,5,6,7],[8,9,10,11],[12,13,14,15],[16,17]], first=0, a2=True),
    dict(groups=[[17,18,19,20,21],[22,23,24,25]], first=18, a2=True),
    dict(groups=[[25,26,27,28,29],[30,31]], first=26, a2=False),
]

def k2(a):
    a.raw(".globl k2_kernel\n.p2align 8\n.type k2_kernel,@function\nk2_kernel:")
    a.reset_state()
    a.I('s_load_dwordx2', S(28,2), S(0,2), 104)
    a.I('s_load_dwordx2', S(24,2), S(0,2), 72)
    a.I('s_load_dwordx2', S(10,2), S(0,2), 80)
    a.I('s_load_dwordx2', S(36,2), S(0,2), 40)
    a.I('s_load_dwordx2', S(40,2), S(0,2), 88)
    a.I('s_cmp_ge_u32', 's2', 256); a.I('s_cbranch_scc1', 'K2_END')
    stamp(a, True)
    if opt('scr', 0):
        a.I('s_lshr_b32', 's16', 's2', 5); a.I('s_lshl_b32', 's2', 's2', 3); a.I('s_and_b32', 's2', 's2', 255); a.I('s_or_b32', 's2', 's2', 's16')
    a.I('v_lshrrev_b32', 'v2', 6, 'v0')
    a.I('v_and_b32', 'v1', 63, 'v0')
    a.I('v_readfirstlane_b32', 's3', 'v2')
    a.I('s_and_b32', 's16', 's2', 7)
    a.I('s_lshr_b32', 's17', 's2', 5)
    a.I('s_and_b32', 's18', 's16', 1)
    a.I('s_add_u32', 's18', 's18', 's17')
    a.I('s_cmp_ge_u32', 's18', 8); a.I('s_cbranch_scc1', 'K2_END')
    a.I('s_mul_i32', 's16', 's16', 15); a.I('s_add_u32', 's16', 's16', 1); a.I('s_lshr_b32', 's16', 's16', 1)
    a.I('s_add_u32', 's16', 's16', 's17')
    a.I('s_mul_i32', 's17', 's16', 43); a.I('s_lshr_b32', 's17', 's17', 7)
    a.I('s_mul_i32', 's18', 's17', 3); a.I('s_sub_u32', 's18', 's16', 's18')
    a.I('s_bfe_u32', 's19', 's2', hex(3 | (2 << 16)))
    a.I('s_lshl2_add_u32', 's17', 's17', 's19')
    a.I('v_lshlrev_b32', 'v3', 4, 'v1')
    a.I('s_lshl3_add_u32', 's20', 's17', 's3')
    a.I('s_lshl_b32', 's21', 's20', 12)
    a.I('s_add_u32', 's12', 's21', hex(U_OFF))
    a.I('s_mul_i32', 's22', 's3', CR)
    a.I('s_add_u32', 's22', 's22', K2_C)
    srd_tail(a, 24, NBYTES); srd_tail(a, 28, WS_BYTES)
    a.I('s_cmp_eq_u32', 's18', 1); a.I('s_cbranch_scc1', 'K2_P1')
    a.I('s_cmp_eq_u32', 's18', 2); a.I('s_cbranch_scc1', 'K2_P2')
    st = a.save()
    for p in range(3):
        if p:
            a.raw(".p2align 6"); a.label(f'K2_P{p}')
            a.restore(st)
        Stamps.n = 1
        k2_part(a, p)
    a.label('K2_END')
    a.I('s_endpgm')
    a.label('K2_CODE_END')

def k2_part(a, p):
    P = PARTS[p]
    tiles = [t for g in P['groups'] for t in g]
    jmax = max(tiles)
    nkb = (64*(jmax+1)*2 + 1023)//1024
    quads = []; gq = []
    for g in P['groups']:
        v = [t for t in g if t >= P['first']]
        gq.append([])
        for i in range(0, len(v), 4):
            gq[-1].append(len(quads)); quads.append(v[i:i+4])
    nq = len(quads)
    A2C = 8
    if P['a2']:
        a.I('s_add_u32', 's44', 's17', 80*p)
        a.I('s_mul_i32', 's45', 's44', 205); a.I('s_lshr_b32', 's45', 's45', 11)
        a.I('s_mul_i32', 's46', 's45', 10); a.I('s_sub_u32', 's46', 's44', 's46')
        a.I('v_lshrrev_b32', 'v4', 3, 'v1'); a.I('v_and_b32', 'v5', 7, 'v1'); a.I('v_and_b32', 'v6', 2, 'v4')
        a.I('v_xor_b32', 'v5', 'v5', 'v6')
        a.I('v_mul_u32_u24', 'v6', 1280, 'v4')
        a.I('v_lshl_add_u32', 'v6', 'v5', 4, 'v6')
        a.I('v_xor_b32', 'v7', 64, 'v6')
        a.I('s_lshl3_add_u32', 's47', 's45', 's3')
        a.I('s_mul_i32', 's47', 's47', 16*1280); a.I('s_lshl_b32', 's48', 's46', 7); a.I('s_add_u32', 's47', 's47', 's48')
        a.I('s_add_u32', 's48', 's47', 8*1280)
        a.I('s_lshl_b32', 's49', 's3', 11)
        a.I('s_add_u32', 'm0', 's49', K2_A)
        a.I('buffer_load_dwordx4', 'v6', S(28,4), 's47', mods=M('offen', LD_I, 'lds'), tag='a2')
        a.I('s_add_u32', 'm0', 's49', K2_A + 1024)
        a.I('buffer_load_dwordx4', 'v7', S(28,4), 's48', mods=M('offen', LD_I, 'lds'), tag='a2')
    hb = 32; ub = 32 + 4096 + 256
    if p == 0: order = [('u',0),('h',0),('u',1),('u',2),('h',1),('h',2)]
    else:
        order = [('u', nkb-1), ('h', 0)] + [('u', nkb-1-i) for i in range(1, nkb)] + [('h', i) for i in range(1, nkb)]
    assert sorted(order) == sorted([(x, i) for x in 'hu' for i in range(nkb)])
    a.I('s_add_u32', 's52', 's22', hb); a.I('s_add_u32', 's53', 's22', ub)
    cur = None
    for (x, i) in order:
        if cur != x: a.I('s_mov_b32', 'm0', 's52' if x == 'h' else 's53'); cur = x
        if x == 'h': a.I('buffer_load_dwordx4', 'v3', S(24,4), 's21', mods=M(f'offen offset:{1024*i}', LD_IN, 'lds'), tag=f'{x}{i}')
        else: a.I('buffer_load_dwordx4', 'v3', S(28,4), 's12', mods=M(f'offen offset:{1024*i}', LD_I, 'lds'), tag=f'{x}{i}')
    stamp(a)
    a.I('s_load_dword', 's14', S(24,2), 's21')
    a.I('s_lshl_b32', 's23', 's20', 1); a.I('s_and_b32', 's23', 's23', -4)
    a.I('s_load_dword', 's15', S(10,2), 's23')
    T0 = 52
    HF, UF = 64, 128
    if P['a2']:
        CT = 64
        a.I('v_and_b32', 'v4', 15, 'v1'); a.I('v_lshl_add_u32', 'v4', 'v2', 4, 'v4')
        a.I('v_cvt_f32_u32', 'v5', 'v4'); a.I('v_mul_f32', 'v5', '0x3c000000', 'v5')
        a.I('v_lshrrev_b32', 'v6', 4, 'v1'); a.I('v_cvt_f32_u32', 'v6', 'v6')
        a.I('v_mul_f32', 'v6', 'v6', 'v5'); a.I('v_mul_f32', 'v6', '0x41000000', 'v6')
        a.I('v_mul_f32', 'v7', '0x42000000', 'v5'); a.I('v_add_f32', 'v7', 'v7', 'v6')
        for e in range(8):
            a.I('v_cos_f32', V(CT+e), 'v6'); a.I('v_cos_f32', V(CT+8+e), 'v7')
            a.I('v_sin_f32', V(CT+16+e), 'v6'); a.I('v_sin_f32', V(CT+24+e), 'v7')
            if e < 7: a.I('v_add_f32', 'v6', 'v6', 'v5'); a.I('v_add_f32', 'v7', 'v7', 'v5')
        a.I('v_lshlrev_b32', 'v4', 31, 'v4'); a.I('v_or_b32', 'v4', 1.0, 'v4')
        a.I('v_cmp_gt_u32', 'vcc', 16, 'v1')
        a.I('v_cndmask_b32', V(CT+16), V(CT+16), 'v4', 'vcc')
        for j in range(16): a.I('v_cvt_pk_bf16_f32', V(A2C+j), V(CT+2*j), V(CT+2*j+1))
    QR = 24
    VQ, VO = 44, 45
    srd_tail(a, 36, NBYTES); srd_tail(a, 40, 2*NBYTES)
    a.I('v_and_b32', 'v4', 3, 'v1')
    a.I('v_lshrrev_b32', 'v5', 3, 'v1')
    a.I('v_lshl_add_u32', 'v5', 'v4', 6, 'v5')
    a.I('v_lshl_add_u32', 'v5', 'v2', 3, 'v5')
    a.I('v_mul_u32_u24', 'v6', 1280, 'v5')
    a.I('v_and_b32', 'v7', 7, 'v1')
    a.I('v_mov_b32', V(46), '0x3ff00000')
    lens = sorted(set(len(q) for q in quads))
    assert len(lens) <= 2
    vq = {}
    for n, ln in enumerate(lens):
        a.I('v_cmp_gt_u32', 'vcc', ln, 'v7')
        rq, ro_ = [(VQ, VO), (0, 3)][n]
        a.I('v_cndmask_b32', V(rq), V(46), 'v6', 'vcc')
        a.I('v_lshlrev_b32', V(ro_), 1, V(rq))
        vq[ln] = (rq, ro_)
    a.I('s_lshl_b32', 's54', 's17', 4)
    def qload(qi):
        q = quads[qi]
        a.I('s_add_u32', S(56+qi), 's54', hex(q[0]*64*1280))
        a.I('buffer_load_dwordx4', V(QR+4*qi,4), V(vq[len(q)][0]), S(36,4), S(56+qi), mods=M('offen', LD_IN))
        a.I('s_add_u32', S(56+qi), 's54', hex(q[0]*64*2560 + 1280))
    a.I('v_mov_b32', 'v4', 0)
    a.I('v_lshl_add_u32', 'v5', 'v1', 2, 's22')
    a.I('ds_write_b32', 'v5', 'v4', mods=f'offset:{ub-256}')
    a.I('v_lshl_add_u32', 'v6', 'v7', 2, 's22')
    a.I('ds_write_b32', 'v6', 'v4')
    VH, VU, VYW, VYR = 4, 5, 6, 7
    a.I('v_lshrrev_b32', V(T0), 4, 'v1')
    a.I('v_bfe_u32', V(T0+1), 'v1', 2, 2)
    a.I('v_and_b32', V(T0+2), 3, 'v1')
    if P['a2']:
        VA2 = 56
        a.I('v_bfe_u32', V(T0+3), 'v1', 3, 2)
        a.I('v_lshlrev_b32', V(VA2), 10, V(T0))
        a.I('v_lshl_add_u32', V(VA2), V(T0+1), 7, V(VA2))
        a.I('v_lshl_add_u32', V(VA2), V(T0+2), 3, V(VA2))
        a.I('v_lshl_add_u32', V(VA2), V(T0+3), 5, V(VA2))
        for tau in range(1, 4): a.I('v_xor_b32', V(VA2+tau), 32*tau, V(VA2))
        VAO = 60
        a.I('v_and_b32', V(VAO), 15, 'v1')
        a.I('v_lshl_add_u32', V(VAO), 'v2', 4, V(VAO))
        a.I('v_mul_u32_u24', V(VAO), 16*2560, V(VAO))
        a.I('v_lshl_add_u32', V(VAO), V(T0), 4, V(VAO))
        a.I('s_mul_i32', 's47', 's45', 2560); a.I('s_lshl_b32', 's48', 's46', 7); a.I('s_add_u32', 's47', 's47', 's48')
    a.I('v_add_u32', V(VH), V(T0+1), V(T0+2))
    a.I('v_lshl_add_u32', V(VH), V(T0), 3, V(VH))
    a.I('s_add_u32', 's23', 's22', hb-24)
    a.I('v_lshl_add_u32', V(VH), V(VH), 3, 's23')
    a.I('v_lshlrev_b32', V(VU), 2, V(T0+2))
    a.I('v_sub_u32', V(VU), V(VU), V(T0+1))
    a.I('v_lshlrev_b32', V(T0+3), 3, V(T0))
    a.I('v_sub_u32', V(VU), V(VU), V(T0+3))
    a.I('s_add_u32', 's23', 's22', ub-8)
    a.I('v_lshl_add_u32', V(VU), V(VU), 3, 's23')
    a.I('s_mul_i32', 's23', 's3', YS)
    a.I('v_lshl_add_u32', V(VYW), 'v1', 3, 's23')
    a.I('v_and_b32', V(T0+3), 1, V(T0+2))
    a.I('v_lshl_add_u32', V(T0+3), V(T0+3), 2, V(T0+1))
    a.I('v_mul_u32_u24', V(VYR), YS, V(T0+3))
    a.I('v_lshrrev_b32', V(T0+3), 1, V(T0+2))
    a.I('v_lshl_add_u32', V(T0+3), V(T0), 1, V(T0+3))
    a.I('v_lshl_add_u32', V(T0+3), 'v2', 3, V(T0+3))
    a.I('v_lshl_add_u32', V(VYR), V(T0+3), 3, V(VYR))
    a.I('s_lshl_b32', 's14', 's14', 16)
    a.I('s_bitcmp1_b32', 's20', 0)
    a.I('s_cselect_b32', 's23', 0, 16)
    a.I('s_lshl_b32', 's15', 's15', 's23'); a.I('s_and_b32', 's15', 's15', '0xffff0000')
    a.I('v_mov_b32', V(T0), 's14'); a.I('v_add_f32', V(T0), 's15', V(T0))
    a.I('v_cvt_pk_bf16_f32', V(47), V(T0), V(T0))
    a.I('v_mov_b32', V(46), 's52')
    a.I('s_mov_b32', 's55', '0xffff0000')
    stamp(a)
    if P['a2']:
        AF, AD = 128, 192
        a.wait_tag('a2'); a.I('s_barrier')
        stamp(a)
        rd = [(lambda st=st, tau=tau, h=h: a.I(TR, V(AF+16*st+4*tau+2*h,2), V(VA2+tau), mods=f'offset:{K2_A+4096*st+512*h}'))
              for st in range(4) for tau in range(4) for h in range(2)]
        mm = [(lambda st=st, tau=tau: a.I(MF, V(AD+4*tau,4), V(AF+16*st+4*tau,4), V(A2C+4*st,4), 0 if st == 0 else V(AD+4*tau,4)))
              for st in range(4) for tau in range(4)]
        merge(a, rd[:12]); merge(a, rd[12:], mm[:10]); merge(a, mm[10:])
        for pr in range(2):
            for tb in range(2):
                d = AD+4*(2*pr+tb); o = A2C+4*pr+2*tb
                a.I('v_cvt_pk_bf16_f32', V(o), V(d), V(d+1)); a.I('v_cvt_pk_bf16_f32', V(o+1), V(d+2), V(d+3))
            a.I('buffer_store_dwordx4', V(A2C+4*pr,4), V(VAO), S(40,4), 's47', mods=M(f'offen offset:{64*pr}', ST_A))
    else: stamp(a)
    stamp(a)
    if STAMP: a.wait_tag('h0'); stamp(a)
    free = list(range(UF + 4*(jmax+1), 256, 4)) + list(range(HF + 4*(jmax//2+1), 128, 4))
    accs = [16, 20, 8, 12, 56, 60] + ([40] if p else []) + [f for f in free if f < 248]
    assert len(accs) >= len(tiles)
    FT = 248 if p == 0 else 32
    have = set(); patched = [False]
    def need_bytes(x, lo, hi):
        for kb in range(max(lo, 0)//1024, hi//1024 + 1): a.wait_tag(f'{x}{kb}')
    def loadH(s):
        if ('h', s) in have: return
        have.add(('h', s))
        need_bytes('h', 256*s-24, 256*s+255)
        if s == 0 and not patched[0]:
            a.I('ds_write_b16', V(46), V(47)); patched[0] = True
        for h in range(2): a.I(TR, V(HF+4*s+2*h,2), V(VH), mods=f'offset:{256*s+32*h}')
    def loadU(m):
        if ('u', m) in have: return
        have.add(('u', m))
        need_bytes('u', 128*m-224, 128*m+127)
        for h in range(2): a.I(TR, V(UF+4*m+2*h,2), V(VU), mods=f'offset:{128*m+32*(1-h)}')
    acc_of = {}; seq = []; gi_end = []; nxt = 0
    for g in P['groups']:
        for J in g: acc_of[J] = accs[nxt]; nxt += 1
        for s in range(max(g)//2+1):
            for J in g:
                if J - 2*s >= 0: seq.append((J, s))
        gi_end.append(len(seq))
    S2a, S1a, S2b, S1b = 48, 49, 50, 51
    YR = 52
    DP = 'row_mask:0xf bank_mask:0xf'
    def reduce_ops(gi):
        l = []
        for J in P['groups'][gi]:
            d = acc_of[J]
            s2, s1 = (S2a, S1a) if J & 1 else (S2b, S1b)
            ps2, ps1 = (S2b, S1b) if J & 1 else (S2a, S1a)
            hasprev = (J-1) in acc_of
            qi = next((k for k in gq[gi] if J in quads[k]), None)
            def lvl(dst, prev, cur_src, add, hasprev=hasprev):
                if hasprev:
                    l.append(lambda: a.I('v_add_f32_dpp', V(dst), V(prev), V(add), mods='wave_ror:1 ' + DP))
                    l.append(lambda: a.I('v_add_f32_dpp', V(dst), V(cur_src), V(add), mods='wave_shr:1 ' + DP))
                else:
                    l.append(lambda: a.I('v_add_f32_dpp', V(dst), V(cur_src), V(add), mods='wave_shr:1 ' + DP + ' bound_ctrl:0'))
            lvl(s2, acc_of[J-1]+3 if hasprev else None, d+3, d+2)
            lvl(s1, ps2, s2, d+1)
            if qi is not None:
                q = quads[qi]
                lvl(YR + q.index(J), ps1, s1, d)
                if J == q[-1]:
                    l.append(lambda: a.I('v_cvt_pk_bf16_f32', V(YR), V(YR), V(YR+1)))
                    if len(q) > 2: l.append(lambda: a.I('v_cvt_pk_bf16_f32', V(YR+1), V(YR+2), V(YR+3)))
                    l.append(lambda qi=qi: a.I('ds_write_b64', V(VYW), V(YR,2), mods=f'offset:{K2_Y+512*qi}'))
        l.append(lambda: a.barrier())
        return l
    def qprep_ops(qi):
        qr = QR+4*qi
        l = []
        l.append(lambda: a.I('v_mov_b32_dpp', V(qr), V(qr+2), mods='row_shr:4 row_mask:0xf bank_mask:0xa'))
        l.append(lambda: a.I('v_mov_b32_dpp', V(qr+1), V(qr+3), mods='row_shr:4 row_mask:0xf bank_mask:0xa'))
        l.append(lambda: a.I('v_and_b32', V(qr+3), 's55', V(qr+1)))
        l.append(lambda: a.I('v_lshlrev_b32', V(qr+2), 16, V(qr+1)))
        l.append(lambda: a.I('v_and_b32', V(qr+1), 's55', V(qr)))
        l.append(lambda: a.I('v_lshlrev_b32', V(qr), 16, V(qr)))
        return l
    def flush_ops(qi, tmp, prep=True):
        l = []
        q = quads[qi]; qr = QR+4*qi
        l.append(lambda: a.I(TR, V(tmp,2), V(VYR), mods=f'offset:{K2_Y+512*qi}'))
        if prep: l += qprep_ops(qi)
        l.append(lambda: a.I('v_lshlrev_b32', V(tmp+4), 16, V(tmp)))
        l.append(lambda: a.I('v_and_b32', V(tmp+5), 's55', V(tmp)))
        l.append(lambda: a.I('v_lshlrev_b32', V(tmp+6), 16, V(tmp+1)))
        l.append(lambda: a.I('v_and_b32', V(tmp+7), 's55', V(tmp+1)))
        for j in range(4): l.append(lambda j=j: a.I('v_mul_f32', V(tmp+4+j), V(tmp+4+j), V(qr+j)))
        l.append(lambda: a.I('v_cvt_pk_bf16_f32', V(qr), V(tmp+4), V(tmp+5)))
        l.append(lambda: a.I('v_cvt_pk_bf16_f32', V(qr+1), V(tmp+6), V(tmp+7)))
        l.append(lambda: a.I('v_mov_b32_dpp', V(qr+2), V(qr), mods='row_shl:4 ' + DP))
        l.append(lambda: a.I('v_mov_b32_dpp', V(qr+3), V(qr+1), mods='row_shl:4 ' + DP))
        l.append(lambda: a.I('buffer_store_dwordx4', V(qr,4), V(vq[len(q)][1]), S(40,4), S(56+qi), mods=M('offen', ST_O)))
        return l
    AHEAD = opt('ahead', 6)
    started = set()
    qpos = {}
    n = len(seq)
    if p == 0: pos = [0, 6, 24, 44, 66]
    else: pos = [n//4, n//2]
    for qi in range(nq): qpos.setdefault(pos[qi], []).append(qi)
    def mf_thunk(idx):
        def f():
            for k in range(idx, min(idx+AHEAD, len(seq))):
                J, s = seq[k]; loadH(s); loadU(J-2*s)
            for qi in qpos.get(idx, []): qload(qi)
            J, s = seq[idx]
            d = V(acc_of[J],4)
            a.I(MF, d, V(UF+4*(J-2*s),4), V(HF+4*s,4), d if J in started else 0)
            started.add(J)
        return f
    pend = []; lo = 0
    ng = len(P['groups'])
    for gi, g in enumerate(P['groups']):
        mfs = [mf_thunk(i) for i in range(lo, gi_end[gi])]; lo = gi_end[gi]
        if gi == ng-1:
            for qi in gq[gi]: pend = pend + qprep_ops(qi)
        if pend: merge(a, mfs[:2]); merge(a, mfs[2:], pend)
        else: merge(a, mfs)
        if gi == 0 or gi == ng-1: stamp(a)
        pend = reduce_ops(gi)
        for qi in gq[gi]: pend = pend + flush_ops(qi, FT, prep=(gi != ng-1))
    merge(a, pend)
    stamp(a)
    stamp_out(a, 1, 28, {0: (0, 8, [0, 3, -3, -1]), 1: None, 2: (64, 12, [0, 5, -3, -1])}[p])
    a.I('s_endpgm')

def k3(a):
    a.raw(".globl k3_kernel\n.p2align 8\n.type k3_kernel,@function\nk3_kernel:")
    a.reset_state()
    d = opt('diag', '')
    if d:
        kern, lo, n, slot, op = d.split(':'); kern = int(kern); lo = int(lo); n = int(n); slot = int(slot)
        a.I('s_cmp_lg_u32', 's2', 0); a.I('s_cbranch_scc1', 'K3_END')
        a.I('s_load_dwordx2', S(4,2), S(0,2), 104)
        a.I('v_lshlrev_b32', 'v1', 9, 'v0')
        a.I('v_add_u32', 'v2', hex(0x1000000), 'v1')
        a.I('v_add_u32', 'v3', hex(0x1000000 + kern*0x40000 + lo*512 + slot*4), 'v1')
        a.I('global_load_dword', 'v4', 'v2', S(4,2))
        a.I('s_load_dword', 's6', S(4,2), hex(0x100000-4)) if False else None
        for i in range(n//64):
            a.I('global_load_dword', V(8+i), 'v3', S(4,2)); a.I('v_add_u32', 'v3', 64*512, 'v3')
        a.I('v_readfirstlane_b32', 's8', 'v4')
        a.I('v_subrev_u32', 'v4', 's8', 'v4')
        for i in range(n//64): a.I('v_subrev_u32', V(8+i), 's8', V(8+i))
        for i in range(1, n//64): a.I('v_max_i32' if op == 'max' else 'v_min_i32', 'v8', 'v8', V(8+i))
        a.I('v_readlane_b32', 's10', 'v4', 0); a.I('v_readlane_b32', 's11', 'v8', 0)
        for l in range(1, 64):
            a.I('v_readlane_b32', 's12', 'v4', l); a.I('v_readlane_b32', 's13', 'v8', l)
            a.I('s_min_i32', 's10', 's10', 's12'); a.I('s_max_i32' if op == 'max' else 's_min_i32', 's11', 's11', 's13')
        a.I('s_sub_u32', 's11', 's11', 's10')
        a.I('s_min_u32', 's11', 's11', 5000)
        a.I('s_mul_i32', 's11', 's11', 10)
        a.I('s_memrealtime', S(14,2)); a.waitcnt(lg=0)
        a.label('K3_SPIN')
        a.I('s_memrealtime', S(16,2)); a.waitcnt(lg=0)
        a.I('s_sub_u32', 's18', 's16', 's14')
        a.I('s_cmp_lt_u32', 's18', 's11'); a.I('s_cbranch_scc1', 'K3_SPIN')
        a.label('K3_END')
    a.I('s_endpgm')

def main():
    a = Asm()
    hdr = open('concat_heads__spectral_fnet__ssm_conv_h3__prompt.s.ref').read().split('; Override')[0]
    a.raw(hdr.rstrip())
    for k in opt('seq', '12'):
        if k == '1': a.raw(f"; @launch kernel=k1_kernel grid=(256,1,1) block=(512,1,1) lds={K1_LDS}")
        if k == '2': a.raw(f"; @launch kernel=k2_kernel grid=(256,1,1) block=(512,1,1) lds={K2_LDS}")
        if k == '3': a.raw(f"; @launch kernel=k3_kernel grid=(256,1,1) block=(64,1,1) lds=0")
    a.raw('.amdgcn_target "amdgcn-amd-amdhsa--gfx950"\n.text')
    k1(a); k2(a)
    k3(a)
    a.raw(".p2align 8\n.type TBL1,@object\nTBL1:")
    a.raw(T.as_asm(T.t1_d1()) + T.as_asm(T.t1_tw()) + T.as_asm(T.t1_d2()))
    a.raw(".size TBL1, .-TBL1")
    a.raw('.section .rodata,"a"')
    for k in ('k1_kernel', 'k2_kernel', 'k3_kernel'):
        a.raw(f""".p2align 6
.amdhsa_kernel {k}
  .amdhsa_next_free_vgpr 256
  .amdhsa_next_free_sgpr 96
  .amdhsa_accum_offset 256
  .amdhsa_group_segment_fixed_size 0
  .amdhsa_kernarg_size 112
  .amdhsa_user_sgpr_count 2
  .amdhsa_user_sgpr_kernarg_segment_ptr 1
  .amdhsa_system_sgpr_workgroup_id_x 1
.end_amdhsa_kernel""")
    open(sys.argv[1], 'w').write(a.text())
    print("instrs", a.nins, a.stats, "LDS", K1_LDS, K2_LDS)
main()
```

```python
import sys
from emit import Asm, V, S
import tables as T

OPT = dict(a.split('=') for a in sys.argv[2:])
def opt(k, d): return type(d)(OPT.get(k, d))
def flag(k, d):
    v = opt(k, d)
    return '' if v == 'p' else v.replace('_', ' ')

H_OFF = 0
U_OFF = 0x280000
NBYTES = 2048 * 640 * 2
Q_OFF = 2*U_OFF
WS_BYTES = Q_OFF + NBYTES
ST_I = flag('st_i', 'sc1')
ST_O = flag('st_o', 'p')
ST_A = flag('st_a', 'p')
LD_IN = flag('ld_in', 'p')
LD_I = flag('ld_i', 'p')
PF = opt('pf', 0)
def M(*xs): return ' '.join(x for x in xs if x)

def srd_tail(a, d, nbytes):
    a.I('s_mov_b32', S(d+2), hex(nbytes)); a.I('s_mov_b32', S(d+3), '0x20000')

def merge(a, *lists):
    lists = [l for l in lists if l]
    pos = [0]*len(lists)
    total = sum(len(l) for l in lists)
    for _ in range(total):
        k = min((i for i in range(len(lists)) if pos[i] < len(lists[i])), key=lambda i: (pos[i] + 0.5) / len(lists[i]))
        lists[k][pos[k]](); pos[k] += 1

STAMP = opt('stamp', 0)
class Stamps: n = 0
def stamp(a, first=False):
    if not STAMP: return
    if first: Stamps.n = 0
    a.I('s_memrealtime', S(66+2*Stamps.n, 2)); Stamps.n += 1
    assert Stamps.n <= 14
def stamp_out(a, kern, wsreg, dbg=None):
    if not STAMP: return
    a.waitcnt(vm=0)
    stamp(a)
    a.waitcnt(lg=0)
    if STAMP == 2:
        if dbg is None: return
        wg, slot, idxs = dbg
        lab = f'DBG_SKIP_{kern}_{slot}'
        a.I('s_cmp_lg_u32', 's2', wg); a.I('s_cbranch_scc1', lab)
        a.I('s_cmp_lg_u32', 's3', 0); a.I('s_cbranch_scc1', lab)
        a.I('s_load_dwordx2', S(94,2), S(0,2), 96)
        a.I('v_mov_b32', 'v0', 0)
        a.I('s_mov_b64', 'exec', 1)
        a.waitcnt(lg=0)
        for n, i in enumerate(idxs):
            a.I('v_mov_b32', 'v1', S(66+2*(i % Stamps.n)))
            a.I('global_store_dword', 'v0', 'v1', S(94,2), mods=f'offset:{4*(slot+n) + 512*(1-kern)}')
        a.label(lab)
        return
    a.I('s_lshl_b32', 's94', 's2', 3); a.I('s_add_u32', 's94', 's94', 's3'); a.I('s_lshl_b32', 's94', 's94', 6)
    a.I('s_add_u32', 's94', 's94', hex(0x1000000 + kern*0x40000))
    a.I('v_mov_b32', 'v0', 's94')
    a.I('s_mov_b64', 'exec', 1)
    for i in range(Stamps.n):
        a.I('v_mov_b32', 'v1', S(66+2*i))
        a.I('global_store_dword', 'v0', 'v1', S(wsreg,2), mods=f'offset:{4*i}')
    a.I('global_store_dword', 'v0', 'v1', S(wsreg,2), mods='offset:56')
    a.I('v_mov_b32', 'v1', Stamps.n)
    a.I('global_store_dword', 'v0', 'v1', S(wsreg,2), mods='offset:60')

MF = 'v_mfma_f32_16x16x32_bf16'
TR = 'ds_read_b64_tr_b16'
DUMMY = 252

K1_T = 0
K1_X = 17*1024
K1_R = K1_X + 40960
RS = 2568
K1_LDS = K1_R + 16*RS + 64

def k1(a):
    a.raw(".globl k1_kernel\n.p2align 8\n.type k1_kernel,@function\nk1_kernel:")
    a.reset_state()
    a.I('s_getpc_b64', S(4,2))
    a.I('s_load_dwordx2', S(20,2), S(0,2), 48)
    a.I('s_load_dwordx2', S(24,2), S(0,2), 56)
    a.I('s_load_dwordx2', S(36,2), S(0,2), 0)
    a.I('s_load_dwordx2', S(28,2), S(0,2), 64)
    a.I('s_load_dwordx2', S(40,2), S(0,2), 104)
    a.I('s_load_dwordx2', S(32,2), S(0,2), 40)
    a.I('s_cmp_ge_u32', 's2', 256); a.I('s_cbranch_scc1', 'K1_END')
    stamp(a, True)
    a.I('v_lshrrev_b32', 'v2', 6, 'v0')
    a.I('v_and_b32', 'v1', 63, 'v0')
    a.I('v_readfirstlane_b32', 's3', 'v2')
    a.I('s_and_b32', 's16', 's2', 7)
    a.I('s_cmp_lt_u32', 's2', 128); a.I('s_cbranch_scc1', 'K1_A')
    st = a.save()
    k1_b_issue(a)
    a.I('s_branch', 'K1_B2')
    stb = a.save(); nb = Stamps.n
    a.label('K1_A'); a.restore(st); Stamps.n = 1
    k1_a(a)
    a.label('K1_B2'); a.restore(stb); Stamps.n = nb
    k1_b_rest(a)
    a.label('K1_PF'); a.restore(st)
    k1_pf(a)
    a.label('K1_END')
    a.I('s_endpgm')

KR, VR, WR, QB = 12, 34, 52, 176
def k1_b_issue(a):
    a.I('s_cmp_ge_u32', 's3', 5); a.I('s_cbranch_scc1', 'K1_PF')
    a.I('s_bfe_u32', 's17', 's2', hex(3 | (3 << 16)))
    a.I('s_lshl3_add_u32', 's16', 's16', 's17')
    a.I('s_bfe_u32', 's17', 's2', hex(6 | (1 << 16)))
    a.I('s_mul_i32', 's17', 's17', 5)
    a.I('s_add_u32', 's17', 's17', 's3')
    a.I('s_lshl_b32', 's17', 's17', 6)
    a.I('s_lshl_b32', 's16', 's16', 5)
    a.I('v_and_b32', 'v3', 15, 'v1')
    a.I('v_lshrrev_b32', 'v4', 4, 'v1')
    a.I('v_lshl_add_u32', 'v5', 'v3', 2, 's17')
    a.I('v_lshl_add_u32', 'v6', 'v4', 3, 's16')
    a.I('v_mul_u32_u24', 'v7', 1280, 'v6')
    a.I('v_lshl_add_u32', 'v7', 'v5', 1, 'v7')
    a.I('v_subrev_u32', 'v8', 3840, 'v7')
    a.I('s_movk_i32', 's18', 5120)
    srd_tail(a, 20, NBYTES); srd_tail(a, 24, NBYTES)
    for j in range(8):
        a.I('buffer_load_dwordx2', V(KR+6+2*j,2), 'v7', S(20,4), 's18' if j >= 4 else 0, mods=M(f'offen offset:{1280*(j%4)}', LD_IN))
    for j in range(3):
        a.I('buffer_load_dwordx2', V(KR+2*j,2), 'v8', S(20,4), 0, mods=M(f'offen offset:{1280*j}', LD_IN))
    a.I('v_lshlrev_b32', 'v9', 3, 'v5')
    srd_tail(a, 28, 640*8)
    a.I('buffer_load_dwordx4', V(WR,4), 'v9', S(28,4), 0, mods=M('offen', LD_IN))
    a.I('buffer_load_dwordx4', V(WR+4,4), 'v9', S(28,4), 0, mods=M('offen offset:16', LD_IN))
    for j in range(8):
        a.I('buffer_load_dwordx2', V(VR+2*j,2), 'v7', S(24,4), 's18' if j >= 4 else 0, mods=M(f'offen offset:{1280*(j%4)}', LD_IN))
    a.I('v_lshrrev_b32', 'v3', 3, 'v1'); a.I('v_and_b32', 'v4', 7, 'v1')
    a.I('v_mul_u32_u24', 'v9', 1280, 'v3'); a.I('v_lshl_add_u32', 'v9', 'v4', 4, 'v9')
    a.I('s_mul_i32', 's19', 's16', 1280); a.I('s_lshl1_add_u32', 's19', 's17', 's19')
    srd_tail(a, 32, NBYTES)
    for j in range(4):
        a.I('buffer_load_dwordx4', V(QB+4*j,4), 'v9', S(32,4), 's19', mods=M('offen', LD_IN))
        if j < 3: a.I('s_add_u32', 's19', 's19', 8*1280)
    stamp(a)

def k1_pf(a):
    a.I('s_bfe_u32', 's17', 's2', hex(3 | (4 << 16)))
    a.I('s_mul_i32', 's17', 's17', 3); a.I('s_add_u32', 's17', 's17', 's3'); a.I('s_sub_u32', 's17', 's17', 5)
    a.I('s_mov_b32', 's6', 'K2_CODE_END-k1_kernel-4'); a.I('s_mov_b32', 's7', '0x20000')
    a.I('v_lshlrev_b32', 'v3', 4, 'v1')
    a.I('s_lshl_b32', 's18', 's17', 10)
    if opt('cpf', 1):
        a.I('buffer_load_dwordx4', V(DUMMY,4), 'v3', S(4,4), 's18', mods='offen', notrack=True)
    if PF:
        a.I('s_load_dwordx2', S(52,2), S(0,2), 72)
        a.I('s_lshr_b32', 's60', 's16', 1); a.I('s_lshl1_add_u32', 's60', 's16', 's60')
        srd_tail(a, 52, NBYTES)
        a.I('s_lshl_b32', 's61', 's60', 17); a.I('s_lshl_b32', 's62', 's17', 13); a.I('s_add_u32', 's61', 's61', 's62')
        a.I('s_add_u32', 's62', 's61', 4096)
        a.waitcnt(vm=0)
        for j in range(8):
            a.I('buffer_load_dwordx4', V(DUMMY,4), 'v3', S(52,4), 's61' if j < 4 else 's62', mods=M(f'offen offset:{1024*(j%4)}', LD_IN), notrack=True)

def k1_b_rest(a):
    KU, WU, KS, TMP, O = 60, 104, 120, 152, 160
    a.I('v_lshlrev_b32', 'v10', 12, 'v5')
    a.I('v_lshl_add_u32', 'v10', 'v6', 1, 'v10')
    srd_tail(a, 40, WS_BYTES)
    for ch in range(4): a.I('s_mov_b32', S(44+ch), hex(U_OFF + 4096*ch))
    a.I('s_mov_b32', 's48', '0xffff0000')
    a.I('v_lshlrev_b32', 'v11', 15, 'v4'); a.I('v_lshl_add_u32', 'v11', 'v3', 4, 'v11')
    a.I('s_lshl_b32', 's49', 's17', 12); a.I('s_lshl4_add_u32', 's49', 's16', 's49'); a.I('s_add_u32', 's49', 's49', hex(Q_OFF))
    def unpack(dst_lo, dst_hi, src):
        a.I('v_lshlrev_b32', V(dst_lo), 16, V(src)); a.I('v_and_b32', V(dst_hi), 's48', V(src))
    def unk(j):
        unpack(KU+4*j, KU+4*j+1, KR+2*j); unpack(KU+4*j+2, KU+4*j+3, KR+2*j+1)
    for j in list(range(3, 11)) + [0, 1, 2]: unk(j)
    stamp(a)
    for ch in range(4):
        unpack(WU+0*4+ch, WU+1*4+ch, WR+2*ch)
        unpack(WU+2*4+ch, WU+3*4+ch, WR+2*ch+1)
    for j in range(8):
        for p in range(2):
            a.I('v_pk_mul_f32', V(KS+4*j+2*p, 2), V(KU+4*j+2*p,2), V(WU+3*4+2*p,2))
        for t in range(1, 4):
            for p in range(2):
                d = V(KS+4*j+2*p, 2)
                a.I('v_pk_fma_f32', d, V(KU+4*(j+t)+2*p,2), V(WU+(3-t)*4+2*p,2), d)
    stamp(a)
    for j in range(8):
        t = TMP + 4*(j & 1)
        unpack(t, t+1, VR+2*j); unpack(t+2, t+3, VR+2*j+1)
        for p in range(2):
            d = V(KS+4*j+2*p, 2)
            a.I('v_pk_mul_f32', d, d, V(t+2*p,2))
        if j & 1:
            for ch in range(4):
                a.I('v_cvt_pk_bf16_f32', V(O+4*ch+j//2), V(KS+4*(j-1)+ch), V(KS+4*j+ch))
    for ch in range(4):
        a.I('buffer_store_dwordx4', V(O+4*ch,4), 'v10', S(40,4), S(44+ch), mods=M('offen', ST_I))
    for j in range(4):
        a.I('buffer_store_dwordx4', V(QB+4*j,4), 'v11', S(40,4), 's49', mods=M(f'offen offset:{128*j}', ST_I))
    stamp(a)
    stamp_out(a, 0, 40, (128, 4, [0, 2, -2, -1]))
    a.I('s_endpgm')

def k1_a(a):
    a.I('s_lshr_b32', 's17', 's2', 4)
    a.I('s_lshl3_add_u32', 's16', 's17', 's16')
    a.I('s_sub_u32', 's18', 128, 's16')
    a.I('s_cmp_eq_u32', 's16', 0)
    a.I('s_cselect_b32', 's18', 64, 's18')
    a.I('s_and_b32', 's19', 's3', 3)
    a.I('s_lshr_b32', 's6', 's3', 2)
    a.I('v_lshrrev_b32', 'v4', 3, 'v1')
    a.I('v_and_b32', 'v5', 7, 'v1')
    a.I('v_and_b32', 'v6', 2, 'v4')
    a.I('s_and_b32', 's7', 's19', 1); a.I('s_lshl_b32', 's7', 's7', 2)
    a.I('v_xor_b32', 'v5', 'v5', 'v6')
    a.I('v_xor_b32', 'v5', 's7', 'v5')
    a.I('v_mul_u32_u24', 'v6', 128*1280, 'v4')
    a.I('v_lshl_add_u32', 'v6', 'v5', 4, 'v6')
    a.I('s_cmp_ge_u32', 's19', 2)
    a.I('s_cselect_b32', 's30', 's18', 's16')
    a.I('s_lshl_b32', 's31', 's7', 8)
    a.I('s_add_u32', 's30', 's30', 's31')
    a.I('s_lshl1_add_u32', 's30', 's30', 's6')
    a.I('s_mul_i32', 's30', 's30', 640)
    a.I('s_lshl1_add_u32', 's31', 's19', 's6')
    a.I('s_mul_i32', 's31', 's31', 5120)
    srd_tail(a, 36, NBYTES)
    for i in range(5):
        a.I('s_add_u32', 'm0', 's31', K1_X + i*(1024-128))
        a.I('buffer_load_dwordx4', 'v6', S(36,4), 's30', mods=M(f'offen offset:{128*i}', LD_IN, 'lds'), tag='x')
    a.I('s_add_u32', 's24', 's4', 'TBL1-k1_kernel-4'); a.I('s_addc_u32', 's25', 's5', 0)
    srd_tail(a, 24, 17*1024)
    a.I('v_lshlrev_b32', 'v3', 4, 'v1')
    a.I('s_lshl_b32', 's21', 's3', 10)
    a.I('s_add_u32', 'm0', 's21', K1_T)
    a.I('s_add_u32', 's22', 's21', 8192)
    a.I('buffer_load_dwordx4', 'v3', S(24,4), 's21', mods='offen lds', tag='tbl')
    a.I('s_add_u32', 'm0', 's22', K1_T)
    a.I('s_movk_i32', 's23', 16*1024)
    a.I('buffer_load_dwordx4', 'v3', S(24,4), 's22', mods='offen lds', tag='tbl')
    a.I('s_mov_b32', 'm0', K1_T + 16*1024)
    a.I('buffer_load_dwordx4', 'v3', S(24,4), 's23', mods='offen lds', tag='tbl')
    stamp(a)
    a.I('s_bfe_u32', 's17', 's2', hex(3 | (1 << 16)))
    a.I('s_mul_i32', 's32', 's6', 5120)
    AL = 8
    TM = 16
    a.I('v_and_b32', 'v4', 15, 'v1')
    a.I('v_lshrrev_b32', 'v5', 4, 'v1')
    a.I('v_cmp_gt_u32', 'vcc', 2, 'v5')
    a.I('v_mov_b32', 'v6', 's18')
    a.I('v_mov_b32', 'v7', 's16')
    a.I('v_cndmask_b32', 'v6', 'v6', 'v7', 'vcc')
    a.I('v_and_b32', 'v7', 1, 'v5')
    a.I('v_lshl_add_u32', 'v6', 'v7', 10, 'v6')
    a.I('v_mul_u32_u24', 'v6', 'v6', 'v4')
    a.I('s_cmp_lg_u32', 's16', 0); a.I('s_cselect_b32', 's33', 's17', 0)
    a.I('s_mul_i32', 's34', 's33', 512); a.I('s_mul_i32', 's35', 's33', 1536)
    a.I('v_mov_b32', 'v7', 's35'); a.I('v_mov_b32', V(TM), 's34')
    a.I('v_cndmask_b32', 'v7', 'v7', V(TM), 'vcc')
    a.I('v_add_u32', 'v6', 'v6', 'v7')
    a.I('v_cvt_f32_u32', 'v6', 'v6')
    a.I('v_mul_f32', 'v6', '0x3a000000', 'v6')
    a.I('v_cvt_f32_u32', 'v7', 'v4')
    a.I('v_mul_f32', 'v7', '0x3d800000', 'v7')
    a.I('s_cmp_eq_u32', 's17', 0); a.I('s_cselect_b32', 's34', -1, 0); a.I('s_cselect_b32', 's35', 0, -1)
    a.I('s_cmp_lg_u32', 's16', 0); a.I('s_cselect_b32', 's34', -1, 's34'); a.I('s_cselect_b32', 's35', -1, 's35')
    a.I('v_mov_b32', V(TM), 's35'); a.I('v_mov_b32', V(TM+1), 's34')
    a.I('v_cndmask_b32', 'v2', V(TM), V(TM+1), 'vcc')
    for e in range(8):
        a.I('v_cos_f32', V(TM+e), 'v6')
        a.I('v_sin_f32', V(TM+8+e), '-v6')
        if e < 7: a.I('v_add_f32', 'v6', 'v6', 'v7')
    for h in range(2):
        for j in range(4):
            a.I('v_cvt_pk_bf16_f32', V(AL+4*h+j), V(TM+8*h+2*j), V(TM+8*h+2*j+1))
    for j in range(8):
        a.I('v_and_b32', V(AL+j), 'v2', V(AL+j))
    VA, VW, VD, VD2, VS = 4, 5, 6, 7, 2
    a.I('v_lshrrev_b32', V(TM), 4, 'v1')
    a.I('v_bfe_u32', V(TM+1), 'v1', 2, 2)
    a.I('v_and_b32', V(TM+2), 3, 'v1')
    a.I('v_and_b32', V(TM+3), 15, 'v1')
    a.I('v_bfe_u32', V(TM+4), 'v1', 3, 2)
    a.I('v_xor_b32', V(TM+4), 's19', V(TM+4))
    a.I('v_mul_u32_u24', V(VA), 10240, V(TM))
    a.I('v_lshl_add_u32', V(VA), V(TM+1), 7, V(VA))
    a.I('v_lshl_add_u32', V(VA), V(TM+4), 5, V(VA))
    a.I('v_lshl_add_u32', V(VA), V(TM+2), 3, V(VA))
    a.I('v_add_u32', V(VA), 's32', V(VA))
    a.I('v_mul_u32_u24', V(VW), RS, V(TM+3))
    a.I('v_lshl_add_u32', V(VW), V(TM), 3, V(VW))
    a.I('s_lshl_b32', 's33', 's19', 5); a.I('s_mul_i32', 's34', 's6', 640); a.I('s_add_u32', 's33', 's33', 's34')
    a.I('v_add_u32', V(VW), 's33', V(VW))
    a.I('v_lshrrev_b32', V(TM+5), 1, V(TM))
    a.I('v_mul_u32_u24', V(VD), 1280, V(TM+5))
    a.I('v_and_b32', V(TM+5), 1, V(TM))
    a.I('v_lshl_add_u32', V(TM+5), V(TM+5), 3, V(TM+1))
    a.I('v_mul_u32_u24', V(TM+5), 80, V(TM+5))
    a.I('v_add_u32', V(VD), V(VD), V(TM+5))
    a.I('s_mul_i32', 's33', 's3', 2*RS)
    a.I('v_add_u32', V(VD), 's33', V(VD))
    a.I('v_and_b32', V(TM+5), 1, V(TM+2))
    a.I('v_lshl_add_u32', V(VD2), V(TM+5), 3, V(VD))
    a.I('v_lshl_add_u32', V(VD), V(TM+2), 3, V(VD))
    a.I('v_lshrrev_b32', V(TM+5), 1, V(TM+3))
    a.I('v_lshlrev_b32', V(VS), 6, V(TM+5))
    a.I('v_and_b32', V(TM+5), 1, V(TM)); a.I('v_lshl_add_u32', V(VS), V(TM+5), 5, V(VS))
    a.I('v_and_b32', V(TM+5), 1, V(TM+3)); a.I('v_lshl_add_u32', V(VS), V(TM+5), 4, V(VS))
    a.I('v_lshrrev_b32', V(TM+5), 1, V(TM)); a.I('v_lshl_add_u32', V(VS), V(TM+5), 3, V(VS))
    VS2 = 1
    a.I('v_cmp_gt_u32', 'vcc', 8, V(TM+3))
    a.I('v_mov_b32', V(TM+5), '0x7ff00000')
    a.I('v_cndmask_b32', V(VS2), V(TM+5), V(VS), 'vcc')
    srd_tail(a, 40, WS_BYTES)
    a.I('s_lshl_b32', 's33', 's3', 8); a.I('s_lshl_b32', 's34', 's17', 6)
    a.I('s_add_u32', 's33', 's33', 's34'); a.I('s_add_u32', 's33', 's33', 's16')
    a.I('s_mul_i32', 's44', 's33', 1280); a.I('s_add_u32', 's45', 's44', 128*1280)
    assert H_OFF == 0
    D1B, TW, D2B = 48, 56, 80
    stamp(a)
    a.wait_tag('tbl'); stamp(a); a.I('s_barrier')
    stamp(a)
    AF, AD, PK = 116, 136, 176
    for i in range(5):
        for h in range(2):
            a.I(TR, V(AF+4*i+2*h,2), V(VA), mods=f'offset:{K1_X+1024*i+512*h}')
    tl = [(lambda i=i: a.I('ds_read_b128', V(D1B+4*i,4), 'v3', mods=f'offset:{K1_T+1024*i}')) for i in range(17)]
    def fin(i):
        for cp in range(2):
            d = AD+8*i+4*cp; p = PK+4*i+2*cp
            a.I('v_cvt_pk_bf16_f32', V(p), V(d), V(d+1)); a.I('v_cvt_pk_bf16_f32', V(p+1), V(d+2), V(d+3))
            a.I('ds_write_b64', V(VW), V(p,2), mods=f'offset:{K1_R+1280*cp+128*i}')
    for i in range(7):
        if i < 5:
            for cp in range(2):
                a.I(MF, V(AD+8*i+4*cp,4), V(AF+4*i,4), V(AL+4*cp,4), 0)
        if i == 4:
            for t in tl[:2]: t()
        if i >= 2: fin(i-2)
    a.barrier()
    stamp(a)
    DF, D1, WP, D2, OP, TT = 116, 140, 188, 212, 236, 16
    for r in range(2):
        for tau in range(3):
            for h in range(2):
                a.I(TR, V(DF+12*r+4*tau+2*h,2), V(VD2 if tau == 2 else VD), mods=f'offset:{K1_R+RS*r+320*h+32*tau}')
    def d1(r):
        return [(lambda tau=tau, cp=cp: a.I(MF, V(D1+24*r+8*tau+4*cp,4), V(DF+12*r+4*tau,4), V(D1B+4*cp,4), 0)) for tau in range(3) for cp in range(2)]
    def twd(r):
        l = []
        for tau in range(3):
            re = D1+24*r+8*tau; im = re+4; tc = TW+8*tau; ts = tc+4; t = TT+8*(tau & 1)+16*r
            for j in range(4): l.append(lambda j=j, re=re, tc=tc, t=t: a.I('v_mul_f32', V(t+j), V(re+j), V(tc+j)))
            for j in range(4): l.append(lambda j=j, im=im, tc=tc, t=t: a.I('v_mul_f32', V(t+4+j), V(im+j), V(tc+j)))
            for j in range(4): l.append(lambda j=j, im=im, ts=ts, t=t: a.I('v_fmac_f32', V(t+j), V(im+j), V(ts+j)))
            for j in range(4): l.append(lambda j=j, re=re, ts=ts, t=t: a.I('v_fma_f32', V(t+4+j), '-'+V(re+j), V(ts+j), V(t+4+j)))
            for j in range(4): l.append(lambda j=j, t=t, tau=tau: a.I('v_cvt_pk_bf16_f32', V(WP+12*r+4*tau+j), V(t+2*j), V(t+2*j+1)))
        return l
    def d2(r):
        return [(lambda tau=tau, jt=jt: a.I(MF, V(D2+12*r+4*jt,4), V(WP+12*r+4*tau,4), V(D2B+12*tau+4*jt,4), 0 if tau == 0 else V(D2+12*r+4*jt,4)))
                for tau in range(3) for jt in range(3)]
    def outp(r):
        l = []
        for jt in range(3):
            d = D2+12*r+4*jt; p = OP+6*r+2*jt
            l.append(lambda d=d, p=p: a.I('v_cvt_pk_bf16_f32', V(p), V(d), V(d+1)))
            l.append(lambda d=d, p=p: a.I('v_cvt_pk_bf16_f32', V(p+1), V(d+2), V(d+3)))
            l.append(lambda p=p, jt=jt: a.I('buffer_store_dwordx2', V(p,2), V(VS2 if jt == 2 else VS), S(40,4), S(44+r), mods=M(f'offen offset:{512*jt}', ST_I)))
        return l
    merge(a, d1(0) + d1(1), tl[2:])
    merge(a, twd(0))
    merge(a, d2(0), twd(1))
    merge(a, d2(1), outp(0))
    merge(a, outp(1))
    stamp(a)
    stamp_out(a, 0, 40, (0, 0, [0, 4, -2, -1]))
    a.I('s_endpgm')

CR = 8480
K2_A = 0
K2_Y = 16384
YS = 5*512 + 64
K2_C = K2_Y + 8*YS
K2_LDS = K2_C + 8*CR
PARTS = [
    dict(groups=[[0,1,2,3,4,5,6,7],[8,9,10,11],[12,13,14,15],[16,17]], first=0, a2=True),
    dict(groups=[[17,18,19,20,21],[22,23,24,25]], first=18, a2=False),
    dict(groups=[[25,26,27,28,29],[30,31]], first=26, a2=False),
]
A2C, VA2, VAO = 8, 56, 60

def k2(a):
    a.raw(".globl k2_kernel\n.p2align 8\n.type k2_kernel,@function\nk2_kernel:")
    a.reset_state()
    a.I('s_load_dwordx2', S(28,2), S(0,2), 104)
    a.I('s_load_dwordx2', S(24,2), S(0,2), 72)
    a.I('s_load_dwordx2', S(10,2), S(0,2), 80)
    a.I('s_load_dwordx2', S(40,2), S(0,2), 88)
    a.I('s_cmp_ge_u32', 's2', 256); a.I('s_cbranch_scc1', 'K2_END')
    stamp(a, True)
    a.I('v_lshrrev_b32', 'v2', 6, 'v0')
    a.I('v_and_b32', 'v1', 63, 'v0')
    a.I('v_readfirstlane_b32', 's3', 'v2')
    a.I('s_and_b32', 's16', 's2', 7)
    a.I('s_lshr_b32', 's17', 's2', 5)
    a.I('s_bfe_u32', 's19', 's2', hex(3 | (2 << 16)))
    srd_tail(a, 28, WS_BYTES)
    a.I('s_and_b32', 's18', 's16', 1)
    a.I('s_add_u32', 's18', 's18', 's17')
    a.I('s_cmp_ge_u32', 's18', 8); a.I('s_cbranch_scc1', 'K2_P3')
    st3 = a.save()
    a.I('s_mul_i32', 's16', 's16', 15); a.I('s_add_u32', 's16', 's16', 1); a.I('s_lshr_b32', 's16', 's16', 1)
    a.I('s_add_u32', 's16', 's16', 's17')
    a.I('s_mul_i32', 's17', 's16', 43); a.I('s_lshr_b32', 's17', 's17', 7)
    a.I('s_mul_i32', 's18', 's17', 3); a.I('s_sub_u32', 's18', 's16', 's18')
    a.I('s_lshl2_add_u32', 's17', 's17', 's19')
    a.I('v_lshlrev_b32', 'v3', 4, 'v1')
    a.I('s_lshl3_add_u32', 's20', 's17', 's3')
    a.I('s_lshl_b32', 's21', 's20', 12)
    a.I('s_add_u32', 's12', 's21', hex(U_OFF))
    a.I('s_mul_i32', 's22', 's3', CR)
    a.I('s_add_u32', 's22', 's22', K2_C)
    a.I('s_add_u32', 's52', 's22', 32); a.I('s_add_u32', 's53', 's22', 32+4096+256)
    srd_tail(a, 24, NBYTES)
    a.I('s_cmp_eq_u32', 's18', 1); a.I('s_cbranch_scc1', 'K2_P1')
    a.I('s_cmp_eq_u32', 's18', 0); a.I('s_cbranch_scc1', 'K2_P0')
    st = a.save()
    for n, p in enumerate((2, 1, 0)):
        if n:
            a.raw(".p2align 6"); a.label(f'K2_P{p}')
            a.restore(st)
        Stamps.n = 1
        k2_part(a, p)
    a.raw(".p2align 6"); a.label('K2_P3'); a.restore(st3); Stamps.n = 1
    k2_p3(a)
    a.label('K2_END')
    a.I('s_endpgm')
    a.label('K2_CODE_END')

def a2_issue(a, nun):
    a.I('v_lshrrev_b32', 'v4', 3, 'v1'); a.I('v_and_b32', 'v5', 7, 'v1'); a.I('v_and_b32', 'v6', 2, 'v4')
    a.I('v_xor_b32', 'v5', 'v5', 'v6')
    a.I('v_mul_u32_u24', 'v6', 1280, 'v4')
    a.I('v_lshl_add_u32', 'v6', 'v5', 4, 'v6')
    a.I('v_xor_b32', 'v7', 64, 'v6')
    a.I('s_lshl3_add_u32', 's47', 's45', 's3')
    a.I('s_mul_i32', 's47', 's47', 16*1280); a.I('s_lshl_b32', 's48', 's46', 7); a.I('s_add_u32', 's47', 's47', 's48')
    a.I('s_add_u32', 's48', 's47', 8*1280)
    a.I('s_lshl_b32', 's49', 's3', 11)
    for u in range(nun):
        a.I('s_add_u32', 'm0', 's49', K2_A + u*(16384-128))
        a.I('buffer_load_dwordx4', 'v6', S(28,4), 's47', mods=M(f'offen offset:{128*u}', LD_I, 'lds'), tag=f'a2{u}')
        a.I('s_add_u32', 'm0', 's49', K2_A + 1024 + u*(16384-128))
        a.I('buffer_load_dwordx4', 'v7', S(28,4), 's48', mods=M(f'offen offset:{128*u}', LD_I, 'lds'), tag=f'a2{u}')

def a2_setup(a):
    CT = 64
    a.I('v_and_b32', 'v4', 15, 'v1'); a.I('v_lshl_add_u32', 'v4', 'v2', 4, 'v4')
    a.I('v_cvt_f32_u32', 'v5', 'v4'); a.I('v_mul_f32', 'v5', '0x3c000000', 'v5')
    a.I('v_lshrrev_b32', V(52), 4, 'v1'); a.I('v_cvt_f32_u32', 'v6', V(52))
    a.I('v_mul_f32', 'v6', 'v6', 'v5'); a.I('v_mul_f32', 'v6', '0x41000000', 'v6')
    a.I('v_mul_f32', 'v7', '0x42000000', 'v5'); a.I('v_add_f32', 'v7', 'v7', 'v6')
    for e in range(8):
        a.I('v_cos_f32', V(CT+e), 'v6'); a.I('v_cos_f32', V(CT+8+e), 'v7')
        a.I('v_sin_f32', V(CT+16+e), 'v6'); a.I('v_sin_f32', V(CT+24+e), 'v7')
        if e < 7: a.I('v_add_f32', 'v6', 'v6', 'v5'); a.I('v_add_f32', 'v7', 'v7', 'v5')
    a.I('v_mul_u32_u24', V(VAO), 16*2560, 'v4')
    a.I('v_lshl_add_u32', V(VAO), V(52), 4, V(VAO))
    a.I('v_lshlrev_b32', 'v4', 31, 'v4'); a.I('v_or_b32', 'v4', 1.0, 'v4')
    a.I('v_cmp_gt_u32', 'vcc', 16, 'v1')
    a.I('v_cndmask_b32', V(CT+16), V(CT+16), 'v4', 'vcc')
    for j in range(16): a.I('v_cvt_pk_bf16_f32', V(A2C+j), V(CT+2*j), V(CT+2*j+1))
    a.I('v_bfe_u32', V(53), 'v1', 2, 2); a.I('v_and_b32', V(54), 3, 'v1'); a.I('v_bfe_u32', V(55), 'v1', 3, 2)
    a.I('v_lshlrev_b32', V(VA2), 10, V(52))
    a.I('v_lshl_add_u32', V(VA2), V(53), 7, V(VA2))
    a.I('v_lshl_add_u32', V(VA2), V(54), 3, V(VA2))
    a.I('v_lshl_add_u32', V(VA2), V(55), 5, V(VA2))
    for tau in range(1, 4): a.I('v_xor_b32', V(VA2+tau), 32*tau, V(VA2))
    a.I('s_mul_i32', 's47', 's45', 2560); a.I('s_lshl_b32', 's48', 's46', 7); a.I('s_add_u32', 's47', 's47', 's48')

def a2_lists(a, u, AF, AD, PO, base):
    rd = [(lambda st=st, tau=tau, h=h: a.I(TR, V(AF+16*st+4*tau+2*h,2), V(VA2+tau), mods=f'offset:{base+4096*st+512*h}'))
          for st in range(4) for tau in range(4) for h in range(2)]
    mm = [(lambda st=st, tau=tau: a.I(MF, V(AD+4*tau,4), V(AF+16*st+4*tau,4), V(A2C+4*st,4), 0 if st == 0 else V(AD+4*tau,4)))
          for st in range(4) for tau in range(4)]
    ou = []
    for pr in range(2):
        for tb in range(2):
            d = AD+4*(2*pr+tb); o = PO+4*pr+2*tb
            ou.append(lambda d=d, o=o: a.I('v_cvt_pk_bf16_f32', V(o), V(d), V(d+1)))
            ou.append(lambda d=d, o=o: a.I('v_cvt_pk_bf16_f32', V(o+1), V(d+2), V(d+3)))
        ou.append(lambda pr=pr: a.I('buffer_store_dwordx4', V(PO+4*pr,4), V(VAO), S(40,4), 's47', mods=M(f'offen offset:{64*pr+128*u}', ST_A)))
    return rd, mm, ou

def k2_p3(a):
    a.I('s_lshr_b32', 's45', 's16', 1); a.I('s_lshl2_add_u32', 's45', 's45', 's19')
    a.I('s_mov_b32', 's46', 5)
    a2_issue(a, 5)
    stamp(a)
    a2_setup(a)
    srd_tail(a, 40, 2*NBYTES)
    stamp(a)
    L = []
    for u in range(5):
        L.append(a2_lists(a, u, 64 + 64*(u & 1), 192 + 16*(u & 1), 224 + 8*(u & 1), K2_A + 16384*(u % 4)))
    def bump():
        for tau in range(4): a.I('v_add_u32', V(VA2+tau), 65536, V(VA2+tau))
    a.wait_tag('a21'); a.I('s_barrier')
    stamp(a)
    merge(a, L[0][0])
    merge(a, L[0][1], L[1][0])
    a.wait_tag('a24'); a.I('s_barrier')
    stamp(a)
    for u in range(1, 5):
        nxt = L[u+1][0] if u < 4 else []
        if u == 3: nxt = [bump] + nxt
        merge(a, L[u][1][:2]); merge(a, L[u][1][2:], L[u-1][2] + nxt)
    merge(a, L[4][2])
    stamp(a)
    stamp_out(a, 1, 28)
    a.I('s_endpgm')

def k2_part(a, p):
    P = PARTS[p]
    tiles = [t for g in P['groups'] for t in g]
    jmax = max(tiles)
    nkb = (64*(jmax+1)*2 + 1023)//1024
    quads = []; gq = []
    for g in P['groups']:
        v = [t for t in g if t >= P['first']]
        gq.append([])
        for i in range(0, len(v), 4):
            gq[-1].append(len(quads)); quads.append(v[i:i+4])
    nq = len(quads)
    if P['a2']:
        a.I('s_mul_i32', 's45', 's17', 205); a.I('s_lshr_b32', 's45', 's45', 10)
        a.I('s_mul_i32', 's46', 's45', 5); a.I('s_sub_u32', 's46', 's17', 's46')
        a2_issue(a, 1)
    hb = 32; ub = 32 + 4096 + 256
    if p == 0: order = [('u',0),('h',0),('u',1),('h',1),('u',2),('h',2)]
    else:
        order = []
        for i in range(nkb): order += [('u', nkb-1-i), ('h', i)]
        if p == 1: order = [('u',2),('h',0),('u',1),('h',1),('u',0),('h',2),('u',3),('h',3)]
    assert sorted(order) == sorted([(x, i) for x in 'hu' for i in range(nkb)])
    for (x, i) in order:
        a.I('s_mov_b32', 'm0', 's52' if x == 'h' else 's53')
        if x == 'h': a.I('buffer_load_dwordx4', 'v3', S(24,4), 's21', mods=M(f'offen offset:{1024*i}', LD_IN, 'lds'), tag=f'{x}{i}')
        else: a.I('buffer_load_dwordx4', 'v3', S(28,4), 's12', mods=M(f'offen offset:{1024*i}', LD_I, 'lds'), tag=f'{x}{i}')
    a.I('s_load_dword', 's14', S(24,2), 's21')
    a.I('s_lshl_b32', 's23', 's20', 1); a.I('s_and_b32', 's23', 's23', -4)
    a.I('s_load_dword', 's15', S(10,2), 's23')
    QR = 24
    VO = 44
    a.I('v_and_b32', 'v4', 3, 'v1')
    a.I('v_lshrrev_b32', 'v5', 3, 'v1')
    a.I('v_lshl_add_u32', 'v5', 'v4', 6, 'v5')
    a.I('v_lshl_add_u32', 'v5', 'v2', 3, 'v5')
    a.I('v_and_b32', 'v6', 4, 'v1'); a.I('v_lshlrev_b32', 'v6', 1, 'v6')
    a.I('v_lshl_add_u32', 'v6', 'v5', 4, 'v6')
    a.I('s_lshl_b32', 's54', 's17', 15)
    for qi, q in enumerate(quads):
        a.I('s_add_u32', 's55', 's54', hex(Q_OFF + q[0]*1024))
        a.I('buffer_load_dwordx2', V(QR+4*qi+2,2), 'v6', S(28,4), 's55', mods=M('offen', LD_I))
    stamp(a)
    srd_tail(a, 40, 2*NBYTES)
    a.I('v_mul_u32_u24', 'v6', 2560, 'v5')
    a.I('v_and_b32', 'v7', 7, 'v1')
    a.I('v_mov_b32', V(46), '0x7ff00000')
    lens = sorted(set(len(q) for q in quads))
    assert len(lens) <= 2
    vo = {}
    for n, ln in enumerate(lens):
        a.I('v_cmp_gt_u32', 'vcc', ln, 'v7')
        a.I('v_cndmask_b32', V(VO+n), V(46), 'v6', 'vcc')
        vo[ln] = VO+n
    a.I('s_lshl_b32', 's54', 's17', 4)
    for qi, q in enumerate(quads): a.I('s_add_u32', S(56+qi), 's54', hex(q[0]*64*2560 + 1280))
    a.I('v_mov_b32', 'v4', 0)
    a.I('v_lshl_add_u32', 'v5', 'v1', 2, 's22')
    a.I('ds_write_b32', 'v5', 'v4', mods=f'offset:{ub-256}')
    a.I('v_lshl_add_u32', 'v6', 'v7', 2, 's22')
    a.I('ds_write_b32', 'v6', 'v4')
    if P['a2']: a2_setup(a)
    T0 = 52
    HF, UF = 64, 128
    VH, VU, VYW, VYR = 4, 5, 6, 7
    a.I('v_lshrrev_b32', V(T0), 4, 'v1')
    a.I('v_bfe_u32', V(T0+1), 'v1', 2, 2)
    a.I('v_and_b32', V(T0+2), 3, 'v1')
    a.I('v_add_u32', V(VH), V(T0+1), V(T0+2))
    a.I('v_lshl_add_u32', V(VH), V(T0), 3, V(VH))
    a.I('s_add_u32', 's23', 's22', hb-24)
    a.I('v_lshl_add_u32', V(VH), V(VH), 3, 's23')
    a.I('v_lshlrev_b32', V(VU), 2, V(T0+2))
    a.I('v_sub_u32', V(VU), V(VU), V(T0+1))
    a.I('v_lshlrev_b32', V(T0+3), 3, V(T0))
    a.I('v_sub_u32', V(VU), V(VU), V(T0+3))
    a.I('s_add_u32', 's23', 's22', ub-8)
    a.I('v_lshl_add_u32', V(VU), V(VU), 3, 's23')
    a.I('s_mul_i32', 's23', 's3', YS)
    a.I('v_lshl_add_u32', V(VYW), 'v1', 3, 's23')
    a.I('v_and_b32', V(T0+3), 1, V(T0+2))
    a.I('v_lshl_add_u32', V(T0+3), V(T0+3), 2, V(T0+1))
    a.I('v_mul_u32_u24', V(VYR), YS, V(T0+3))
    a.I('v_lshrrev_b32', V(T0+3), 1, V(T0+2))
    a.I('v_lshl_add_u32', V(T0+3), V(T0), 1, V(T0+3))
    a.I('v_lshl_add_u32', V(T0+3), 'v2', 3, V(T0+3))
    a.I('v_lshl_add_u32', V(VYR), V(T0+3), 3, V(VYR))
    a.I('s_lshl_b32', 's14', 's14', 16)
    a.I('s_bitcmp1_b32', 's20', 0)
    a.I('s_cselect_b32', 's23', 0, 16)
    a.I('s_lshl_b32', 's15', 's15', 's23'); a.I('s_and_b32', 's15', 's15', '0xffff0000')
    a.I('v_mov_b32', V(T0), 's14'); a.I('v_add_f32', V(T0), 's15', V(T0))
    a.I('v_cvt_pk_bf16_f32', V(47), V(T0), V(T0))
    a.I('v_mov_b32', V(46), 's52')
    a.I('s_mov_b32', 's55', '0xffff0000')
    stamp(a)
    pend = []
    if P['a2']:
        rd, mm, ou = a2_lists(a, 0, 128, 208, 224, K2_A)
        a.wait_tag('a20'); a.I('s_barrier')
        stamp(a)
        merge(a, rd[:12]); merge(a, rd[12:], mm[:10]); merge(a, mm[10:])
        pend = ou
    else: stamp(a)
    stamp(a)
    if STAMP: a.wait_tag('h0'); stamp(a)
    if p == 0:
        accs = list(range(100, 128, 4)) + [200, 204, 232, 236, 240, 244] + [8, 12, 16, 20, 56] + [208, 212, 216, 220]
        TS = [48, 49, 50, 51, 52, 53, 0, 1, 2, 3]; FT = 248
    else:
        free = list(range(UF + 4*(jmax+1), 256, 4)) + list(range(HF + 4*(jmax//2+1), 128, 4))
        accs = [8, 12, 16, 20, 56, 60, 40] + free
        TS = [48, 49, 50, 51, 52, 53, 0, 1, 2, 3]; FT = 32
    assert len(accs) >= len(tiles)
    YR = 54
    have = set(); patched = [False]
    def need_bytes(x, lo, hi):
        for kb in range(max(lo, 0)//1024, hi//1024 + 1): a.wait_tag(f'{x}{kb}')
    def loadH(s):
        if ('h', s) in have: return
        have.add(('h', s))
        need_bytes('h', 256*s-24, 256*s+255)
        if s == 0 and not patched[0]:
            a.I('ds_write_b16', V(46), V(47)); patched[0] = True
        for h in range(2): a.I(TR, V(HF+4*s+2*h,2), V(VH), mods=f'offset:{256*s+32*h}')
    def loadU(m):
        if ('u', m) in have: return
        have.add(('u', m))
        need_bytes('u', 128*m-224, 128*m+127)
        for h in range(2): a.I(TR, V(UF+4*m+2*h,2), V(VU), mods=f'offset:{128*m+32*(1-h)}')
    acc_of = {}; t_of = {}; seq = []; gi_end = []
    for n, J in enumerate(tiles): acc_of[J] = accs[n]; t_of[J] = TS[n % len(TS)]
    for g in P['groups']:
        for s in range(max(g)//2+1):
            for J in reversed(g):
                if J - 2*s >= 0: seq.append((J, s))
        gi_end.append(len(seq))
    DP = 'row_mask:0xf bank_mask:0xf'
    def reduce_ops(gi):
        l = []
        g = P['groups'][gi]
        def level(dst, src, add, only_valid=False):
            js = [J for J in g if not (only_valid and J < P['first'])]
            for J in js:
                if (J-1) in acc_of:
                    l.append(lambda J=J: a.I('v_add_f32_dpp', V(dst(J)), V(src(J-1)), V(add(J)), mods='wave_ror:1 ' + DP))
            for J in js:
                bc = '' if (J-1) in acc_of else ' bound_ctrl:0'
                l.append(lambda J=J, bc=bc: a.I('v_add_f32_dpp', V(dst(J)), V(src(J)), V(add(J)), mods='wave_shr:1 ' + DP + bc))
        level(lambda J: t_of[J], lambda J: acc_of[J]+3, lambda J: acc_of[J]+2)
        level(lambda J: acc_of[J]+2, lambda J: t_of[J], lambda J: acc_of[J]+1)
        level(lambda J: acc_of[J]+1, lambda J: acc_of[J]+2, lambda J: acc_of[J], True)
        for qi in gq[gi]:
            q = quads[qi]
            l.append(lambda q=q: a.I('v_cvt_pk_bf16_f32', V(YR), V(acc_of[q[0]]+1), V(acc_of[q[1]]+1)))
            if len(q) > 2: l.append(lambda q=q: a.I('v_cvt_pk_bf16_f32', V(YR+1), V(acc_of[q[2]]+1), V(acc_of[q[-1]]+1)))
            l.append(lambda qi=qi: a.I('ds_write_b64', V(VYW), V(YR,2), mods=f'offset:{K2_Y+512*qi}'))
        l.append(lambda: a.barrier())
        return l
    def qprep_ops(qi):
        qr = QR+4*qi
        return [lambda: a.I('v_lshlrev_b32', V(qr), 16, V(qr+2)),
                lambda: a.I('v_and_b32', V(qr+1), 's55', V(qr+2)),
                lambda: a.I('v_lshlrev_b32', V(qr+2), 16, V(qr+3)),
                lambda: a.I('v_and_b32', V(qr+3), 's55', V(qr+3))]
    def flush_ops(qi, tmp, prep=True):
        l = []
        q = quads[qi]; qr = QR+4*qi
        l.append(lambda: a.I(TR, V(tmp,2), V(VYR), mods=f'offset:{K2_Y+512*qi}'))
        if prep: l += qprep_ops(qi)
        l.append(lambda: a.I('v_lshlrev_b32', V(tmp+4), 16, V(tmp)))
        l.append(lambda: a.I('v_and_b32', V(tmp+5), 's55', V(tmp)))
        l.append(lambda: a.I('v_lshlrev_b32', V(tmp+6), 16, V(tmp+1)))
        l.append(lambda: a.I('v_and_b32', V(tmp+7), 's55', V(tmp+1)))
        for j in range(4): l.append(lambda j=j: a.I('v_mul_f32', V(tmp+4+j), V(tmp+4+j), V(qr+j)))
        l.append(lambda: a.I('v_cvt_pk_bf16_f32', V(qr), V(tmp+4), V(tmp+5)))
        l.append(lambda: a.I('v_cvt_pk_bf16_f32', V(qr+1), V(tmp+6), V(tmp+7)))
        l.append(lambda: a.I('v_mov_b32_dpp', V(qr+2), V(qr), mods='row_shl:4 ' + DP))
        l.append(lambda: a.I('v_mov_b32_dpp', V(qr+3), V(qr+1), mods='row_shl:4 ' + DP))
        l.append(lambda: a.I('buffer_store_dwordx4', V(qr,4), V(vo[len(q)]), S(40,4), S(56+qi), mods=M('offen', ST_O)))
        return l
    AHEAD = opt('ahead', 8)
    started = set()
    def mf_thunk(idx):
        def f():
            for k in range(idx, min(idx+AHEAD, len(seq))):
                J, s = seq[k]; loadH(s); loadU(J-2*s)
            J, s = seq[idx]
            d = V(acc_of[J],4)
            a.I(MF, d, V(UF+4*(J-2*s),4), V(HF+4*s,4), d if J in started else 0)
            started.add(J)
        return f
    lo = 0
    ng = len(P['groups'])
    for gi, g in enumerate(P['groups']):
        mfs = [mf_thunk(i) for i in range(lo, gi_end[gi])]; lo = gi_end[gi]
        if gi == ng-1:
            for qi in gq[gi]: pend = pend + qprep_ops(qi)
        if pend: merge(a, mfs[:2]); merge(a, mfs[2:], pend)
        else: merge(a, mfs)
        if gi == 0 or gi == ng-1: stamp(a)
        pend = reduce_ops(gi)
        for qi in gq[gi]: pend = pend + flush_ops(qi, FT, prep=(gi != ng-1))
    merge(a, pend)
    stamp(a)
    stamp_out(a, 1, 28)
    a.I('s_endpgm')

def k3(a):
    a.raw(".globl k3_kernel\n.p2align 8\n.type k3_kernel,@function\nk3_kernel:")
    a.reset_state()
    d = opt('diag', '')
    if d:
        kern, lo, n, slot, op = d.split(':'); kern = int(kern); lo = int(lo); n = int(n); slot = int(slot)
        a.I('s_cmp_lg_u32', 's2', 0); a.I('s_cbranch_scc1', 'K3_END')
        a.I('s_load_dwordx2', S(4,2), S(0,2), 104)
        a.I('v_lshlrev_b32', 'v1', 9, 'v0')
        a.I('v_add_u32', 'v2', hex(0x1000000), 'v1')
        a.I('v_add_u32', 'v3', hex(0x1000000 + kern*0x40000 + lo*512 + slot*4), 'v1')
        a.I('global_load_dword', 'v4', 'v2', S(4,2))
        a.I('s_load_dword', 's6', S(4,2), hex(0x100000-4)) if False else None
        for i in range(n//64):
            a.I('global_load_dword', V(8+i), 'v3', S(4,2)); a.I('v_add_u32', 'v3', 64*512, 'v3')
        a.I('v_readfirstlane_b32', 's8', 'v4')
        a.I('v_subrev_u32', 'v4', 's8', 'v4')
        for i in range(n//64): a.I('v_subrev_u32', V(8+i), 's8', V(8+i))
        for i in range(1, n//64): a.I('v_max_i32' if op == 'max' else 'v_min_i32', 'v8', 'v8', V(8+i))
        a.I('v_readlane_b32', 's10', 'v4', 0); a.I('v_readlane_b32', 's11', 'v8', 0)
        for l in range(1, 64):
            a.I('v_readlane_b32', 's12', 'v4', l); a.I('v_readlane_b32', 's13', 'v8', l)
            a.I('s_min_i32', 's10', 's10', 's12'); a.I('s_max_i32' if op == 'max' else 's_min_i32', 's11', 's11', 's13')
        a.I('s_sub_u32', 's11', 's11', 's10')
        a.I('s_min_u32', 's11', 's11', 5000)
        a.I('s_mul_i32', 's11', 's11', 10)
        a.I('s_memrealtime', S(14,2)); a.waitcnt(lg=0)
        a.label('K3_SPIN')
        a.I('s_memrealtime', S(16,2)); a.waitcnt(lg=0)
        a.I('s_sub_u32', 's18', 's16', 's14')
        a.I('s_cmp_lt_u32', 's18', 's11'); a.I('s_cbranch_scc1', 'K3_SPIN')
        a.label('K3_END')
    a.I('s_endpgm')

def main():
    a = Asm()
    hdr = open('concat_heads__spectral_fnet__ssm_conv_h3__prompt.s.ref').read().split('; Override')[0]
    a.raw(hdr.rstrip())
    for k in opt('seq', '12'):
        if k == '1': a.raw(f"; @launch kernel=k1_kernel grid=(256,1,1) block=(512,1,1) lds={K1_LDS}")
        if k == '2': a.raw(f"; @launch kernel=k2_kernel grid=(256,1,1) block=(512,1,1) lds={K2_LDS}")
        if k == '3': a.raw(f"; @launch kernel=k3_kernel grid=(256,1,1) block=(64,1,1) lds=0")
    a.raw('.amdgcn_target "amdgcn-amd-amdhsa--gfx950"\n.text')
    k1(a); k2(a)
    k3(a)
    a.raw(".p2align 8\n.type TBL1,@object\nTBL1:")
    a.raw(T.as_asm(T.t1_d1()) + T.as_asm(T.t1_tw()) + T.as_asm(T.t1_d2()))
    a.raw(".size TBL1, .-TBL1")
    a.raw('.section .rodata,"a"')
    for k in ('k1_kernel', 'k2_kernel', 'k3_kernel'):
        a.raw(f""".p2align 6
.amdhsa_kernel {k}
  .amdhsa_next_free_vgpr 256
  .amdhsa_next_free_sgpr 96
  .amdhsa_accum_offset 256
  .amdhsa_group_segment_fixed_size 0
  .amdhsa_kernarg_size 112
  .amdhsa_user_sgpr_count 2
  .amdhsa_user_sgpr_kernarg_segment_ptr 1
  .amdhsa_system_sgpr_workgroup_id_x 1
.end_amdhsa_kernel""")
    open(sys.argv[1], 'w').write(a.text())
    import json
    U = lambda w: (15*(w&7)+1)//2 + (w>>5)
    val = [w for w in range(256) if ((w>>5)+(w&1)) < 8]
    sets = [("K1 A1", 0, list(range(128))), ("K1 B1", 0, list(range(128,256)))] + [(f"K2 P{p}", 1, [w for w in val if U(w)%3 == p]) for p in range(3)] + [("K2 P3", 1, [w for w in range(256) if w not in val])]
    json.dump(sets, open(sys.argv[1] + '.sets', 'w'))
    print("instrs", a.nins, a.stats, "LDS", K1_LDS, K2_LDS)
main()
```

```python
import sys
from emit import Asm, V, S
import tables as T

OPT = dict(a.split('=') for a in sys.argv[2:])
def opt(k, d): return type(d)(OPT.get(k, d))
def flag(k, d):
    v = opt(k, d)
    return '' if v == 'p' else v.replace('_', ' ')

H_OFF = 0
U_OFF = 0x280000
NBYTES = 2048 * 640 * 2
Q_OFF = 2*U_OFF
WS_BYTES = Q_OFF + NBYTES
ST_I = flag('st_i', 'sc1')
ST_O = flag('st_o', 'p')
ST_A = flag('st_a', 'p')
LD_IN = flag('ld_in', 'p')
LD_I = flag('ld_i', 'p')
PF = opt('pf', 2)
QT = opt('qt', 1)
def M(*xs): return ' '.join(x for x in xs if x)

def srd_tail(a, d, nbytes):
    a.I('s_mov_b32', S(d+2), hex(nbytes)); a.I('s_mov_b32', S(d+3), '0x20000')

def merge(a, *lists):
    lists = [l for l in lists if l]
    pos = [0]*len(lists)
    total = sum(len(l) for l in lists)
    for _ in range(total):
        k = min((i for i in range(len(lists)) if pos[i] < len(lists[i])), key=lambda i: (pos[i] + 0.5) / len(lists[i]))
        lists[k][pos[k]](); pos[k] += 1

STAMP = opt('stamp', 0)
class Stamps: n = 0
def stamp(a, first=False):
    if not STAMP: return
    if first: Stamps.n = 0
    a.I('s_memrealtime', S(66+2*Stamps.n, 2)); Stamps.n += 1
    assert Stamps.n <= 14
def stamp_out(a, kern, wsreg, dbg=None):
    if not STAMP: return
    a.waitcnt(vm=0)
    stamp(a)
    a.waitcnt(lg=0)
    if STAMP == 2:
        if dbg is None: return
        wg, slot, idxs = dbg
        lab = f'DBG_SKIP_{kern}_{slot}'
        a.I('s_cmp_lg_u32', 's2', wg); a.I('s_cbranch_scc1', lab)
        a.I('s_cmp_lg_u32', 's3', 0); a.I('s_cbranch_scc1', lab)
        a.I('s_load_dwordx2', S(94,2), S(0,2), 96)
        a.I('v_mov_b32', 'v0', 0)
        a.I('s_mov_b64', 'exec', 1)
        a.waitcnt(lg=0)
        for n, i in enumerate(idxs):
            a.I('v_mov_b32', 'v1', S(66+2*(i % Stamps.n)))
            a.I('global_store_dword', 'v0', 'v1', S(94,2), mods=f'offset:{4*(slot+n) + 512*(1-kern)}')
        a.label(lab)
        return
    a.I('s_lshl_b32', 's94', 's2', 3); a.I('s_add_u32', 's94', 's94', 's3'); a.I('s_lshl_b32', 's94', 's94', 6)
    a.I('s_add_u32', 's94', 's94', hex(0x1000000 + kern*0x40000))
    a.I('v_mov_b32', 'v0', 's94')
    a.I('s_mov_b64', 'exec', 1)
    for i in range(Stamps.n):
        a.I('v_mov_b32', 'v1', S(66+2*i))
        a.I('global_store_dword', 'v0', 'v1', S(wsreg,2), mods=f'offset:{4*i}')
    a.I('global_store_dword', 'v0', 'v1', S(wsreg,2), mods='offset:56')
    a.I('v_mov_b32', 'v1', Stamps.n)
    a.I('global_store_dword', 'v0', 'v1', S(wsreg,2), mods='offset:60')

MF = 'v_mfma_f32_16x16x32_bf16'
TR = 'ds_read_b64_tr_b16'
DUMMY = 252

K1_T = 0
K1_X = 17*1024
K1_R = K1_X + 40960
RS = 2568
K1_LDS = K1_R + 16*RS + 64

def k1(a):
    a.raw(".globl k1_kernel\n.p2align 8\n.type k1_kernel,@function\nk1_kernel:")
    a.reset_state()
    a.I('s_getpc_b64', S(4,2))
    a.I('s_load_dwordx2', S(20,2), S(0,2), 48)
    a.I('s_load_dwordx2', S(24,2), S(0,2), 56)
    a.I('s_load_dwordx2', S(36,2), S(0,2), 0)
    a.I('s_load_dwordx2', S(28,2), S(0,2), 64)
    a.I('s_load_dwordx2', S(40,2), S(0,2), 104)
    a.I('s_load_dwordx2', S(32,2), S(0,2), 40)
    a.I('s_cmp_ge_u32', 's2', 256); a.I('s_cbranch_scc1', 'K1_END')
    stamp(a, True)
    a.I('v_lshrrev_b32', 'v2', 6, 'v0')
    a.I('v_and_b32', 'v1', 63, 'v0')
    a.I('v_readfirstlane_b32', 's3', 'v2')
    a.I('s_and_b32', 's16', 's2', 7)
    a.I('s_cmp_lt_u32', 's2', 128); a.I('s_cbranch_scc1', 'K1_A')
    st = a.save()
    k1_b_issue(a)
    a.I('s_branch', 'K1_B2')
    stb = a.save(); nb = Stamps.n
    a.label('K1_A'); a.restore(st); Stamps.n = 1
    k1_a(a)
    a.label('K1_B2'); a.restore(stb); Stamps.n = nb
    k1_b_rest(a)
    a.label('K1_PF'); a.restore(st)
    k1_pf(a)
    a.label('K1_END')
    a.I('s_endpgm')

KR, VR, WR, QB = 12, 34, 52, 176
def k1_b_issue(a):
    a.I('s_cmp_ge_u32', 's3', 5); a.I('s_cbranch_scc1', 'K1_PF')
    a.I('s_bfe_u32', 's17', 's2', hex(3 | (3 << 16)))
    a.I('s_lshl3_add_u32', 's16', 's16', 's17')
    a.I('s_bfe_u32', 's17', 's2', hex(6 | (1 << 16)))
    a.I('s_mul_i32', 's17', 's17', 5)
    a.I('s_add_u32', 's17', 's17', 's3')
    a.I('s_lshl_b32', 's17', 's17', 6)
    a.I('s_lshl_b32', 's16', 's16', 5)
    a.I('v_and_b32', 'v3', 15, 'v1')
    a.I('v_lshrrev_b32', 'v4', 4, 'v1')
    a.I('v_lshl_add_u32', 'v5', 'v3', 2, 's17')
    a.I('v_lshl_add_u32', 'v6', 'v4', 3, 's16')
    a.I('v_mul_u32_u24', 'v7', 1280, 'v6')
    a.I('v_lshl_add_u32', 'v7', 'v5', 1, 'v7')
    a.I('v_subrev_u32', 'v8', 3840, 'v7')
    a.I('s_movk_i32', 's18', 5120)
    srd_tail(a, 20, NBYTES); srd_tail(a, 24, NBYTES)
    for j in range(8):
        a.I('buffer_load_dwordx2', V(KR+6+2*j,2), 'v7', S(20,4), 's18' if j >= 4 else 0, mods=M(f'offen offset:{1280*(j%4)}', LD_IN))
    for j in range(3):
        a.I('buffer_load_dwordx2', V(KR+2*j,2), 'v8', S(20,4), 0, mods=M(f'offen offset:{1280*j}', LD_IN))
    a.I('v_lshlrev_b32', 'v9', 3, 'v5')
    srd_tail(a, 28, 640*8)
    a.I('buffer_load_dwordx4', V(WR,4), 'v9', S(28,4), 0, mods=M('offen', LD_IN))
    a.I('buffer_load_dwordx4', V(WR+4,4), 'v9', S(28,4), 0, mods=M('offen offset:16', LD_IN))
    for j in range(8):
        a.I('buffer_load_dwordx2', V(VR+2*j,2), 'v7', S(24,4), 's18' if j >= 4 else 0, mods=M(f'offen offset:{1280*(j%4)}', LD_IN))
    if PF == 1 or QT: a.I('s_barrier')
    stamp(a)

def k1_pf(a):
    a.I('s_bfe_u32', 's17', 's2', hex(3 | (4 << 16)))
    a.I('s_mul_i32', 's17', 's17', 3); a.I('s_add_u32', 's17', 's17', 's3'); a.I('s_sub_u32', 's17', 's17', 5)
    a.I('s_mov_b32', 's6', 'PF_END-k1_kernel-4'); a.I('s_mov_b32', 's7', '0x20000')
    a.I('v_lshlrev_b32', 'v3', 4, 'v1')
    a.I('s_lshl_b32', 's18', 's17', 10)
    if opt('cpf', 1):
        a.I('buffer_load_dwordx4', V(DUMMY,4), 'v3', S(4,4), 's18', mods='offen', notrack=True)
        a.I('s_add_u32', 's18', 's18', 48*1024)
        a.I('buffer_load_dwordx4', V(DUMMY,4), 'v3', S(4,4), 's18', mods='offen', notrack=True)
    if QT:
        assert PF != 1
        a.I('s_bfe_u32', 's8', 's2', hex(1 | (6 << 16)))
        a.I('s_and_b32', 's9', 's2', 1)
        a.I('v_lshrrev_b32', 'v4', 3, 'v1'); a.I('v_and_b32', 'v5', 7, 'v1')
        a.I('v_xor_b32', 'v6', 'v4', 'v5')
        a.I('v_mul_u32_u24', 'v7', 64*1280, 'v4'); a.I('v_lshl_add_u32', 'v7', 'v6', 4, 'v7')
        a.I('v_lshlrev_b32', 'v8', 7, 'v5'); a.I('v_lshl_add_u32', 'v8', 'v6', 4, 'v8')
        a.I('v_lshlrev_b32', 'v9', 15, 'v4'); a.I('v_lshl_add_u32', 'v9', 'v5', 4, 'v9')
        a.I('s_lshl_b32', 's10', 's9', 10); a.I('s_add_u32', 's10', 's10', 's8'); a.I('s_mul_i32', 's10', 's10', 1280)
        a.I('s_lshl_b32', 's11', 's8', 9); a.I('s_lshl_b32', 's12', 's9', 8); a.I('s_add_u32', 's11', 's11', 's12')
        a.I('s_add_u32', 's11', 's11', hex(Q_OFF))
        a.I('s_sub_u32', 's13', 's3', 5)
        a.I('s_mul_i32', 's14', 's13', 7*1024); a.I('s_add_u32', 's14', 's14', 20480)
        a.I('v_add_u32', 'v8', 's14', 'v8')
        srd_tail(a, 32, NBYTES); srd_tail(a, 40, WS_BYTES)
        for k in range(7):
            a.I('s_add_u32', 's15', 's13', 3*k)
            if k == 6:
                a.I('s_cmp_eq_u32', 's15', 20); a.I('s_cselect_b32', 's15', 19, 's15')
            a.I('s_cmp_ge_u32', 's15', 10)
            a.I('s_cselect_b32', 's19', 8*64*1280 - 10*128, 0)
            a.I('s_cselect_b32', 's18', hex((128 - 10*8*32768) & 0xffffffff), 0)
            a.I('s_lshl_b32', 's17', 's15', 7); a.I('s_add_u32', 's19', 's19', 's17'); a.I('s_add_u32', S(44+k), 's19', 's10')
            a.I('s_lshl_b32', 's17', 's15', 18); a.I('s_add_u32', 's18', 's18', 's17'); a.I('s_add_u32', S(52+k), 's18', 's11')
        a.I('s_barrier')
        for k in range(7):
            a.I('s_add_u32', 'm0', 's14', 1024*k)
            a.I('buffer_load_dwordx4', 'v7', S(32,4), S(44+k), mods=M('offen', LD_IN, 'lds'), tag=f'q{k}')
        for k in range(7):
            a.wait_tag(f'q{k}')
            a.I('ds_read_b128', V(12+4*k,4), 'v8', mods=f'offset:{1024*k}')
            if k: a.I('buffer_store_dwordx4', V(8+4*k,4), 'v9', S(40,4), S(51+k), mods=M('offen', ST_I))
        a.I('buffer_store_dwordx4', V(36,4), 'v9', S(40,4), 's58', mods=M('offen', ST_I))
    if PF == 1:
        a.I('s_load_dwordx2', S(52,2), S(0,2), 72)
        a.I('s_lshr_b32', 's60', 's16', 1); a.I('s_lshl1_add_u32', 's60', 's16', 's60')
        srd_tail(a, 52, NBYTES)
        a.I('s_lshl_b32', 's61', 's60', 17); a.I('s_lshl_b32', 's62', 's17', 13); a.I('s_add_u32', 's61', 's61', 's62')
        a.I('s_add_u32', 's62', 's61', 4096)
        a.I('s_barrier')
        for j in range(8):
            a.I('buffer_load_dwordx4', V(DUMMY,4), 'v3', S(52,4), 's61' if j < 4 else 's62', mods=M(f'offen offset:{1024*(j%4)}', LD_IN), notrack=True)

def k1_b_rest(a):
    KU, WU, KS, TMP, O = 60, 104, 120, 152, 160
    a.I('v_lshrrev_b32', 'v10', 2, 'v1'); a.I('v_lshlrev_b32', 'v10', 12, 'v10')
    a.I('v_and_b32', 'v7', 3, 'v1'); a.I('v_lshl_add_u32', 'v10', 'v7', 4, 'v10')
    srd_tail(a, 40, WS_BYTES)
    a.I('s_lshl_b32', 's44', 's17', 12); a.I('s_lshl1_add_u32', 's44', 's16', 's44'); a.I('s_add_u32', 's44', 's44', hex(U_OFF))
    for k in range(1, 4): a.I('s_add_u32', S(44+k), S(43+k), 16*4096)
    a.I('v_and_b32', 'v5', 15, 'v1'); a.I('v_lshrrev_b32', 'v6', 4, 'v1')
    a.I('s_lshl_b32', 's50', 's3', 12)
    a.I('v_and_b32', 'v7', 7, 'v5'); a.I('v_xor_b32', 'v7', 'v7', 'v6')
    a.I('v_lshlrev_b32', 'v7', 4, 'v7'); a.I('v_lshl_add_u32', 'v7', 'v5', 8, 'v7'); a.I('v_add_u32', 'v7', 's50', 'v7')
    a.I('v_xor_b32', 'v8', 64, 'v7')
    a.I('v_xor_b32', 'v5', 'v5', 'v6'); a.I('v_lshlrev_b32', 'v5', 4, 'v5'); a.I('v_lshl_add_u32', 'v5', 'v6', 8, 'v5'); a.I('v_add_u32', 'v5', 's50', 'v5')
    a.I('v_xor_b32', 'v6', 64, 'v5')
    a.I('s_mov_b32', 's48', '0xffff0000')
    def unpack(dst_lo, dst_hi, src):
        a.I('v_lshlrev_b32', V(dst_lo), 16, V(src)); a.I('v_and_b32', V(dst_hi), 's48', V(src))
    def unk(j):
        unpack(KU+4*j, KU+4*j+1, KR+2*j); unpack(KU+4*j+2, KU+4*j+3, KR+2*j+1)
    for j in list(range(3, 11)) + [0, 1, 2]: unk(j)
    stamp(a)
    for ch in range(4):
        unpack(WU+0*4+ch, WU+1*4+ch, WR+2*ch)
        unpack(WU+2*4+ch, WU+3*4+ch, WR+2*ch+1)
    for j in range(8):
        for p in range(2):
            a.I('v_pk_mul_f32', V(KS+4*j+2*p, 2), V(KU+4*j+2*p,2), V(WU+3*4+2*p,2))
        for t in range(1, 4):
            for p in range(2):
                d = V(KS+4*j+2*p, 2)
                a.I('v_pk_fma_f32', d, V(KU+4*(j+t)+2*p,2), V(WU+(3-t)*4+2*p,2), d)
    stamp(a)
    for j in range(8):
        t = TMP + 4*(j & 1)
        unpack(t, t+1, VR+2*j); unpack(t+2, t+3, VR+2*j+1)
        for p in range(2):
            d = V(KS+4*j+2*p, 2)
            a.I('v_pk_mul_f32', d, d, V(t+2*p,2))
        if j & 1:
            for ch in range(4):
                a.I('v_cvt_pk_bf16_f32', V(O+4*ch+j//2), V(KS+4*(j-1)+ch), V(KS+4*j+ch))
    for ch in range(4):
        a.I('ds_write_b128', 'v8' if ch & 1 else 'v7', V(O+4*ch,4), mods=f'offset:{128*(ch>>1)}')
    for k in range(4):
        a.I('ds_read_b128', V(KU+4*k,4), 'v6' if k & 1 else 'v5', mods=f'offset:{1024*k}')
    for k in range(4):
        a.I('buffer_store_dwordx4', V(KU+4*k,4), 'v10', S(40,4), S(44+k), mods=M('offen', ST_I))
    stamp(a)
    stamp_out(a, 0, 40, (128, 4, [0, 2, -2, -1]))
    a.I('s_endpgm')

def k1_a(a):
    a.I('s_lshr_b32', 's17', 's2', 4)
    a.I('s_lshl3_add_u32', 's16', 's17', 's16')
    a.I('s_sub_u32', 's18', 128, 's16')
    a.I('s_cmp_eq_u32', 's16', 0)
    a.I('s_cselect_b32', 's18', 64, 's18')
    a.I('s_and_b32', 's19', 's3', 3)
    a.I('s_lshr_b32', 's6', 's3', 2)
    a.I('s_add_u32', 's8', 's4', 'TBL1-k1_kernel-4'); a.I('s_addc_u32', 's9', 's5', 0)
    srd_tail(a, 8, 17*1024)
    a.I('v_lshlrev_b32', 'v3', 4, 'v1')
    a.I('s_lshl_b32', 's12', 's3', 10)
    a.I('s_cmp_lg_u32', 's3', 0); a.I('s_cbranch_scc1', 'K1_T2')
    a.I('s_movk_i32', 's14', 16*1024)
    a.I('s_mov_b32', 'm0', K1_T + 16*1024)
    a.I('buffer_load_dwordx4', 'v3', S(8,4), 's14', mods='offen lds', tag='tbl')
    a.label('K1_T2')
    a.I('s_add_u32', 'm0', 's12', K1_T)
    a.I('s_add_u32', 's13', 's12', 8192)
    a.I('buffer_load_dwordx4', 'v3', S(8,4), 's12', mods='offen lds', tag='tbl')
    a.I('s_add_u32', 'm0', 's13', K1_T)
    a.I('buffer_load_dwordx4', 'v3', S(8,4), 's13', mods='offen lds', tag='tbl')
    a.I('v_lshrrev_b32', 'v4', 3, 'v1')
    a.I('v_and_b32', 'v5', 7, 'v1')
    a.I('v_and_b32', 'v6', 2, 'v4')
    a.I('s_and_b32', 's7', 's19', 1); a.I('s_lshl_b32', 's7', 's7', 2)
    a.I('v_xor_b32', 'v5', 'v5', 'v6')
    a.I('v_xor_b32', 'v5', 's7', 'v5')
    a.I('v_mul_u32_u24', 'v6', 128*1280, 'v4')
    a.I('v_lshl_add_u32', 'v6', 'v5', 4, 'v6')
    a.I('s_cmp_ge_u32', 's19', 2)
    a.I('s_cselect_b32', 's30', 's18', 's16')
    a.I('s_lshl_b32', 's31', 's7', 8)
    a.I('s_add_u32', 's30', 's30', 's31')
    a.I('s_lshl1_add_u32', 's30', 's30', 's6')
    a.I('s_mul_i32', 's30', 's30', 640)
    a.I('s_lshl1_add_u32', 's31', 's19', 's6')
    a.I('s_mul_i32', 's31', 's31', 5120)
    srd_tail(a, 36, NBYTES)
    for i in range(5):
        a.I('s_add_u32', 'm0', 's31', K1_X + i*(1024-128))
        a.I('buffer_load_dwordx4', 'v6', S(36,4), 's30', mods=M(f'offen offset:{128*i}', LD_IN, 'lds'), tag='x')
    stamp(a)
    if PF == 2: a.I('s_load_dwordx2', S(52,2), S(0,2), 72)
    a.I('s_bfe_u32', 's17', 's2', hex(3 | (1 << 16)))
    a.I('s_mul_i32', 's32', 's6', 5120)
    AL = 8
    TM = 16
    a.I('v_and_b32', 'v4', 15, 'v1')
    a.I('v_lshrrev_b32', 'v5', 4, 'v1')
    a.I('v_cmp_gt_u32', 'vcc', 2, 'v5')
    a.I('v_mov_b32', 'v6', 's18')
    a.I('v_mov_b32', 'v7', 's16')
    a.I('v_cndmask_b32', 'v6', 'v6', 'v7', 'vcc')
    a.I('v_and_b32', 'v7', 1, 'v5')
    a.I('v_lshl_add_u32', 'v6', 'v7', 10, 'v6')
    a.I('v_mul_u32_u24', 'v6', 'v6', 'v4')
    a.I('s_cmp_lg_u32', 's16', 0); a.I('s_cselect_b32', 's33', 's17', 0)
    a.I('s_mul_i32', 's34', 's33', 512); a.I('s_mul_i32', 's35', 's33', 1536)
    a.I('v_mov_b32', 'v7', 's35'); a.I('v_mov_b32', V(TM), 's34')
    a.I('v_cndmask_b32', 'v7', 'v7', V(TM), 'vcc')
    a.I('v_add_u32', 'v6', 'v6', 'v7')
    a.I('v_cvt_f32_u32', 'v6', 'v6')
    a.I('v_mul_f32', 'v6', '0x3a000000', 'v6')
    a.I('v_cvt_f32_u32', 'v7', 'v4')
    a.I('v_mul_f32', 'v7', '0x3d800000', 'v7')
    a.I('s_cmp_eq_u32', 's17', 0); a.I('s_cselect_b32', 's34', -1, 0); a.I('s_cselect_b32', 's35', 0, -1)
    a.I('s_cmp_lg_u32', 's16', 0); a.I('s_cselect_b32', 's34', -1, 's34'); a.I('s_cselect_b32', 's35', -1, 's35')
    a.I('v_mov_b32', V(TM), 's35'); a.I('v_mov_b32', V(TM+1), 's34')
    a.I('v_cndmask_b32', 'v2', V(TM), V(TM+1), 'vcc')
    for e in range(8):
        a.I('v_cos_f32', V(TM+e), 'v6')
        a.I('v_sin_f32', V(TM+8+e), '-v6')
        if e < 7: a.I('v_add_f32', 'v6', 'v6', 'v7')
    for h in range(2):
        for j in range(4):
            a.I('v_cvt_pk_bf16_f32', V(AL+4*h+j), V(TM+8*h+2*j), V(TM+8*h+2*j+1))
    for j in range(8):
        a.I('v_and_b32', V(AL+j), 'v2', V(AL+j))
    VA, VW, VD, VD2, VS = 4, 5, 6, 7, 2
    a.I('v_lshrrev_b32', V(TM), 4, 'v1')
    a.I('v_bfe_u32', V(TM+1), 'v1', 2, 2)
    a.I('v_and_b32', V(TM+2), 3, 'v1')
    a.I('v_and_b32', V(TM+3), 15, 'v1')
    a.I('v_bfe_u32', V(TM+4), 'v1', 3, 2)
    a.I('v_xor_b32', V(TM+4), 's19', V(TM+4))
    a.I('v_mul_u32_u24', V(VA), 10240, V(TM))
    a.I('v_lshl_add_u32', V(VA), V(TM+1), 7, V(VA))
    a.I('v_lshl_add_u32', V(VA), V(TM+4), 5, V(VA))
    a.I('v_lshl_add_u32', V(VA), V(TM+2), 3, V(VA))
    a.I('v_add_u32', V(VA), 's32', V(VA))
    a.I('v_mul_u32_u24', V(VW), RS, V(TM+3))
    a.I('v_lshl_add_u32', V(VW), V(TM), 3, V(VW))
    a.I('s_lshl_b32', 's33', 's19', 5); a.I('s_mul_i32', 's34', 's6', 640); a.I('s_add_u32', 's33', 's33', 's34')
    a.I('v_add_u32', V(VW), 's33', V(VW))
    a.I('v_lshrrev_b32', V(TM+5), 1, V(TM))
    a.I('v_mul_u32_u24', V(VD), 1280, V(TM+5))
    a.I('v_and_b32', V(TM+5), 1, V(TM))
    a.I('v_lshl_add_u32', V(TM+5), V(TM+5), 3, V(TM+1))
    a.I('v_mul_u32_u24', V(TM+5), 80, V(TM+5))
    a.I('v_add_u32', V(VD), V(VD), V(TM+5))
    a.I('s_mul_i32', 's33', 's3', 2*RS)
    a.I('v_add_u32', V(VD), 's33', V(VD))
    a.I('v_and_b32', V(TM+5), 1, V(TM+2))
    a.I('v_lshl_add_u32', V(VD2), V(TM+5), 3, V(VD))
    a.I('v_lshl_add_u32', V(VD), V(TM+2), 3, V(VD))
    a.I('v_lshlrev_b32', V(VS), 7, V(TM+1))
    a.I('v_lshl_add_u32', V(VS), V(TM), 5, V(VS))
    a.I('v_lshl_add_u32', V(VS), V(TM+2), 3, V(VS))
    VS2 = 1
    a.I('v_cmp_gt_u32', 'vcc', 8, V(TM+3))
    a.I('v_mov_b32', V(TM+5), '0x7ff00000')
    a.I('v_cndmask_b32', V(VS2), V(TM+5), V(VS), 'vcc')
    srd_tail(a, 40, WS_BYTES)
    a.I('s_lshl_b32', 's33', 's3', 8); a.I('s_lshl_b32', 's34', 's17', 6)
    a.I('s_add_u32', 's33', 's33', 's34'); a.I('s_add_u32', 's33', 's33', 's16')
    a.I('s_mul_i32', 's44', 's33', 1280); a.I('s_add_u32', 's45', 's44', 128*1280)
    assert H_OFF == 0
    D1B, TW, D2B = 48, 56, 80
    stamp(a)
    a.wait_tag('tbl'); a.I('s_barrier')
    for i in range(17): a.I('ds_read_b128', V(D1B+4*i,4), 'v3', mods=f'offset:{K1_T+1024*i}')
    a.wait_tag('x'); stamp(a); a.I('s_barrier')
    stamp(a)
    if PF == 2:
        a.I('s_and_b32', 's50', 's2', 7)
        a.I('s_lshr_b32', 's51', 's2', 3); a.I('s_lshl3_add_u32', 's51', 's51', 's3')
        a.I('s_lshr_b32', 's60', 's50', 1); a.I('s_lshl1_add_u32', 's60', 's50', 's60')
        srd_tail(a, 52, NBYTES)
        a.I('s_lshl_b32', 's61', 's60', 17); a.I('s_mul_i32', 's62', 's51', 3072); a.I('s_add_u32', 's61', 's61', 's62')
        for j in range(3):
            a.I('buffer_load_dwordx4', V(DUMMY,4), 'v3', S(52,4), 's61', mods=M(f'offen offset:{1024*j}', LD_IN), notrack=True)
    AF, AD, PK = 116, 136, 176
    for i in range(5):
        for h in range(2):
            a.I(TR, V(AF+4*i+2*h,2), V(VA), mods=f'offset:{K1_X+1024*i+512*h}')
    def fin(i):
        for cp in range(2):
            d = AD+8*i+4*cp; p = PK+4*i+2*cp
            a.I('v_cvt_pk_bf16_f32', V(p), V(d), V(d+1)); a.I('v_cvt_pk_bf16_f32', V(p+1), V(d+2), V(d+3))
            a.I('ds_write_b64', V(VW), V(p,2), mods=f'offset:{K1_R+1280*cp+128*i}')
    for i in range(7):
        if i < 5:
            for cp in range(2):
                a.I(MF, V(AD+8*i+4*cp,4), V(AF+4*i,4), V(AL+4*cp,4), 0)
        if i >= 2: fin(i-2)
    a.barrier()
    stamp(a)
    DF, D1, WP, D2, OP, TT = 116, 140, 188, 212, 236, 16
    for r in range(2):
        for tau in range(3):
            for h in range(2):
                a.I(TR, V(DF+12*r+4*tau+2*h,2), V(VD2 if tau == 2 else VD), mods=f'offset:{K1_R+RS*r+320*h+32*tau}')
    def d1(r):
        return [(lambda tau=tau, cp=cp: a.I(MF, V(D1+24*r+8*tau+4*cp,4), V(DF+12*r+4*tau,4), V(D1B+4*cp,4), 0)) for tau in range(3) for cp in range(2)]
    def twd(r):
        l = []
        for tau in range(3):
            re = D1+24*r+8*tau; im = re+4; tc = TW+8*tau; ts = tc+4; t = TT+8*(tau & 1)+16*r
            for j in range(4): l.append(lambda j=j, re=re, tc=tc, t=t: a.I('v_mul_f32', V(t+j), V(re+j), V(tc+j)))
            for j in range(4): l.append(lambda j=j, im=im, tc=tc, t=t: a.I('v_mul_f32', V(t+4+j), V(im+j), V(tc+j)))
            for j in range(4): l.append(lambda j=j, im=im, ts=ts, t=t: a.I('v_fmac_f32', V(t+j), V(im+j), V(ts+j)))
            for j in range(4): l.append(lambda j=j, re=re, ts=ts, t=t: a.I('v_fma_f32', V(t+4+j), '-'+V(re+j), V(ts+j), V(t+4+j)))
            for j in range(4): l.append(lambda j=j, t=t, tau=tau: a.I('v_cvt_pk_bf16_f32', V(WP+12*r+4*tau+j), V(t+2*j), V(t+2*j+1)))
        return l
    def d2(r):
        return [(lambda tau=tau, jt=jt: a.I(MF, V(D2+12*r+4*jt,4), V(WP+12*r+4*tau,4), V(D2B+12*tau+4*jt,4), 0 if tau == 0 else V(D2+12*r+4*jt,4)))
                for tau in range(3) for jt in range(3)]
    def outp(r):
        l = []
        for jt in range(3):
            d = D2+12*r+4*jt; p = OP+6*r+2*jt
            l.append(lambda d=d, p=p: a.I('v_cvt_pk_bf16_f32', V(p), V(d), V(d+1)))
            l.append(lambda d=d, p=p: a.I('v_cvt_pk_bf16_f32', V(p+1), V(d+2), V(d+3)))
            l.append(lambda p=p, jt=jt: a.I('buffer_store_dwordx2', V(p,2), V(VS2 if jt == 2 else VS), S(40,4), S(44+r), mods=M(f'offen offset:{512*jt}', ST_I)))
        return l
    D1L = [d1(0), d1(1)]; TWL = [twd(0), twd(1)]; D2L = [d2(0), d2(1)]
    tw_ = lambda r, t: TWL[r][20*t:20*t+20]
    d2_ = lambda r, t: D2L[r][3*t:3*t+3]
    merge(a, D1L[0] + D1L[1][:2])
    merge(a, tw_(0,0), D1L[1][2:])
    merge(a, tw_(0,1), d2_(0,0))
    merge(a, tw_(0,2), d2_(0,1))
    merge(a, tw_(1,0), d2_(0,2))
    merge(a, tw_(1,1), d2_(1,0))
    merge(a, outp(0) + tw_(1,2), d2_(1,1))
    merge(a, d2_(1,2))
    merge(a, outp(1))
    stamp(a)
    stamp_out(a, 0, 40, (0, 0, [0, 4, -2, -1]))
    a.I('s_endpgm')

CR = 8480
K2_A = 0
K2_Y = 16384
YS = 3*512 + 64
K2_C = K2_Y + 8*YS
K2_LDS = K2_C + 8*CR
def seq_steps(g, steps):
    return [(J, s) for s in steps for J in reversed(g) if J - 2*s >= 0]
def seq_tiles(g, s0=0):
    return [(J, s) for J in g for s in range(s0, J//2+1)]
HF, UF = 64, 128
PARTS = [
    dict(seq=seq_steps(range(8), [1,2,3,0]) + seq_steps(range(27,32), range(9)) + seq_tiles(range(27,32), 9),
         quads=[[0,1,2,3],[4,5,6,7],[28,29,30,31]], a2=False,
         acc={**{J: HF+4*(8+J) for J in range(8)}, 27:8, 28:12, 29:16, 30:20, 31:56},
         dma=[['u0','h0','u3'], ['u2','h1'], {2:'u1', 6:'h2', 10:'h3'}], qpos=[12, 15, 18]),
    dict(seq=seq_steps(range(19,24), [1,2,3,0]+list(range(4,12))) + seq_tiles(range(24,28)),
         quads=[[20,21,22,23],[24,25,26,27]], a2=False,
         acc={19:8, 20:12, 21:16, 22:20, 23:56, 24:60, 25:240, 26:244, 27:248},
         dma=[['u2','h0','u1'], ['h1','u0'], {2:'h2', 6:'u3', 10:'h3'}], qpos=[14, 18]),
    dict(seq=seq_steps(range(7,12), [1,2,3,0,4,5]) + seq_tiles(range(12,20)),
         quads=[[8,9,10,11],[12,13,14,15],[16,17,18,19]], a2=True,
         acc={7:8, 8:12, 9:16, 10:20, 11:56, 12:60, 13:104, 14:108, 15:112, 16:116, 17:120, 18:208, 19:212},
         dma=[['u0','h0','u1'], ['h1','u2'], {2:'h2'}], qpos=[5, 8, 11]),
]

def k2(a):
    a.raw(".globl k2_kernel\n.p2align 8\n.type k2_kernel,@function\nk2_kernel:")
    a.reset_state()
    a.I('s_getpc_b64', S(4,2))
    a.I('s_load_dwordx2', S(28,2), S(0,2), 104)
    a.I('s_load_dwordx2', S(24,2), S(0,2), 72)
    a.I('s_load_dwordx2', S(32,2), S(0,2), 80)
    a.I('s_load_dwordx2', S(40,2), S(0,2), 88)
    a.I('s_load_dwordx2', S(36,2), S(0,2), 40)
    a.I('s_cmp_ge_u32', 's2', 256); a.I('s_cbranch_scc1', 'K2_END')
    stamp(a, True)
    a.I('v_lshrrev_b32', 'v2', 6, 'v0')
    a.I('v_and_b32', 'v1', 63, 'v0')
    a.I('v_readfirstlane_b32', 's3', 'v2')
    a.I('s_and_b32', 's13', 's2', 7)
    a.I('s_lshr_b32', 's17', 's2', 5)
    a.I('s_bfe_u32', 's19', 's2', hex(3 | (2 << 16)))
    srd_tail(a, 28, WS_BYTES)
    a.I('v_lshlrev_b32', 'v3', 4, 'v1')
    a.I('s_and_b32', 's18', 's13', 1)
    a.I('s_add_u32', 's18', 's18', 's17')
    a.I('s_cmp_ge_u32', 's18', 8); a.I('s_cbranch_scc1', 'K2_P3')
    st3 = a.save()
    a.I('s_mul_i32', 's16', 's13', 15); a.I('s_add_u32', 's16', 's16', 1); a.I('s_lshr_b32', 's16', 's16', 1)
    a.I('s_add_u32', 's16', 's16', 's17')
    a.I('s_mul_i32', 's17', 's16', 43); a.I('s_lshr_b32', 's17', 's17', 7)
    a.I('s_mul_i32', 's18', 's17', 3); a.I('s_sub_u32', 's18', 's16', 's18')
    a.I('s_lshl2_add_u32', 's17', 's17', 's19')
    a.I('s_lshl3_add_u32', 's20', 's17', 's3')
    a.I('s_lshl_b32', 's21', 's20', 12)
    a.I('s_add_u32', 's12', 's21', hex(U_OFF))
    a.I('s_mul_i32', 's22', 's3', CR)
    a.I('s_add_u32', 's22', 's22', K2_C)
    a.I('s_add_u32', 's52', 's22', 32); a.I('s_add_u32', 's53', 's22', 32+4096+256)
    srd_tail(a, 24, NBYTES)
    a.I('s_cmp_eq_u32', 's18', 1); a.I('s_cbranch_scc1', 'K2_P1')
    a.I('s_cmp_eq_u32', 's18', 0); a.I('s_cbranch_scc1', 'K2_P0')
    st = a.save()
    for n, p in enumerate((2, 1, 0)):
        if n:
            a.raw(".p2align 6"); a.label(f'K2_P{p}')
            a.restore(st)
        Stamps.n = 1
        k2_part(a, p)
    a.raw(".p2align 6"); a.label('K2_P3'); a.restore(st3); Stamps.n = 1
    k2_p3(a)
    a.label('K2_END')
    a.I('s_endpgm')

class A2:
    def __init__(self, a, C, VA, VO, T):
        self.a = a; self.C = C; self.VA = VA; self.VO = VO; self.T = T
    def dma_setup(self):
        a, T = self.a, self.T
        return [lambda: a.I('v_lshrrev_b32', V(T), 3, 'v1'), lambda: a.I('v_and_b32', V(T+1), 7, 'v1'), lambda: a.I('v_and_b32', V(T+2), 2, V(T)),
                lambda: a.I('v_xor_b32', V(T+1), V(T+1), V(T+2)),
                lambda: a.I('v_mul_u32_u24', V(T+2), 1280, V(T)),
                lambda: a.I('v_lshl_add_u32', V(T+2), V(T+1), 4, V(T+2)),
                lambda: a.I('v_xor_b32', V(T+3), 64, V(T+2)),
                lambda: a.I('s_lshl3_add_u32', 's47', 's45', 's3'),
                lambda: a.I('s_mul_i32', 's47', 's47', 16*1280), lambda: a.I('s_lshl_b32', 's48', 's46', 7), lambda: a.I('s_add_u32', 's47', 's47', 's48'),
                lambda: a.I('s_add_u32', 's48', 's47', 8*1280),
                lambda: a.I('s_lshl_b32', 's44', 's3', 11)]
    def dma(self, u, h, so=('s47', 's48')):
        a, T = self.a, self.T
        a.I('s_add_u32', 'm0', 's44', K2_A + 1024*h + u*(16384-128))
        a.I('buffer_load_dwordx4', V(T+2+h), S(28,4), so[h], mods=M(f'offen offset:{128*u}', LD_I, 'lds'), tag=f'a2{u}')
    def consts(self):
        a, T = self.a, self.T
        l = [lambda: a.I('s_add_u32', 's6', 's4', 'TBL2-k2_kernel-4'), lambda: a.I('s_addc_u32', 's7', 's5', 0),
             lambda: a.I('v_lshlrev_b32', V(T), 4, 'v1'), lambda: a.I('v_lshl_add_u32', V(T), 'v2', 12, V(T))]
        return l, [(lambda st=st: a.I('global_load_dwordx4', V(self.C+4*st,4), V(T), S(6,2), mods=f'offset:{1024*st}')) for st in range(4)]
    def addr_setup(self):
        a, T, VA, VO = self.a, self.T, self.VA, self.VO
        return [lambda: a.I('v_lshrrev_b32', V(T), 4, 'v1'),
                lambda: a.I('v_lshl_add_u32', V(VO), 'v2', 2, V(T)),
                lambda: a.I('v_mul_u32_u24', V(VO), 64*2560, V(VO)),
                lambda: a.I('v_and_b32', V(T+1), 15, 'v1'), lambda: a.I('v_lshl_add_u32', V(VO), V(T+1), 3, V(VO)),
                lambda: a.I('v_bfe_u32', V(T+1), 'v1', 2, 2), lambda: a.I('v_and_b32', V(T+2), 3, 'v1'), lambda: a.I('v_bfe_u32', V(T+3), 'v1', 3, 2),
                lambda: a.I('v_lshlrev_b32', V(VA), 10, V(T)),
                lambda: a.I('v_lshl_add_u32', V(VA), V(T+1), 7, V(VA)),
                lambda: a.I('v_lshl_add_u32', V(VA), V(T+2), 3, V(VA)),
                lambda: a.I('v_lshl_add_u32', V(VA), V(T+3), 5, V(VA))] + \
               [(lambda tau=tau: a.I('v_xor_b32', V(VA+tau), 32*tau, V(VA))) for tau in range(1, 4)] + \
               [lambda: a.I('s_mul_i32', 's47', 's45', 2560), lambda: a.I('s_lshl_b32', 's48', 's46', 7), lambda: a.I('s_add_u32', 's47', 's47', 's48')] + \
               [(lambda r=r: a.I('s_add_u32', S(47+r), S(46+r), 16*2560)) for r in range(1, 4)]
    def lists(self, u, AF, AD, PO, base):
        a = self.a
        order = [(st, tau) for st in range(4) for tau in range(4)]
        rd = [(lambda st=st, tau=tau, h=h: a.I(TR, V(AF+16*st+4*tau+2*h,2), V(self.VA+tau), mods=f'offset:{base+4096*st+512*h}'))
              for (st, tau) in order for h in range(2)]
        mm = [(lambda st=st, tau=tau: a.I(MF, V(AD+4*tau,4), V(self.C+4*st,4), V(AF+16*st+4*tau,4), 0 if st == 0 else V(AD+4*tau,4)))
              for (st, tau) in order]
        ou = []
        for r in range(4):
            ou.append(lambda r=r: a.I('v_cvt_pk_bf16_f32', V(PO+2*r), V(AD+r), V(AD+4+r)))
            ou.append(lambda r=r: a.I('v_cvt_pk_bf16_f32', V(PO+2*r+1), V(AD+8+r), V(AD+12+r)))
            ou.append(lambda r=r: a.I('buffer_store_dwordx2', V(PO+2*r,2), V(self.VO), S(40,4), S(47+r), mods=M(f'offen offset:{128*u}', ST_A)))
        return rd, mm, ou

def run(l):
    for f in l: f()

def q_touch(a, T, dummy):
    a.I('v_and_b32', V(T), 7, 'v1'); a.I('v_mul_u32_u24', V(T), 1280, V(T))
    a.I('v_lshrrev_b32', V(T+1), 3, 'v1'); a.I('v_lshl_add_u32', V(T), V(T+1), 6, V(T))
    a.I('v_cmp_lt_u32', 'vcc', 23, 'v1')
    a.I('v_cndmask_b32', V(T), V(T), -1, 'vcc')
    a.I('s_and_b32', 's62', 's2', 0xf8); a.I('s_add_u32', 's62', 's62', 's3'); a.I('s_mul_i32', 's62', 's62', 8*1280)
    a.I('s_lshr_b32', 's63', 's13', 1); a.I('s_lshl1_add_u32', 's63', 's13', 's63'); a.I('s_lshl_b32', 's63', 's63', 6)
    a.I('s_add_u32', 's62', 's62', 's63')
    a.I('buffer_load_dword', V(dummy), V(T), S(36,4), 's62', mods=M('offen', LD_IN), notrack=True)

def k2_p3(a):
    a.I('s_lshr_b32', 's45', 's13', 1); a.I('s_lshl2_add_u32', 's45', 's45', 's19')
    a.I('s_mov_b32', 's46', 5)
    A = A2(a, 8, 56, 60, 4)
    run(A.dma_setup())
    for h in range(2): A.dma(0, h)
    B = A2(a, 8, 56, 60, 52)
    c0, c1 = B.consts(); run(c0); run(c1)
    for h in range(2): A.dma(1, h)
    a.I('s_mov_b32', 's60', 's47'); a.I('s_mov_b32', 's61', 's48')
    srd_tail(a, 36, NBYTES)
    if not QT: q_touch(a, 48, 255)
    stamp(a)
    run(B.addr_setup())
    srd_tail(a, 40, 2*NBYTES)
    stamp(a)
    L = [A.lists(u, 64 + 64*(u & 1), 192 + 16*(u & 1), 224 + 8*(u & 1), K2_A + 16384*(u % 4)) for u in range(5)]
    def bump():
        for tau in range(4): a.I('v_add_u32', V(56+tau), 65536, V(56+tau))
    def sync(u):
        def f(): a.wait_tag(f'a2{u}'); a.I('s_barrier')
        return f
    rds = []
    for u in range(5):
        rds += [sync(u)] + ([bump] if u == 4 else []) + L[u][0]
    mms = [];
    for u in range(5): mms += L[u][1]
    ev = {}
    for u in range(5):
        for n, f in enumerate(L[u][2]): ev.setdefault(16*u+16+3+n, []).append(f)
    for u in range(2, 5):
        for h in range(2): ev.setdefault(4*(u-2)+2*h, []).append(lambda u=u, h=h: A.dma(u, h, ('s60', 's61')))
    lead = 13
    run(rds[:lead]); pos = lead
    for i, m in enumerate(mms):
        run(ev.pop(i, []))
        m()
        tgt = min(len(rds), lead + ((i+1)*len(rds))//len(mms) + 1)
        run(rds[pos:tgt]); pos = max(pos, tgt)
    for k in sorted(ev): run(ev[k])
    stamp(a)
    stamp_out(a, 1, 28)
    a.I('s_endpgm')

def k2_part(a, p):
    P = PARTS[p]
    seq = P['seq']; quads = P['quads']; acc_of = P['acc']
    tiles = sorted(acc_of)
    assert sorted(seq) == sorted((J, s) for J in tiles for s in range(J//2+1))
    nq = len(quads)
    hb = 32; ub = 32 + 4096 + 256
    issued = set()
    def dma(t):
        x, i = t[0], int(t[1])
        a.I('s_mov_b32', 'm0', 's52' if x == 'h' else 's53')
        if x == 'h': a.I('buffer_load_dwordx4', 'v3', S(24,4), 's21', mods=M(f'offen offset:{1024*i}', LD_IN, 'lds'), tag=t)
        else: a.I('buffer_load_dwordx4', 'v3', S(28,4), 's12', mods=M(f'offen offset:{1024*i}', LD_I, 'lds'), tag=t)
        issued.add(t)
    for t in P['dma'][0]: dma(t)
    stamp(a)
    T0 = 52
    VH, VU, VYW, VYR = 4, 5, 6, 7
    QR, FT, VO, VQ = 24, 36, 44, 45
    a.I('v_mov_b32', V(T0+3), 0)
    a.I('v_lshl_add_u32', 'v6', 'v1', 2, 's22')
    a.I('ds_write_b32', 'v6', V(T0+3), mods=f'offset:{ub-256}')
    a.I('v_and_b32', 'v7', 7, 'v1')
    a.I('v_lshl_add_u32', 'v7', 'v7', 2, 's22')
    a.I('ds_write_b32', 'v7', V(T0+3))
    a.I('v_lshrrev_b32', V(T0), 4, 'v1')
    a.I('v_bfe_u32', V(T0+1), 'v1', 2, 2)
    a.I('v_and_b32', V(T0+2), 3, 'v1')
    a.I('v_add_u32', V(VH), V(T0+1), V(T0+2))
    a.I('v_lshl_add_u32', V(VH), V(T0), 3, V(VH))
    a.I('s_add_u32', 's23', 's22', hb-24)
    a.I('v_lshl_add_u32', V(VH), V(VH), 3, 's23')
    a.I('v_lshlrev_b32', V(VU), 2, V(T0+2))
    a.I('v_sub_u32', V(VU), V(VU), V(T0+1))
    a.I('v_lshlrev_b32', V(48), 3, V(T0))
    a.I('v_sub_u32', V(VU), V(VU), V(48))
    a.I('s_add_u32', 's23', 's22', ub-8)
    a.I('v_lshl_add_u32', V(VU), V(VU), 3, 's23')
    srd_tail(a, 32, 1280)
    a.I('s_lshl_b32', 's23', 's20', 1)
    a.I('buffer_load_ushort', V(46), 'off', S(32,4), 's23')
    a.I('buffer_load_ushort', V(47), 'off', S(24,4), 's21')
    for t in P['dma'][1]: dma(t)
    a.I('s_mul_i32', 's23', 's3', YS)
    a.I('v_lshl_add_u32', V(VYW), 'v1', 3, 's23')
    a.I('v_and_b32', V(T0+3), 1, V(T0+2))
    a.I('v_lshl_add_u32', V(T0+3), V(T0+3), 2, V(T0+1))
    a.I('v_mul_u32_u24', V(VYR), YS, V(T0+3))
    a.I('v_lshrrev_b32', V(T0+3), 1, V(T0+2))
    a.I('v_lshl_add_u32', V(T0+3), V(T0), 1, V(T0+3))
    a.I('v_lshl_add_u32', V(T0+3), 'v2', 3, V(T0+3))
    a.I('v_lshl_add_u32', V(VYR), V(T0+3), 3, V(VYR))
    srd_tail(a, 40, 2*NBYTES)
    a.I('v_lshrrev_b32', V(T0), 3, 'v1')
    a.I('v_lshl_add_u32', V(T0), 'v2', 3, V(T0))
    a.I('v_lshl_add_u32', V(T0+1), V(T0+2), 6, V(T0))
    a.I('v_mul_u32_u24', V(T0+1), 1280, V(T0+1))
    a.I('v_and_b32', V(T0+3), 4, 'v1')
    a.I('v_lshl_add_u32', V(VQ), V(T0+3), 27, V(T0+1))
    a.I('v_lshlrev_b32', V(VO), 1, V(VQ))
    if QT:
        a.I('v_lshlrev_b32', V(VQ), 9, V(T0))
        a.I('v_lshl_add_u32', V(VQ), V(T0+2), 4, V(VQ))
        a.I('v_lshl_add_u32', V(VQ), V(T0+3), 1, V(VQ))
        a.I('s_lshl_b32', 's61', 's17', 15); a.I('s_add_u32', 's61', 's61', hex(Q_OFF))
    else: srd_tail(a, 36, NBYTES)
    a.I('s_lshl_b32', 's54', 's17', 4)
    a.I('s_mov_b32', 's55', '0xffff0000')
    def qload(qi):
        q = quads[qi]
        if QT:
            a.I('buffer_load_dwordx2', V(QR+4*qi+2,2), V(VQ), S(28,4), 's61', mods=M(f'offen offset:{16*q[0]}', LD_I))
        else:
            a.I('s_add_u32', S(56+qi), 's54', hex(q[0]*64*1280))
            a.I('buffer_load_dwordx4', V(QR+4*qi,4), V(VQ), S(36,4), S(56+qi), mods=M('offen', LD_IN))
        a.I('s_add_u32', S(56+qi), 's54', hex(q[0]*64*2560 + 1280))
    stamp(a)
    if STAMP: a.wait_tag('h0'); stamp(a)
    ev = {}
    def at(i, *fs): ev.setdefault(i, []).extend(fs)
    for i, t in P['dma'][2].items(): at(i, lambda t=t: dma(t))
    if not QT: at(4, lambda: q_touch(a, 48, 0))
    for qi in range(nq): at(P['qpos'][qi] + (0 if QT else 14), lambda qi=qi: qload(qi))
    TS = [48, 49, 50, 51, 52, 53, 46, 47]
    t_of = {J: TS[n % len(TS)] for n, J in enumerate(tiles)}
    YR = 54
    n = len(seq)
    if P['a2']:
        A = A2(a, 232, 248, 252, 124)
        pre = [lambda: a.I('s_mul_i32', 's45', 's17', 205), lambda: a.I('s_lshr_b32', 's45', 's45', 10),
               lambda: a.I('s_mul_i32', 's46', 's45', 5), lambda: a.I('s_sub_u32', 's46', 's17', 's46')] + A.dma_setup()
        for k, f in enumerate(pre): at(7 + k//3, f)
        at(14, lambda: A.dma(0, 0)); at(16, lambda: A.dma(0, 1))
        c0, c1 = A.consts()
        at(17, *c0)
        for k, f in enumerate(c1): at(18+2*k, f)
        for k, f in enumerate(A.addr_setup()): at(70 + k//2, f)
    have = set(); live = {}
    def chk(r):
        for J, v in live.items(): assert not (v and acc_of[J] == r), (p, J, r)
    def need_bytes(x, lo, hi):
        for kb in range(max(lo, 0)//1024, hi//1024 + 1):
            assert f'{x}{kb}' in issued, (p, x, kb)
            a.wait_tag(f'{x}{kb}')
    def loadH(s):
        if ('h', s) in have: return
        have.add(('h', s)); chk(HF+4*s)
        need_bytes('h', 256*s-24, 256*s+255)
        if s == 0:
            a.I('v_lshlrev_b32', V(46), 16, V(46)); a.I('v_lshlrev_b32', V(47), 16, V(47))
            a.I('v_add_f32', V(46), V(46), V(47))
            a.I('v_cvt_pk_bf16_f32', V(46), V(46), V(46))
            a.I('v_mov_b32', V(47), 's52')
            a.I('ds_write_b16', V(47), V(46))
        for h in range(2): a.I(TR, V(HF+4*s+2*h,2), V(VH), mods=f'offset:{256*s+32*h}')
    def loadU(m):
        if ('u', m) in have: return
        have.add(('u', m)); chk(UF+4*m)
        need_bytes('u', 128*m-224, 128*m+127)
        for h in range(2): a.I(TR, V(UF+4*m+2*h,2), V(VU), mods=f'offset:{128*m+32*(1-h)}')
    done = {}
    for i, (J, s) in enumerate(seq): done[J] = i
    valid = {J for q in quads for J in q}
    DP = 'row_mask:0xf bank_mask:0xf'
    side = []; s1_of = {}; y_of = {}
    GAP = 'gap'
    def gap(k): side.append((GAP, k))
    def add(e, f): side.append((e, f))
    def batch_reduce(js):
        e = max(done[J] for J in js) + 3
        def level(dst, src, add_, only_valid=False):
            jj = [J for J in js if not (only_valid and J not in valid)]
            for J in jj:
                if (J-1) in acc_of:
                    add(e, lambda J=J: a.I('v_add_f32_dpp', V(dst(J)), V(src(J-1)), V(add_(J)), mods='wave_ror:1 ' + DP))
            for J in jj:
                bc = '' if (J-1) in acc_of else ' bound_ctrl:0'
                add(e, lambda J=J, bc=bc: a.I('v_add_f32_dpp', V(dst(J)), V(src(J)), V(add_(J)), mods='wave_shr:1 ' + DP + bc))
        if len(js) == 1 and (js[0]-1) in acc_of and js[0] in valid:
            J = js[0]; d = acc_of[J]; pd = acc_of[J-1]
            s1 = FT + 2 + (J & 1); y = pd; ps1 = s1_of[J-1]
            s1_of[J] = s1; y_of[J] = y
            add(e, lambda: a.I('v_add_f32_dpp', V(t_of[J]), V(pd+3), V(d+2), mods='wave_ror:1 ' + DP))
            add(e, lambda: a.I('v_add_f32_dpp', V(s1), V(t_of[J-1]), V(d+1), mods='wave_ror:1 ' + DP))
            add(e, lambda: a.I('v_add_f32_dpp', V(y), V(ps1), V(d), mods='wave_ror:1 ' + DP))
            add(e, lambda: a.I('v_add_f32_dpp', V(t_of[J]), V(d+3), V(d+2), mods='wave_shr:1 ' + DP))
            gap(1)
            add(e, lambda: a.I('v_add_f32_dpp', V(s1), V(t_of[J]), V(d+1), mods='wave_shr:1 ' + DP))
            gap(1)
            add(e, lambda: a.I('v_add_f32_dpp', V(y), V(s1), V(d), mods='wave_shr:1 ' + DP))
            return
        for J in js: s1_of[J] = acc_of[J]+2; y_of[J] = acc_of[J]+1
        level(lambda J: t_of[J], lambda J: acc_of[J]+3, lambda J: acc_of[J]+2)
        level(lambda J: acc_of[J]+2, lambda J: t_of[J], lambda J: acc_of[J]+1)
        level(lambda J: acc_of[J]+1, lambda J: s1_of[J], lambda J: acc_of[J], True)
    def qprep(qi, e):
        qr = QR+4*qi
        if QT:
            l = [lambda: a.I('v_lshlrev_b32', V(qr), 16, V(qr+2)), lambda: a.I('v_and_b32', V(qr+1), 's55', V(qr+2)),
                 lambda: a.I('v_lshlrev_b32', V(qr+2), 16, V(qr+3)), lambda: a.I('v_and_b32', V(qr+3), 's55', V(qr+3))]
        else:
            l = [lambda: a.I('v_mov_b32_dpp', V(qr), V(qr+2), mods='row_shr:4 row_mask:0xf bank_mask:0xa'),
                 lambda: a.I('v_mov_b32_dpp', V(qr+1), V(qr+3), mods='row_shr:4 row_mask:0xf bank_mask:0xa'),
                 lambda: a.I('v_and_b32', V(qr+3), 's55', V(qr+1)), lambda: a.I('v_lshlrev_b32', V(qr+2), 16, V(qr+1)),
                 lambda: a.I('v_and_b32', V(qr+1), 's55', V(qr)), lambda: a.I('v_lshlrev_b32', V(qr), 16, V(qr))]
        for f in l: add(e, f)
    def stage(qi):
        q = quads[qi]
        def rel():
            for J in list(live):
                if J < q[-1] or (J == q[-1] and (J+1) not in acc_of): live[J] = False
        add(0, lambda: a.I('v_cvt_pk_bf16_f32', V(YR), V(y_of[q[0]]), V(y_of[q[1]])))
        add(0, lambda: (a.I('v_cvt_pk_bf16_f32', V(YR+1), V(y_of[q[2]]), V(y_of[q[3]])), rel()))
        add(0, lambda: a.I('ds_write_b64', V(VYW), V(YR,2), mods=f'offset:{K2_Y+512*qi}'))
    def bar(first):
        def f():
            if P['a2'] and first: a.wait_tag('a20')
            a.barrier()
        add(0, f)
    def flush(qi):
        qr = QR+4*qi; tmp = FT
        l = [lambda: a.I('v_lshlrev_b32', V(tmp+4), 16, V(tmp)), lambda: a.I('v_and_b32', V(tmp+5), 's55', V(tmp)),
             lambda: a.I('v_lshlrev_b32', V(tmp+6), 16, V(tmp+1)), lambda: a.I('v_and_b32', V(tmp+7), 's55', V(tmp+1))]
        l += [(lambda j=j: a.I('v_mul_f32', V(tmp+4+j), V(tmp+4+j), V(qr+j))) for j in range(4)]
        l += [lambda: a.I('v_cvt_pk_bf16_f32', V(qr), V(tmp+4), V(tmp+5)), lambda: a.I('v_cvt_pk_bf16_f32', V(qr+1), V(tmp+6), V(tmp+7)),
              lambda: a.I('v_mov_b32_dpp', V(qr+2), V(qr), mods='row_shl:4 ' + DP), lambda: a.I('v_mov_b32_dpp', V(qr+3), V(qr+1), mods='row_shl:4 ' + DP),
              lambda: a.I('buffer_store_dwordx4', V(qr,4), V(VO), S(40,4), S(56+qi), mods=M('offen', ST_O))]
        for f in l: add(0, f)
    def rdY(qi): add(0, lambda: a.I(TR, V(FT,2), V(VYR), mods=f'offset:{K2_Y+512*qi}'))
    if p == 0:
        batch_reduce(list(range(8))); stage(0); stage(1); bar(True)
        rdY(0); qprep(0, 0); gap(2); flush(0); rdY(1); qprep(1, 0); gap(2); flush(1); qprep(2, 0)
        for J in range(27, 32): batch_reduce([J])
        stage(2); bar(False); rdY(2); flush(2)
    elif p == 1:
        batch_reduce(list(range(19, 24))); stage(0); bar(True); rdY(0); qprep(0, 0); gap(2)
        batch_reduce([24]); flush(0); qprep(1, 0)
        for J in range(25, 28): batch_reduce([J])
        stage(1); bar(False); rdY(1); flush(1)
    else:
        batch_reduce(list(range(7, 12))); stage(0); bar(True); rdY(0); qprep(0, 0)
        batch_reduce([12]); flush(0)
        for J in range(13, 16): batch_reduce([J])
        stage(1); bar(False); rdY(1); qprep(1, 0); gap(2); flush(1); qprep(2, 0)
        for J in range(16, 20): batch_reduce([J])
        stage(2); bar(False); rdY(2); gap(2); flush(2)
    AHEAD = opt('ahead', 8); KS = opt('ks', 3)
    started = set()
    mlist = []
    def conv(idx):
        def f():
            for k in range(idx, min(idx+AHEAD, n)):
                J, s = seq[k]; loadH(s); loadU(J-2*s)
            J, s = seq[idx]
            d = V(acc_of[J],4)
            a.I(MF, d, V(UF+4*(J-2*s),4), V(HF+4*s,4), d if J in started else 0)
            started.add(J); live[J] = True
        return f
    mlist = [conv(i) for i in range(n)]
    tail = []
    if P['a2']:
        rd, mm, ou = A.lists(0, 144, 216, 64, K2_A)
        tail = ou
        mlist += mm
        order = sorted(range(16), key=lambda f: f)
        for f in range(16):
            m = 4+f
            free_at = (n-10 + (19-m)//2 + 1) if m & 1 else n-10
            slot = max(free_at, n + f - 6)
            at(slot, rd[2*f], rd[2*f+1])
    sp = 0; hold = -1
    for i, m in enumerate(mlist):
        run(ev.pop(i, []))
        m()
        if i == 20 or i == n-1: stamp(a)
        k = 0
        while sp < len(side) and k < KS and i >= hold:
            e, f = side[sp]
            if e == GAP: hold = i + f; sp += 1; continue
            if e > i: break
            f(); sp += 1; k += 1
    assert not ev, ev.keys()
    rest = [f for e, f in side[sp:] if e != GAP]
    print("part", p, "mfma", len(mlist), "side left", len(rest))
    run(rest); run(tail)
    stamp(a)
    stamp_out(a, 1, 28)
    a.I('s_endpgm')

def k3(a):
    a.raw(".globl k3_kernel\n.p2align 8\n.type k3_kernel,@function\nk3_kernel:")
    a.reset_state()
    d = opt('diag', '')
    if d:
        kern, lo, n, slot, op = d.split(':'); kern = int(kern); lo = int(lo); n = int(n); slot = int(slot)
        a.I('s_cmp_lg_u32', 's2', 0); a.I('s_cbranch_scc1', 'K3_END')
        a.I('s_load_dwordx2', S(4,2), S(0,2), 104)
        a.I('v_lshlrev_b32', 'v1', 9, 'v0')
        a.I('v_add_u32', 'v2', hex(0x1000000), 'v1')
        a.I('v_add_u32', 'v3', hex(0x1000000 + kern*0x40000 + lo*512 + slot*4), 'v1')
        a.I('global_load_dword', 'v4', 'v2', S(4,2))
        a.I('s_load_dword', 's6', S(4,2), hex(0x100000-4)) if False else None
        for i in range(n//64):
            a.I('global_load_dword', V(8+i), 'v3', S(4,2)); a.I('v_add_u32', 'v3', 64*512, 'v3')
        a.I('v_readfirstlane_b32', 's8', 'v4')
        a.I('v_subrev_u32', 'v4', 's8', 'v4')
        for i in range(n//64): a.I('v_subrev_u32', V(8+i), 's8', V(8+i))
        for i in range(1, n//64): a.I('v_max_i32' if op == 'max' else 'v_min_i32', 'v8', 'v8', V(8+i))
        a.I('v_readlane_b32', 's10', 'v4', 0); a.I('v_readlane_b32', 's11', 'v8', 0)
        for l in range(1, 64):
            a.I('v_readlane_b32', 's12', 'v4', l); a.I('v_readlane_b32', 's13', 'v8', l)
            a.I('s_min_i32', 's10', 's10', 's12'); a.I('s_max_i32' if op == 'max' else 's_min_i32', 's11', 's11', 's13')
        a.I('s_sub_u32', 's11', 's11', 's10')
        a.I('s_min_u32', 's11', 's11', 5000)
        a.I('s_mul_i32', 's11', 's11', 10)
        a.I('s_memrealtime', S(14,2)); a.waitcnt(lg=0)
        a.label('K3_SPIN')
        a.I('s_memrealtime', S(16,2)); a.waitcnt(lg=0)
        a.I('s_sub_u32', 's18', 's16', 's14')
        a.I('s_cmp_lt_u32', 's18', 's11'); a.I('s_cbranch_scc1', 'K3_SPIN')
        a.label('K3_END')
    a.I('s_endpgm')

def main():
    a = Asm()
    hdr = open('concat_heads__spectral_fnet__ssm_conv_h3__prompt.s.ref').read().split('; Override')[0]
    a.raw(hdr.rstrip())
    for k in opt('seq', '12'):
        if k == '1': a.raw(f"; @launch kernel=k1_kernel grid=(256,1,1) block=(512,1,1) lds={K1_LDS}")
        if k == '2': a.raw(f"; @launch kernel=k2_kernel grid=(256,1,1) block=(512,1,1) lds={K2_LDS}")
        if k == '3': a.raw(f"; @launch kernel=k3_kernel grid=(256,1,1) block=(64,1,1) lds=0")
    a.raw('.amdgcn_target "amdgcn-amd-amdhsa--gfx950"\n.text')
    k1(a); k2(a)
    k3(a)
    a.raw(".p2align 8\n.type TBL2,@object\nTBL2:")
    a.raw(T.as_asm(T.t2()))
    a.raw(".size TBL2, .-TBL2\nPF_END:")
    a.raw(".p2align 8\n.type TBL1,@object\nTBL1:")
    a.raw(T.as_asm(T.t1_d1()) + T.as_asm(T.t1_tw()) + T.as_asm(T.t1_d2()))
    a.raw(".size TBL1, .-TBL1")
    a.raw('.section .rodata,"a"')
    for k in ('k1_kernel', 'k2_kernel', 'k3_kernel'):
        a.raw(f""".p2align 6
.amdhsa_kernel {k}
  .amdhsa_next_free_vgpr 256
  .amdhsa_next_free_sgpr 96
  .amdhsa_accum_offset 256
  .amdhsa_group_segment_fixed_size 0
  .amdhsa_kernarg_size 112
  .amdhsa_user_sgpr_count 2
  .amdhsa_user_sgpr_kernarg_segment_ptr 1
  .amdhsa_system_sgpr_workgroup_id_x 1
.end_amdhsa_kernel""")
    open(sys.argv[1], 'w').write(a.text())
    import json
    U = lambda w: (15*(w&7)+1)//2 + (w>>5)
    val = [w for w in range(256) if ((w>>5)+(w&1)) < 8]
    sets = [("K1 A1", 0, list(range(128))), ("K1 B1", 0, list(range(128,256)))] + [(f"K2 P{p}", 1, [w for w in val if U(w)%3 == p]) for p in range(3)] + [("K2 P3", 1, [w for w in range(256) if w not in val])]
    json.dump(sets, open(sys.argv[1] + '.sets', 'w'))
    print("instrs", a.nins, a.stats, "LDS", K1_LDS, K2_LDS)
main()
```

```python
import sys
from emit import Asm, V, S
import tables as T

OPT = dict(a.split('=') for a in sys.argv[2:])
def opt(k, d): return type(d)(OPT.get(k, d))
def flag(k, d):
    v = opt(k, d)
    return '' if v == 'p' else v.replace('_', ' ')

H_OFF = 0
U_OFF = 0x280000
NBYTES = 2048 * 640 * 2
Q_OFF = 2*U_OFF
WS_BYTES = Q_OFF + NBYTES
ST_I = flag('st_i', 'sc1')
ST_O = flag('st_o', 'p')
ST_A = flag('st_a', 'p')
LD_IN = flag('ld_in', 'p')
LD_I = flag('ld_i', 'p')
PF = opt('pf', 2)
QT = opt('qt', 1)
def M(*xs): return ' '.join(x for x in xs if x)

def srd_tail(a, d, nbytes):
    a.I('s_mov_b32', S(d+2), hex(nbytes)); a.I('s_mov_b32', S(d+3), '0x20000')

def merge(a, *lists):
    lists = [l for l in lists if l]
    pos = [0]*len(lists)
    total = sum(len(l) for l in lists)
    for _ in range(total):
        k = min((i for i in range(len(lists)) if pos[i] < len(lists[i])), key=lambda i: (pos[i] + 0.5) / len(lists[i]))
        lists[k][pos[k]](); pos[k] += 1

STAMP = opt('stamp', 0)
class Stamps: n = 0
def stamp(a, first=False):
    if not STAMP: return
    if first: Stamps.n = 0
    a.I('s_memrealtime', S(66+2*Stamps.n, 2)); Stamps.n += 1
    assert Stamps.n <= 14
def stamp_out(a, kern, wsreg, dbg=None, part=None):
    if not STAMP: return
    a.waitcnt(vm=0)
    stamp(a)
    a.waitcnt(lg=0)
    if STAMP == 2:
        if dbg is None: return
        wg, slot, idxs = dbg
        lab = f'DBG_SKIP_{kern}_{slot}'
        a.I('s_cmp_lg_u32', 's2', wg); a.I('s_cbranch_scc1', lab)
        a.I('s_cmp_lg_u32', 's3', 0); a.I('s_cbranch_scc1', lab)
        a.I('s_load_dwordx2', S(94,2), S(0,2), 96)
        a.I('v_mov_b32', 'v0', 0)
        a.I('s_mov_b64', 'exec', 1)
        a.waitcnt(lg=0)
        for n, i in enumerate(idxs):
            a.I('v_mov_b32', 'v1', S(66+2*(i % Stamps.n)))
            a.I('global_store_dword', 'v0', 'v1', S(94,2), mods=f'offset:{4*(slot+n) + 512*(1-kern)}')
        a.label(lab)
        return
    a.I('s_lshl_b32', 's94', 's2', 3); a.I('s_add_u32', 's94', 's94', 's3'); a.I('s_lshl_b32', 's94', 's94', 6)
    a.I('s_add_u32', 's94', 's94', hex(0x1000000 + kern*0x40000))
    a.I('v_mov_b32', 'v0', 's94')
    a.I('s_mov_b64', 'exec', 1)
    for i in range(Stamps.n):
        a.I('v_mov_b32', 'v1', S(66+2*i))
        a.I('global_store_dword', 'v0', 'v1', S(wsreg,2), mods=f'offset:{4*i}')
    a.I('global_store_dword', 'v0', 'v1', S(wsreg,2), mods='offset:56')
    if part is not None:
        for pp in range(4):
            idx = (opt('dsel', -1) % Stamps.n) if pp == part else 0
            a.I('v_mov_b32', 'v1', S(66+2*idx))
            a.I('global_store_dword', 'v0', 'v1', S(wsreg,2), mods=f'offset:{36+4*pp}')
    a.I('v_mov_b32', 'v1', Stamps.n)
    a.I('global_store_dword', 'v0', 'v1', S(wsreg,2), mods='offset:60')

MF = 'v_mfma_f32_16x16x32_bf16'
TR = 'ds_read_b64_tr_b16'
DUMMY = 252

K1_T = 0
K1_X = 17*1024
K1_R = K1_X + 40960
RS = 2568
K1_LDS = K1_R + 16*RS + 64

def k1(a):
    a.raw(".globl k1_kernel\n.p2align 8\n.type k1_kernel,@function\nk1_kernel:")
    a.reset_state()
    a.I('s_getpc_b64', S(4,2))
    a.I('s_load_dwordx2', S(20,2), S(0,2), 48)
    a.I('s_load_dwordx2', S(24,2), S(0,2), 56)
    a.I('s_load_dwordx2', S(36,2), S(0,2), 0)
    a.I('s_load_dwordx2', S(28,2), S(0,2), 64)
    a.I('s_load_dwordx2', S(40,2), S(0,2), 104)
    a.I('s_load_dwordx2', S(32,2), S(0,2), 40)
    a.I('s_cmp_ge_u32', 's2', 256); a.I('s_cbranch_scc1', 'K1_END')
    stamp(a, True)
    a.I('v_lshrrev_b32', 'v2', 6, 'v0')
    a.I('v_and_b32', 'v1', 63, 'v0')
    a.I('v_readfirstlane_b32', 's3', 'v2')
    a.I('s_and_b32', 's16', 's2', 7)
    a.I('s_cmp_lt_u32', 's2', 128); a.I('s_cbranch_scc1', 'K1_A')
    st = a.save()
    k1_b_issue(a)
    a.I('s_branch', 'K1_B2')
    stb = a.save(); nb = Stamps.n
    a.label('K1_A'); a.restore(st); Stamps.n = 1
    k1_a(a)
    a.label('K1_B2'); a.restore(stb); Stamps.n = nb
    k1_b_rest(a)
    a.label('K1_PF'); a.restore(st)
    k1_pf(a)
    a.label('K1_END')
    a.I('s_endpgm')

KR, VR, WR, QB = 12, 34, 52, 176
def k1_b_issue(a):
    a.I('s_cmp_ge_u32', 's3', 5); a.I('s_cbranch_scc1', 'K1_PF')
    a.I('s_bfe_u32', 's17', 's2', hex(3 | (3 << 16)))
    a.I('s_lshl3_add_u32', 's16', 's16', 's17')
    a.I('s_bfe_u32', 's17', 's2', hex(6 | (1 << 16)))
    a.I('s_mul_i32', 's17', 's17', 5)
    a.I('s_add_u32', 's17', 's17', 's3')
    a.I('s_lshl_b32', 's17', 's17', 6)
    a.I('s_lshl_b32', 's16', 's16', 5)
    a.I('v_and_b32', 'v3', 15, 'v1')
    a.I('v_lshrrev_b32', 'v4', 4, 'v1')
    a.I('v_lshl_add_u32', 'v5', 'v3', 2, 's17')
    a.I('v_lshl_add_u32', 'v6', 'v4', 3, 's16')
    a.I('v_mul_u32_u24', 'v7', 1280, 'v6')
    a.I('v_lshl_add_u32', 'v7', 'v5', 1, 'v7')
    a.I('v_subrev_u32', 'v8', 3840, 'v7')
    a.I('s_movk_i32', 's18', 5120)
    srd_tail(a, 20, NBYTES); srd_tail(a, 24, NBYTES)
    for j in range(8):
        a.I('buffer_load_dwordx2', V(KR+6+2*j,2), 'v7', S(20,4), 's18' if j >= 4 else 0, mods=M(f'offen offset:{1280*(j%4)}', LD_IN))
    for j in range(3):
        a.I('buffer_load_dwordx2', V(KR+2*j,2), 'v8', S(20,4), 0, mods=M(f'offen offset:{1280*j}', LD_IN))
    a.I('v_lshlrev_b32', 'v9', 3, 'v5')
    srd_tail(a, 28, 640*8)
    a.I('buffer_load_dwordx4', V(WR,4), 'v9', S(28,4), 0, mods=M('offen', LD_IN))
    a.I('buffer_load_dwordx4', V(WR+4,4), 'v9', S(28,4), 0, mods=M('offen offset:16', LD_IN))
    for j in range(8):
        a.I('buffer_load_dwordx2', V(VR+2*j,2), 'v7', S(24,4), 's18' if j >= 4 else 0, mods=M(f'offen offset:{1280*(j%4)}', LD_IN))
    if PF == 1 or QT: a.I('s_barrier')
    stamp(a)

def k1_pf(a):
    a.I('s_bfe_u32', 's17', 's2', hex(3 | (4 << 16)))
    a.I('s_mul_i32', 's17', 's17', 3); a.I('s_add_u32', 's17', 's17', 's3'); a.I('s_sub_u32', 's17', 's17', 5)
    a.I('s_mov_b32', 's6', 'PF_END-k1_kernel-4'); a.I('s_mov_b32', 's7', '0x20000')
    a.I('v_lshlrev_b32', 'v3', 4, 'v1')
    a.I('s_lshl_b32', 's18', 's17', 10)
    if opt('cpf', 1):
        a.I('buffer_load_dwordx4', V(DUMMY,4), 'v3', S(4,4), 's18', mods='offen', notrack=True)
        a.I('s_add_u32', 's18', 's18', 48*1024)
        a.I('buffer_load_dwordx4', V(DUMMY,4), 'v3', S(4,4), 's18', mods='offen', notrack=True)
    if QT:
        assert PF != 1
        a.I('s_bfe_u32', 's8', 's2', hex(1 | (6 << 16)))
        a.I('s_and_b32', 's9', 's2', 1)
        a.I('v_lshrrev_b32', 'v4', 3, 'v1'); a.I('v_and_b32', 'v5', 7, 'v1')
        a.I('v_xor_b32', 'v6', 'v4', 'v5')
        a.I('v_mul_u32_u24', 'v7', 64*1280, 'v4'); a.I('v_lshl_add_u32', 'v7', 'v6', 4, 'v7')
        a.I('v_lshlrev_b32', 'v8', 7, 'v5'); a.I('v_lshl_add_u32', 'v8', 'v6', 4, 'v8')
        a.I('v_lshlrev_b32', 'v9', 15, 'v4'); a.I('v_lshl_add_u32', 'v9', 'v5', 4, 'v9')
        a.I('s_lshl_b32', 's10', 's9', 10); a.I('s_add_u32', 's10', 's10', 's8'); a.I('s_mul_i32', 's10', 's10', 1280)
        a.I('s_lshl_b32', 's11', 's8', 9); a.I('s_lshl_b32', 's12', 's9', 8); a.I('s_add_u32', 's11', 's11', 's12')
        a.I('s_add_u32', 's11', 's11', hex(Q_OFF))
        a.I('s_sub_u32', 's13', 's3', 5)
        a.I('s_mul_i32', 's14', 's13', 7*1024); a.I('s_add_u32', 's14', 's14', 20480)
        a.I('v_add_u32', 'v8', 's14', 'v8')
        srd_tail(a, 32, NBYTES); srd_tail(a, 40, WS_BYTES)
        for k in range(7):
            a.I('s_add_u32', 's15', 's13', 3*k)
            if k == 6:
                a.I('s_cmp_eq_u32', 's15', 20); a.I('s_cselect_b32', 's15', 19, 's15')
            a.I('s_cmp_ge_u32', 's15', 10)
            a.I('s_cselect_b32', 's19', 8*64*1280 - 10*128, 0)
            a.I('s_cselect_b32', 's18', hex((128 - 10*8*32768) & 0xffffffff), 0)
            a.I('s_lshl_b32', 's17', 's15', 7); a.I('s_add_u32', 's19', 's19', 's17'); a.I('s_add_u32', S(44+k), 's19', 's10')
            a.I('s_lshl_b32', 's17', 's15', 18); a.I('s_add_u32', 's18', 's18', 's17'); a.I('s_add_u32', S(52+k), 's18', 's11')
        a.I('s_barrier')
        for k in range(7):
            a.I('s_add_u32', 'm0', 's14', 1024*k)
            a.I('buffer_load_dwordx4', 'v7', S(32,4), S(44+k), mods=M('offen', LD_IN, 'lds'), tag=f'q{k}')
        for k in range(7):
            a.wait_tag(f'q{k}')
            a.I('ds_read_b128', V(12+4*k,4), 'v8', mods=f'offset:{1024*k}')
            if k: a.I('buffer_store_dwordx4', V(8+4*k,4), 'v9', S(40,4), S(51+k), mods=M('offen', ST_I))
        a.I('buffer_store_dwordx4', V(36,4), 'v9', S(40,4), 's58', mods=M('offen', ST_I))
    if PF == 1:
        a.I('s_load_dwordx2', S(52,2), S(0,2), 72)
        a.I('s_lshr_b32', 's60', 's16', 1); a.I('s_lshl1_add_u32', 's60', 's16', 's60')
        srd_tail(a, 52, NBYTES)
        a.I('s_lshl_b32', 's61', 's60', 17); a.I('s_lshl_b32', 's62', 's17', 13); a.I('s_add_u32', 's61', 's61', 's62')
        a.I('s_add_u32', 's62', 's61', 4096)
        a.I('s_barrier')
        for j in range(8):
            a.I('buffer_load_dwordx4', V(DUMMY,4), 'v3', S(52,4), 's61' if j < 4 else 's62', mods=M(f'offen offset:{1024*(j%4)}', LD_IN), notrack=True)

def k1_b_rest(a):
    KU, WU, KS, TMP, O = 60, 104, 120, 152, 160
    a.I('v_lshrrev_b32', 'v10', 2, 'v1'); a.I('v_lshlrev_b32', 'v10', 12, 'v10')
    a.I('v_and_b32', 'v7', 3, 'v1'); a.I('v_lshl_add_u32', 'v10', 'v7', 4, 'v10')
    srd_tail(a, 40, WS_BYTES)
    a.I('s_lshl_b32', 's44', 's17', 12); a.I('s_lshl1_add_u32', 's44', 's16', 's44'); a.I('s_add_u32', 's44', 's44', hex(U_OFF))
    for k in range(1, 4): a.I('s_add_u32', S(44+k), S(43+k), 16*4096)
    a.I('v_and_b32', 'v5', 15, 'v1'); a.I('v_lshrrev_b32', 'v6', 4, 'v1')
    a.I('s_lshl_b32', 's50', 's3', 12)
    a.I('v_and_b32', 'v7', 7, 'v5'); a.I('v_xor_b32', 'v7', 'v7', 'v6')
    a.I('v_lshlrev_b32', 'v7', 4, 'v7'); a.I('v_lshl_add_u32', 'v7', 'v5', 8, 'v7'); a.I('v_add_u32', 'v7', 's50', 'v7')
    a.I('v_xor_b32', 'v8', 64, 'v7')
    a.I('v_xor_b32', 'v5', 'v5', 'v6'); a.I('v_lshlrev_b32', 'v5', 4, 'v5'); a.I('v_lshl_add_u32', 'v5', 'v6', 8, 'v5'); a.I('v_add_u32', 'v5', 's50', 'v5')
    a.I('v_xor_b32', 'v6', 64, 'v5')
    a.I('s_mov_b32', 's48', '0xffff0000')
    def unpack(dst_lo, dst_hi, src):
        a.I('v_lshlrev_b32', V(dst_lo), 16, V(src)); a.I('v_and_b32', V(dst_hi), 's48', V(src))
    def unk(j):
        unpack(KU+4*j, KU+4*j+1, KR+2*j); unpack(KU+4*j+2, KU+4*j+3, KR+2*j+1)
    for j in list(range(3, 11)) + [0, 1, 2]: unk(j)
    stamp(a)
    for ch in range(4):
        unpack(WU+0*4+ch, WU+1*4+ch, WR+2*ch)
        unpack(WU+2*4+ch, WU+3*4+ch, WR+2*ch+1)
    for j in range(8):
        for p in range(2):
            a.I('v_pk_mul_f32', V(KS+4*j+2*p, 2), V(KU+4*j+2*p,2), V(WU+3*4+2*p,2))
        for t in range(1, 4):
            for p in range(2):
                d = V(KS+4*j+2*p, 2)
                a.I('v_pk_fma_f32', d, V(KU+4*(j+t)+2*p,2), V(WU+(3-t)*4+2*p,2), d)
    stamp(a)
    for j in range(8):
        t = TMP + 4*(j & 1)
        unpack(t, t+1, VR+2*j); unpack(t+2, t+3, VR+2*j+1)
        for p in range(2):
            d = V(KS+4*j+2*p, 2)
            a.I('v_pk_mul_f32', d, d, V(t+2*p,2))
        if j & 1:
            for ch in range(4):
                a.I('v_cvt_pk_bf16_f32', V(O+4*ch+j//2), V(KS+4*(j-1)+ch), V(KS+4*j+ch))
    for ch in range(4):
        a.I('ds_write_b128', 'v8' if ch & 1 else 'v7', V(O+4*ch,4), mods=f'offset:{128*(ch>>1)}')
    for k in range(4):
        a.I('ds_read_b128', V(KU+4*k,4), 'v6' if k & 1 else 'v5', mods=f'offset:{1024*k}')
    for k in range(4):
        a.I('buffer_store_dwordx4', V(KU+4*k,4), 'v10', S(40,4), S(44+k), mods=M('offen', ST_I))
    stamp(a)
    stamp_out(a, 0, 40, (128, 4, [0, 2, -2, -1]))
    a.I('s_endpgm')

def k1_a(a):
    a.I('s_lshr_b32', 's17', 's2', 4)
    a.I('s_lshl3_add_u32', 's16', 's17', 's16')
    a.I('s_sub_u32', 's18', 128, 's16')
    a.I('s_cmp_eq_u32', 's16', 0)
    a.I('s_cselect_b32', 's18', 64, 's18')
    a.I('s_and_b32', 's19', 's3', 3)
    a.I('s_lshr_b32', 's6', 's3', 2)
    a.I('s_add_u32', 's8', 's4', 'TBL1-k1_kernel-4'); a.I('s_addc_u32', 's9', 's5', 0)
    srd_tail(a, 8, 17*1024)
    a.I('v_lshlrev_b32', 'v3', 4, 'v1')
    a.I('s_lshl_b32', 's12', 's3', 10)
    a.I('s_cmp_lg_u32', 's3', 0); a.I('s_cbranch_scc1', 'K1_T2')
    a.I('s_movk_i32', 's14', 16*1024)
    a.I('s_mov_b32', 'm0', K1_T + 16*1024)
    a.I('buffer_load_dwordx4', 'v3', S(8,4), 's14', mods='offen lds', tag='tbl')
    a.label('K1_T2')
    a.I('s_add_u32', 'm0', 's12', K1_T)
    a.I('s_add_u32', 's13', 's12', 8192)
    a.I('buffer_load_dwordx4', 'v3', S(8,4), 's12', mods='offen lds', tag='tbl')
    a.I('s_add_u32', 'm0', 's13', K1_T)
    a.I('buffer_load_dwordx4', 'v3', S(8,4), 's13', mods='offen lds', tag='tbl')
    a.I('v_lshrrev_b32', 'v4', 3, 'v1')
    a.I('v_and_b32', 'v5', 7, 'v1')
    a.I('v_and_b32', 'v6', 2, 'v4')
    a.I('s_and_b32', 's7', 's19', 1); a.I('s_lshl_b32', 's7', 's7', 2)
    a.I('v_xor_b32', 'v5', 'v5', 'v6')
    a.I('v_xor_b32', 'v5', 's7', 'v5')
    a.I('v_mul_u32_u24', 'v6', 128*1280, 'v4')
    a.I('v_lshl_add_u32', 'v6', 'v5', 4, 'v6')
    a.I('s_cmp_ge_u32', 's19', 2)
    a.I('s_cselect_b32', 's30', 's18', 's16')
    a.I('s_lshl_b32', 's31', 's7', 8)
    a.I('s_add_u32', 's30', 's30', 's31')
    a.I('s_lshl1_add_u32', 's30', 's30', 's6')
    a.I('s_mul_i32', 's30', 's30', 640)
    a.I('s_lshl1_add_u32', 's31', 's19', 's6')
    a.I('s_mul_i32', 's31', 's31', 5120)
    srd_tail(a, 36, NBYTES)
    for i in range(5):
        a.I('s_add_u32', 'm0', 's31', K1_X + i*(1024-128))
        a.I('buffer_load_dwordx4', 'v6', S(36,4), 's30', mods=M(f'offen offset:{128*i}', LD_IN, 'lds'), tag='x')
    stamp(a)
    if PF == 2: a.I('s_load_dwordx2', S(52,2), S(0,2), 72)
    a.I('s_bfe_u32', 's17', 's2', hex(3 | (1 << 16)))
    a.I('s_mul_i32', 's32', 's6', 5120)
    AL = 8
    TM = 16
    a.I('v_and_b32', 'v4', 15, 'v1')
    a.I('v_lshrrev_b32', 'v5', 4, 'v1')
    a.I('v_cmp_gt_u32', 'vcc', 2, 'v5')
    a.I('v_mov_b32', 'v6', 's18')
    a.I('v_mov_b32', 'v7', 's16')
    a.I('v_cndmask_b32', 'v6', 'v6', 'v7', 'vcc')
    a.I('v_and_b32', 'v7', 1, 'v5')
    a.I('v_lshl_add_u32', 'v6', 'v7', 10, 'v6')
    a.I('v_mul_u32_u24', 'v6', 'v6', 'v4')
    a.I('s_cmp_lg_u32', 's16', 0); a.I('s_cselect_b32', 's33', 's17', 0)
    a.I('s_mul_i32', 's34', 's33', 512); a.I('s_mul_i32', 's35', 's33', 1536)
    a.I('v_mov_b32', 'v7', 's35'); a.I('v_mov_b32', V(TM), 's34')
    a.I('v_cndmask_b32', 'v7', 'v7', V(TM), 'vcc')
    a.I('v_add_u32', 'v6', 'v6', 'v7')
    a.I('v_cvt_f32_u32', 'v6', 'v6')
    a.I('v_mul_f32', 'v6', '0x3a000000', 'v6')
    a.I('v_cvt_f32_u32', 'v7', 'v4')
    a.I('v_mul_f32', 'v7', '0x3d800000', 'v7')
    a.I('s_cmp_eq_u32', 's17', 0); a.I('s_cselect_b32', 's34', -1, 0); a.I('s_cselect_b32', 's35', 0, -1)
    a.I('s_cmp_lg_u32', 's16', 0); a.I('s_cselect_b32', 's34', -1, 's34'); a.I('s_cselect_b32', 's35', -1, 's35')
    a.I('v_mov_b32', V(TM), 's35'); a.I('v_mov_b32', V(TM+1), 's34')
    a.I('v_cndmask_b32', 'v2', V(TM), V(TM+1), 'vcc')
    for e in range(8):
        a.I('v_cos_f32', V(TM+e), 'v6')
        a.I('v_sin_f32', V(TM+8+e), '-v6')
        if e < 7: a.I('v_add_f32', 'v6', 'v6', 'v7')
    for h in range(2):
        for j in range(4):
            a.I('v_cvt_pk_bf16_f32', V(AL+4*h+j), V(TM+8*h+2*j), V(TM+8*h+2*j+1))
    for j in range(8):
        a.I('v_and_b32', V(AL+j), 'v2', V(AL+j))
    VA, VW, VD, VD2, VS = 4, 5, 6, 7, 2
    a.I('v_lshrrev_b32', V(TM), 4, 'v1')
    a.I('v_bfe_u32', V(TM+1), 'v1', 2, 2)
    a.I('v_and_b32', V(TM+2), 3, 'v1')
    a.I('v_and_b32', V(TM+3), 15, 'v1')
    a.I('v_bfe_u32', V(TM+4), 'v1', 3, 2)
    a.I('v_xor_b32', V(TM+4), 's19', V(TM+4))
    a.I('v_mul_u32_u24', V(VA), 10240, V(TM))
    a.I('v_lshl_add_u32', V(VA), V(TM+1), 7, V(VA))
    a.I('v_lshl_add_u32', V(VA), V(TM+4), 5, V(VA))
    a.I('v_lshl_add_u32', V(VA), V(TM+2), 3, V(VA))
    a.I('v_add_u32', V(VA), 's32', V(VA))
    a.I('v_mul_u32_u24', V(VW), RS, V(TM+3))
    a.I('v_lshl_add_u32', V(VW), V(TM), 3, V(VW))
    a.I('s_lshl_b32', 's33', 's19', 5); a.I('s_mul_i32', 's34', 's6', 640); a.I('s_add_u32', 's33', 's33', 's34')
    a.I('v_add_u32', V(VW), 's33', V(VW))
    a.I('v_lshrrev_b32', V(TM+5), 1, V(TM))
    a.I('v_mul_u32_u24', V(VD), 1280, V(TM+5))
    a.I('v_and_b32', V(TM+5), 1, V(TM))
    a.I('v_lshl_add_u32', V(TM+5), V(TM+5), 3, V(TM+1))
    a.I('v_mul_u32_u24', V(TM+5), 80, V(TM+5))
    a.I('v_add_u32', V(VD), V(VD), V(TM+5))
    a.I('s_mul_i32', 's33', 's3', 2*RS)
    a.I('v_add_u32', V(VD), 's33', V(VD))
    a.I('v_and_b32', V(TM+5), 1, V(TM+2))
    a.I('v_lshl_add_u32', V(VD2), V(TM+5), 3, V(VD))
    a.I('v_lshl_add_u32', V(VD), V(TM+2), 3, V(VD))
    a.I('v_lshlrev_b32', V(VS), 7, V(TM+1))
    a.I('v_lshl_add_u32', V(VS), V(TM), 5, V(VS))
    a.I('v_lshl_add_u32', V(VS), V(TM+2), 3, V(VS))
    VS2 = 1
    a.I('v_cmp_gt_u32', 'vcc', 8, V(TM+3))
    a.I('v_mov_b32', V(TM+5), '0x7ff00000')
    a.I('v_cndmask_b32', V(VS2), V(TM+5), V(VS), 'vcc')
    srd_tail(a, 40, WS_BYTES)
    a.I('s_lshl_b32', 's33', 's3', 8); a.I('s_lshl_b32', 's34', 's17', 6)
    a.I('s_add_u32', 's33', 's33', 's34'); a.I('s_add_u32', 's33', 's33', 's16')
    a.I('s_mul_i32', 's44', 's33', 1280); a.I('s_add_u32', 's45', 's44', 128*1280)
    assert H_OFF == 0
    D1B, TW, D2B = 48, 56, 80
    stamp(a)
    a.wait_tag('tbl'); a.I('s_barrier')
    for i in range(17): a.I('ds_read_b128', V(D1B+4*i,4), 'v3', mods=f'offset:{K1_T+1024*i}')
    a.wait_tag('x'); stamp(a); a.I('s_barrier')
    stamp(a)
    if PF == 2:
        a.I('s_and_b32', 's50', 's2', 7)
        a.I('s_lshr_b32', 's51', 's2', 3); a.I('s_lshl3_add_u32', 's51', 's51', 's3')
        a.I('s_lshr_b32', 's60', 's50', 1); a.I('s_lshl1_add_u32', 's60', 's50', 's60')
        srd_tail(a, 52, NBYTES)
        a.I('s_lshl_b32', 's61', 's60', 17); a.I('s_mul_i32', 's62', 's51', 3072); a.I('s_add_u32', 's61', 's61', 's62')
        for j in range(3):
            a.I('buffer_load_dwordx4', V(DUMMY,4), 'v3', S(52,4), 's61', mods=M(f'offen offset:{1024*j}', LD_IN), notrack=True)
    AF, AD, PK = 116, 136, 176
    for i in range(5):
        for h in range(2):
            a.I(TR, V(AF+4*i+2*h,2), V(VA), mods=f'offset:{K1_X+1024*i+512*h}')
    def fin(i):
        for cp in range(2):
            d = AD+8*i+4*cp; p = PK+4*i+2*cp
            a.I('v_cvt_pk_bf16_f32', V(p), V(d), V(d+1)); a.I('v_cvt_pk_bf16_f32', V(p+1), V(d+2), V(d+3))
            a.I('ds_write_b64', V(VW), V(p,2), mods=f'offset:{K1_R+1280*cp+128*i}')
    for i in range(7):
        if i < 5:
            for cp in range(2):
                a.I(MF, V(AD+8*i+4*cp,4), V(AF+4*i,4), V(AL+4*cp,4), 0)
        if i >= 2: fin(i-2)
    a.barrier()
    stamp(a)
    DF, D1, WP, D2, OP, TT = 116, 140, 188, 212, 236, 16
    for r in range(2):
        for tau in range(3):
            for h in range(2):
                a.I(TR, V(DF+12*r+4*tau+2*h,2), V(VD2 if tau == 2 else VD), mods=f'offset:{K1_R+RS*r+320*h+32*tau}')
    def d1(r):
        return [(lambda tau=tau, cp=cp: a.I(MF, V(D1+24*r+8*tau+4*cp,4), V(DF+12*r+4*tau,4), V(D1B+4*cp,4), 0)) for tau in range(3) for cp in range(2)]
    def twd(r):
        l = []
        for tau in range(3):
            re = D1+24*r+8*tau; im = re+4; tc = TW+8*tau; ts = tc+4; t = TT+8*(tau & 1)+16*r
            for j in range(4): l.append(lambda j=j, re=re, tc=tc, t=t: a.I('v_mul_f32', V(t+j), V(re+j), V(tc+j)))
            for j in range(4): l.append(lambda j=j, im=im, tc=tc, t=t: a.I('v_mul_f32', V(t+4+j), V(im+j), V(tc+j)))
            for j in range(4): l.append(lambda j=j, im=im, ts=ts, t=t: a.I('v_fmac_f32', V(t+j), V(im+j), V(ts+j)))
            for j in range(4): l.append(lambda j=j, re=re, ts=ts, t=t: a.I('v_fma_f32', V(t+4+j), '-'+V(re+j), V(ts+j), V(t+4+j)))
            for j in range(4): l.append(lambda j=j, t=t, tau=tau: a.I('v_cvt_pk_bf16_f32', V(WP+12*r+4*tau+j), V(t+2*j), V(t+2*j+1)))
        return l
    def d2(r):
        return [(lambda tau=tau, jt=jt: a.I(MF, V(D2+12*r+4*jt,4), V(WP+12*r+4*tau,4), V(D2B+12*tau+4*jt,4), 0 if tau == 0 else V(D2+12*r+4*jt,4)))
                for tau in range(3) for jt in range(3)]
    def outp(r):
        l = []
        for jt in range(3):
            d = D2+12*r+4*jt; p = OP+6*r+2*jt
            l.append(lambda d=d, p=p: a.I('v_cvt_pk_bf16_f32', V(p), V(d), V(d+1)))
            l.append(lambda d=d, p=p: a.I('v_cvt_pk_bf16_f32', V(p+1), V(d+2), V(d+3)))
            l.append(lambda p=p, jt=jt: a.I('buffer_store_dwordx2', V(p,2), V(VS2 if jt == 2 else VS), S(40,4), S(44+r), mods=M(f'offen offset:{512*jt}', ST_I)))
        return l
    D1L = [d1(0), d1(1)]; TWL = [twd(0), twd(1)]; D2L = [d2(0), d2(1)]
    tw_ = lambda r, t: TWL[r][20*t:20*t+20]
    d2_ = lambda r, t: D2L[r][3*t:3*t+3]
    merge(a, D1L[0] + D1L[1][:2])
    merge(a, tw_(0,0), D1L[1][2:])
    merge(a, tw_(0,1), d2_(0,0))
    merge(a, tw_(0,2), d2_(0,1))
    merge(a, tw_(1,0), d2_(0,2))
    merge(a, tw_(1,1), d2_(1,0))
    merge(a, outp(0) + tw_(1,2), d2_(1,1))
    merge(a, d2_(1,2))
    merge(a, outp(1))
    stamp(a)
    stamp_out(a, 0, 40, (0, 0, [0, 4, -2, -1]))
    a.I('s_endpgm')

CR = 8480
K2_A = 0
K2_Y = 16384
YS = 3*512 + 64
K2_C = K2_Y + 8*YS
K2_LDS = K2_C + 8*CR
def seq_steps(g, steps):
    return [(J, s) for s in steps for J in reversed(g) if J - 2*s >= 0]
def seq_tiles(g, s0=0):
    return [(J, s) for J in g for s in range(s0, J//2+1)]
HF, UF = 64, 128
PARTS = [
    dict(seq=seq_steps(range(8), [1,2,3,0]) + seq_steps(range(27,32), range(9)) + seq_tiles(range(27,32), 9),
         quads=[[0,1,2,3],[4,5,6,7],[28,29,30,31]], a2=False,
         acc={**{J: HF+4*(8+J) for J in range(8)}, 27:8, 28:12, 29:16, 30:20, 31:56},
         dma=[['u0','h0','u3'], ['u2','h1'], {2:'u1', 6:'h2', 10:'h3'}], qpos=[12, 15, 18]),
    dict(seq=seq_steps(range(19,24), [1,2,3,0]+list(range(4,12))) + seq_tiles(range(24,28)),
         quads=[[20,21,22,23],[24,25,26,27]], a2=False,
         acc={19:8, 20:12, 21:16, 22:20, 23:56, 24:60, 25:240, 26:244, 27:248},
         dma=[['u2','h0','u1'], ['h1','u0'], {2:'h2', 6:'u3', 10:'h3'}], qpos=[14, 18]),
    dict(seq=seq_steps(range(7,12), [1,2,3,0,4,5]) + seq_tiles(range(12,20)),
         quads=[[8,9,10,11],[12,13,14,15],[16,17,18,19]], a2=True,
         acc={7:8, 8:12, 9:16, 10:20, 11:56, 12:60, 13:104, 14:108, 15:112, 16:116, 17:120, 18:208, 19:212},
         dma=[['u0','h0','u1'], ['h1','u2'], {2:'h2'}], qpos=[5, 8, 11]),
]

def k2(a):
    a.raw(".globl k2_kernel\n.p2align 8\n.type k2_kernel,@function\nk2_kernel:")
    a.reset_state()
    a.I('s_getpc_b64', S(4,2))
    a.I('s_load_dwordx2', S(28,2), S(0,2), 104)
    a.I('s_load_dwordx2', S(24,2), S(0,2), 72)
    a.I('s_load_dwordx2', S(32,2), S(0,2), 80)
    a.I('s_load_dwordx2', S(40,2), S(0,2), 88)
    a.I('s_load_dwordx2', S(36,2), S(0,2), 40)
    a.I('s_cmp_ge_u32', 's2', 256); a.I('s_cbranch_scc1', 'K2_END')
    stamp(a, True)
    a.I('v_lshrrev_b32', 'v2', 6, 'v0')
    a.I('v_and_b32', 'v1', 63, 'v0')
    a.I('v_readfirstlane_b32', 's3', 'v2')
    a.I('s_and_b32', 's13', 's2', 7)
    a.I('s_lshr_b32', 's17', 's2', 5)
    a.I('s_bfe_u32', 's19', 's2', hex(3 | (2 << 16)))
    srd_tail(a, 28, WS_BYTES)
    a.I('v_lshlrev_b32', 'v3', 4, 'v1')
    a.I('s_and_b32', 's18', 's13', 1)
    a.I('s_add_u32', 's18', 's18', 's17')
    a.I('s_cmp_ge_u32', 's18', 8); a.I('s_cbranch_scc1', 'K2_P3')
    st3 = a.save()
    a.I('s_mul_i32', 's16', 's13', 15); a.I('s_add_u32', 's16', 's16', 1); a.I('s_lshr_b32', 's16', 's16', 1)
    a.I('s_add_u32', 's16', 's16', 's17')
    a.I('s_mul_i32', 's17', 's16', 43); a.I('s_lshr_b32', 's17', 's17', 7)
    a.I('s_mul_i32', 's18', 's17', 3); a.I('s_sub_u32', 's18', 's16', 's18')
    a.I('s_lshl2_add_u32', 's17', 's17', 's19')
    a.I('s_lshl3_add_u32', 's20', 's17', 's3')
    a.I('s_lshl_b32', 's21', 's20', 12)
    a.I('s_add_u32', 's12', 's21', hex(U_OFF))
    a.I('s_mul_i32', 's22', 's3', CR)
    a.I('s_add_u32', 's22', 's22', K2_C)
    a.I('s_add_u32', 's52', 's22', 32); a.I('s_add_u32', 's53', 's22', 32+4096+256)
    srd_tail(a, 24, NBYTES)
    a.I('s_cmp_eq_u32', 's18', 1); a.I('s_cbranch_scc1', 'K2_P1')
    a.I('s_cmp_eq_u32', 's18', 0); a.I('s_cbranch_scc1', 'K2_P0')
    st = a.save()
    for n, p in enumerate((2, 1, 0)):
        if n:
            a.raw(".p2align 6"); a.label(f'K2_P{p}')
            a.restore(st)
        Stamps.n = 1
        k2_part(a, p)
    a.raw(".p2align 6"); a.label('K2_P3'); a.restore(st3); Stamps.n = 1
    k2_p3(a)
    a.label('K2_END')
    a.I('s_endpgm')

class A2:
    def __init__(self, a, C, VA, VO, T):
        self.a = a; self.C = C; self.VA = VA; self.VO = VO; self.T = T
    def dma_setup(self):
        a, T = self.a, self.T
        return [lambda: a.I('v_lshrrev_b32', V(T), 3, 'v1'), lambda: a.I('v_and_b32', V(T+1), 7, 'v1'), lambda: a.I('v_and_b32', V(T+2), 2, V(T)),
                lambda: a.I('v_xor_b32', V(T+1), V(T+1), V(T+2)),
                lambda: a.I('v_mul_u32_u24', V(T+2), 1280, V(T)),
                lambda: a.I('v_lshl_add_u32', V(T+2), V(T+1), 4, V(T+2)),
                lambda: a.I('v_xor_b32', V(T+3), 64, V(T+2)),
                lambda: a.I('s_lshl3_add_u32', 's47', 's45', 's3'),
                lambda: a.I('s_mul_i32', 's47', 's47', 16*1280), lambda: a.I('s_lshl_b32', 's48', 's46', 7), lambda: a.I('s_add_u32', 's47', 's47', 's48'),
                lambda: a.I('s_add_u32', 's48', 's47', 8*1280),
                lambda: a.I('s_lshl_b32', 's44', 's3', 11)]
    def dma(self, u, h, so=('s47', 's48')):
        a, T = self.a, self.T
        a.I('s_add_u32', 'm0', 's44', K2_A + 1024*h + u*(16384-128))
        a.I('buffer_load_dwordx4', V(T+2+h), S(28,4), so[h], mods=M(f'offen offset:{128*u}', LD_I, 'lds'), tag=f'a2{u}')
    def consts(self):
        a, T = self.a, self.T
        l = [lambda: a.I('s_add_u32', 's6', 's4', 'TBL2-k2_kernel-4'), lambda: a.I('s_addc_u32', 's7', 's5', 0),
             lambda: a.I('v_lshlrev_b32', V(T), 4, 'v1'), lambda: a.I('v_lshl_add_u32', V(T), 'v2', 12, V(T))]
        return l, [(lambda st=st: a.I('global_load_dwordx4', V(self.C+4*st,4), V(T), S(6,2), mods=f'offset:{1024*st}')) for st in range(4)]
    def addr_setup(self):
        a, T, VA, VO = self.a, self.T, self.VA, self.VO
        return [lambda: a.I('v_lshrrev_b32', V(T), 4, 'v1'),
                lambda: a.I('v_lshl_add_u32', V(VO), 'v2', 2, V(T)),
                lambda: a.I('v_mul_u32_u24', V(VO), 64*2560, V(VO)),
                lambda: a.I('v_and_b32', V(T+1), 15, 'v1'), lambda: a.I('v_lshl_add_u32', V(VO), V(T+1), 3, V(VO)),
                lambda: a.I('v_bfe_u32', V(T+1), 'v1', 2, 2), lambda: a.I('v_and_b32', V(T+2), 3, 'v1'), lambda: a.I('v_bfe_u32', V(T+3), 'v1', 3, 2),
                lambda: a.I('v_lshlrev_b32', V(VA), 10, V(T)),
                lambda: a.I('v_lshl_add_u32', V(VA), V(T+1), 7, V(VA)),
                lambda: a.I('v_lshl_add_u32', V(VA), V(T+2), 3, V(VA)),
                lambda: a.I('v_lshl_add_u32', V(VA), V(T+3), 5, V(VA))] + \
               [(lambda tau=tau: a.I('v_xor_b32', V(VA+tau), 32*tau, V(VA))) for tau in range(1, 4)] + \
               [lambda: a.I('s_mul_i32', 's47', 's45', 2560), lambda: a.I('s_lshl_b32', 's48', 's46', 7), lambda: a.I('s_add_u32', 's47', 's47', 's48')] + \
               [(lambda r=r: a.I('s_add_u32', S(47+r), S(46+r), 16*2560)) for r in range(1, 4)]
    def lists(self, u, AF, AD, PO, base):
        a = self.a
        order = [(st, tau) for st in range(4) for tau in range(4)]
        rd = [(lambda st=st, tau=tau, h=h: a.I(TR, V(AF+16*st+4*tau+2*h,2), V(self.VA+tau), mods=f'offset:{base+4096*st+512*h}'))
              for (st, tau) in order for h in range(2)]
        mm = [(lambda st=st, tau=tau: a.I(MF, V(AD+4*tau,4), V(self.C+4*st,4), V(AF+16*st+4*tau,4), 0 if st == 0 else V(AD+4*tau,4)))
              for (st, tau) in order]
        ou = []
        for r in range(4):
            ou.append(lambda r=r: a.I('v_cvt_pk_bf16_f32', V(PO+2*r), V(AD+r), V(AD+4+r)))
            ou.append(lambda r=r: a.I('v_cvt_pk_bf16_f32', V(PO+2*r+1), V(AD+8+r), V(AD+12+r)))
            ou.append(lambda r=r: a.I('buffer_store_dwordx2', V(PO+2*r,2), V(self.VO), S(40,4), S(47+r), mods=M(f'offen offset:{128*u}', ST_A)))
        return rd, mm, ou

def run(l):
    for f in l: f()

def q_touch(a, T, dummy):
    a.I('v_and_b32', V(T), 7, 'v1'); a.I('v_mul_u32_u24', V(T), 1280, V(T))
    a.I('v_lshrrev_b32', V(T+1), 3, 'v1'); a.I('v_lshl_add_u32', V(T), V(T+1), 6, V(T))
    a.I('v_cmp_lt_u32', 'vcc', 23, 'v1')
    a.I('v_cndmask_b32', V(T), V(T), -1, 'vcc')
    a.I('s_and_b32', 's62', 's2', 0xf8); a.I('s_add_u32', 's62', 's62', 's3'); a.I('s_mul_i32', 's62', 's62', 8*1280)
    a.I('s_lshr_b32', 's63', 's13', 1); a.I('s_lshl1_add_u32', 's63', 's13', 's63'); a.I('s_lshl_b32', 's63', 's63', 6)
    a.I('s_add_u32', 's62', 's62', 's63')
    a.I('buffer_load_dword', V(dummy), V(T), S(36,4), 's62', mods=M('offen', LD_IN), notrack=True)

def k2_p3(a):
    a.I('s_lshr_b32', 's45', 's13', 1); a.I('s_lshl2_add_u32', 's45', 's45', 's19')
    a.I('s_mov_b32', 's46', 5)
    A = A2(a, 8, 56, 60, 4)
    run(A.dma_setup())
    for h in range(2): A.dma(0, h)
    B = A2(a, 8, 56, 60, 52)
    c0, c1 = B.consts(); run(c0); run(c1)
    for h in range(2): A.dma(1, h)
    a.I('s_mov_b32', 's60', 's47'); a.I('s_mov_b32', 's61', 's48')
    srd_tail(a, 36, NBYTES)
    if not QT: q_touch(a, 48, 255)
    stamp(a)
    run(B.addr_setup())
    srd_tail(a, 40, 2*NBYTES)
    stamp(a)
    L = [A.lists(u, 64 + 64*(u & 1), 192 + 16*(u & 1), 224 + 8*(u & 1), K2_A + 16384*(u % 4)) for u in range(5)]
    def bump():
        for tau in range(4): a.I('v_add_u32', V(56+tau), 65536, V(56+tau))
    def sync(u):
        def f(): a.wait_tag(f'a2{u}'); a.I('s_barrier')
        return f
    rds = []
    for u in range(5):
        rds += [sync(u)] + ([bump] if u == 4 else []) + L[u][0]
    mms = [];
    for u in range(5): mms += L[u][1]
    ev = {}
    for u in range(5):
        for n, f in enumerate(L[u][2]): ev.setdefault(16*u+16+3+n, []).append(f)
    for u in range(2, 5):
        for h in range(2): ev.setdefault(4*(u-2)+2*h, []).append(lambda u=u, h=h: A.dma(u, h, ('s60', 's61')))
    lead = 13
    run(rds[:lead]); pos = lead
    for i, m in enumerate(mms):
        run(ev.pop(i, []))
        m()
        tgt = min(len(rds), lead + ((i+1)*len(rds))//len(mms) + 1)
        run(rds[pos:tgt]); pos = max(pos, tgt)
    for k in sorted(ev): run(ev[k])
    stamp(a)
    stamp_out(a, 1, 28, part=3)
    a.I('s_endpgm')

def k2_part(a, p):
    P = PARTS[p]
    seq = P['seq']; quads = P['quads']; acc_of = P['acc']
    tiles = sorted(acc_of)
    assert sorted(seq) == sorted((J, s) for J in tiles for s in range(J//2+1))
    nq = len(quads)
    hb = 32; ub = 32 + 4096 + 256
    issued = set()
    def dma(t):
        x, i = t[0], int(t[1])
        a.I('s_mov_b32', 'm0', 's52' if x == 'h' else 's53')
        if x == 'h': a.I('buffer_load_dwordx4', 'v3', S(24,4), 's21', mods=M(f'offen offset:{1024*i}', LD_IN, 'lds'), tag=t)
        else: a.I('buffer_load_dwordx4', 'v3', S(28,4), 's12', mods=M(f'offen offset:{1024*i}', LD_I, 'lds'), tag=t)
        issued.add(t)
    for t in P['dma'][0]: dma(t)
    stamp(a)
    T0 = 52
    VH, VU, VYW, VYR = 4, 5, 6, 7
    QR, FT, VO, VQ = 24, 36, 44, 45
    a.I('v_mov_b32', V(T0+3), 0)
    a.I('v_lshl_add_u32', 'v6', 'v1', 2, 's22')
    a.I('ds_write_b32', 'v6', V(T0+3), mods=f'offset:{ub-256}')
    a.I('v_and_b32', 'v7', 7, 'v1')
    a.I('v_lshl_add_u32', 'v7', 'v7', 2, 's22')
    a.I('ds_write_b32', 'v7', V(T0+3))
    a.I('v_lshrrev_b32', V(T0), 4, 'v1')
    a.I('v_bfe_u32', V(T0+1), 'v1', 2, 2)
    a.I('v_and_b32', V(T0+2), 3, 'v1')
    a.I('v_add_u32', V(VH), V(T0+1), V(T0+2))
    a.I('v_lshl_add_u32', V(VH), V(T0), 3, V(VH))
    a.I('s_add_u32', 's23', 's22', hb-24)
    a.I('v_lshl_add_u32', V(VH), V(VH), 3, 's23')
    a.I('v_lshlrev_b32', V(VU), 2, V(T0+2))
    a.I('v_sub_u32', V(VU), V(VU), V(T0+1))
    a.I('v_lshlrev_b32', V(48), 3, V(T0))
    a.I('v_sub_u32', V(VU), V(VU), V(48))
    a.I('s_add_u32', 's23', 's22', ub-8)
    a.I('v_lshl_add_u32', V(VU), V(VU), 3, 's23')
    srd_tail(a, 32, 1280)
    a.I('s_lshl_b32', 's23', 's20', 1)
    a.I('buffer_load_ushort', V(46), 'off', S(32,4), 's23')
    a.I('buffer_load_ushort', V(47), 'off', S(24,4), 's21')
    for t in P['dma'][1]: dma(t)
    a.I('s_mul_i32', 's23', 's3', YS)
    a.I('v_lshl_add_u32', V(VYW), 'v1', 3, 's23')
    a.I('v_and_b32', V(T0+3), 1, V(T0+2))
    a.I('v_lshl_add_u32', V(T0+3), V(T0+3), 2, V(T0+1))
    a.I('v_mul_u32_u24', V(VYR), YS, V(T0+3))
    a.I('v_lshrrev_b32', V(T0+3), 1, V(T0+2))
    a.I('v_lshl_add_u32', V(T0+3), V(T0), 1, V(T0+3))
    a.I('v_lshl_add_u32', V(T0+3), 'v2', 3, V(T0+3))
    a.I('v_lshl_add_u32', V(VYR), V(T0+3), 3, V(VYR))
    srd_tail(a, 40, 2*NBYTES)
    a.I('v_lshrrev_b32', V(T0), 3, 'v1')
    a.I('v_lshl_add_u32', V(T0), 'v2', 3, V(T0))
    a.I('v_lshl_add_u32', V(T0+1), V(T0+2), 6, V(T0))
    a.I('v_mul_u32_u24', V(T0+1), 1280, V(T0+1))
    a.I('v_and_b32', V(T0+3), 4, 'v1')
    a.I('v_lshl_add_u32', V(VQ), V(T0+3), 27, V(T0+1))
    a.I('v_lshlrev_b32', V(VO), 1, V(VQ))
    if QT:
        a.I('v_lshlrev_b32', V(VQ), 9, V(T0))
        a.I('v_lshl_add_u32', V(VQ), V(T0+2), 4, V(VQ))
        a.I('v_lshl_add_u32', V(VQ), V(T0+3), 1, V(VQ))
        a.I('s_lshl_b32', 's61', 's17', 15); a.I('s_add_u32', 's61', 's61', hex(Q_OFF))
    else: srd_tail(a, 36, NBYTES)
    a.I('s_lshl_b32', 's54', 's17', 4)
    a.I('s_mov_b32', 's55', '0xffff0000')
    def qload(qi):
        q = quads[qi]
        if QT:
            a.I('buffer_load_dwordx2', V(QR+4*qi+2,2), V(VQ), S(28,4), 's61', mods=M(f'offen offset:{16*q[0]}', LD_I))
        else:
            a.I('s_add_u32', S(56+qi), 's54', hex(q[0]*64*1280))
            a.I('buffer_load_dwordx4', V(QR+4*qi,4), V(VQ), S(36,4), S(56+qi), mods=M('offen', LD_IN))
        a.I('s_add_u32', S(56+qi), 's54', hex(q[0]*64*2560 + 1280))
    stamp(a)
    if STAMP: a.wait_tag('h0'); stamp(a)
    ev = {}
    def at(i, *fs): ev.setdefault(i, []).extend(fs)
    for i, t in P['dma'][2].items(): at(i, lambda t=t: dma(t))
    if not QT: at(4, lambda: q_touch(a, 48, 0))
    for qi in range(nq): at(P['qpos'][qi] + (0 if QT else 14), lambda qi=qi: qload(qi))
    TS = [48, 49, 50, 51, 52, 53, 46, 47]
    t_of = {J: TS[n % len(TS)] for n, J in enumerate(tiles)}
    YR = 54
    n = len(seq)
    if P['a2']:
        A = A2(a, 232, 248, 252, 124)
        pre = [lambda: a.I('s_mul_i32', 's45', 's17', 205), lambda: a.I('s_lshr_b32', 's45', 's45', 10),
               lambda: a.I('s_mul_i32', 's46', 's45', 5), lambda: a.I('s_sub_u32', 's46', 's17', 's46')] + A.dma_setup()
        for k, f in enumerate(pre): at(7 + k//3, f)
        at(14, lambda: A.dma(0, 0)); at(16, lambda: A.dma(0, 1))
        c0, c1 = A.consts()
        at(17, *c0)
        for k, f in enumerate(c1): at(18+2*k, f)
        for k, f in enumerate(A.addr_setup()): at(70 + k//2, f)
    have = set(); live = {}
    def chk(r):
        for J, v in live.items(): assert not (v and acc_of[J] == r), (p, J, r)
    def need_bytes(x, lo, hi):
        for kb in range(max(lo, 0)//1024, hi//1024 + 1):
            assert f'{x}{kb}' in issued, (p, x, kb)
            a.wait_tag(f'{x}{kb}')
    def loadH(s):
        if ('h', s) in have: return
        have.add(('h', s)); chk(HF+4*s)
        need_bytes('h', 256*s-24, 256*s+255)
        if s == 0:
            a.I('v_lshlrev_b32', V(46), 16, V(46)); a.I('v_lshlrev_b32', V(47), 16, V(47))
            a.I('v_add_f32', V(46), V(46), V(47))
            a.I('v_cvt_pk_bf16_f32', V(46), V(46), V(46))
            a.I('v_mov_b32', V(47), 's52')
            a.I('ds_write_b16', V(47), V(46))
        for h in range(2): a.I(TR, V(HF+4*s+2*h,2), V(VH), mods=f'offset:{256*s+32*h}')
    def loadU(m):
        if ('u', m) in have: return
        have.add(('u', m)); chk(UF+4*m)
        need_bytes('u', 128*m-224, 128*m+127)
        for h in range(2): a.I(TR, V(UF+4*m+2*h,2), V(VU), mods=f'offset:{128*m+32*(1-h)}')
    done = {}
    for i, (J, s) in enumerate(seq): done[J] = i
    valid = {J for q in quads for J in q}
    DP = 'row_mask:0xf bank_mask:0xf'
    side = []; s1_of = {}; y_of = {}
    GAP = 'gap'
    def gap(k): side.append((GAP, k))
    def add(e, f): side.append((e, f))
    def batch_reduce(js):
        e = max(done[J] for J in js) + 3
        def level(dst, src, add_, only_valid=False):
            jj = [J for J in js if not (only_valid and J not in valid)]
            for J in jj:
                if (J-1) in acc_of:
                    add(e, lambda J=J: a.I('v_add_f32_dpp', V(dst(J)), V(src(J-1)), V(add_(J)), mods='wave_ror:1 ' + DP))
            for J in jj:
                bc = '' if (J-1) in acc_of else ' bound_ctrl:0'
                add(e, lambda J=J, bc=bc: a.I('v_add_f32_dpp', V(dst(J)), V(src(J)), V(add_(J)), mods='wave_shr:1 ' + DP + bc))
        if len(js) == 1 and (js[0]-1) in acc_of and js[0] in valid:
            J = js[0]; d = acc_of[J]; pd = acc_of[J-1]
            s1 = FT + 2 + (J & 1); y = pd; ps1 = s1_of[J-1]
            s1_of[J] = s1; y_of[J] = y
            add(e, lambda: a.I('v_add_f32_dpp', V(t_of[J]), V(pd+3), V(d+2), mods='wave_ror:1 ' + DP))
            add(e, lambda: a.I('v_add_f32_dpp', V(s1), V(t_of[J-1]), V(d+1), mods='wave_ror:1 ' + DP))
            add(e, lambda: a.I('v_add_f32_dpp', V(y), V(ps1), V(d), mods='wave_ror:1 ' + DP))
            add(e, lambda: a.I('v_add_f32_dpp', V(t_of[J]), V(d+3), V(d+2), mods='wave_shr:1 ' + DP))
            gap(1)
            add(e, lambda: a.I('v_add_f32_dpp', V(s1), V(t_of[J]), V(d+1), mods='wave_shr:1 ' + DP))
            gap(1)
            add(e, lambda: a.I('v_add_f32_dpp', V(y), V(s1), V(d), mods='wave_shr:1 ' + DP))
            return
        for J in js: s1_of[J] = acc_of[J]+2; y_of[J] = acc_of[J]+1
        level(lambda J: t_of[J], lambda J: acc_of[J]+3, lambda J: acc_of[J]+2)
        level(lambda J: acc_of[J]+2, lambda J: t_of[J], lambda J: acc_of[J]+1)
        level(lambda J: acc_of[J]+1, lambda J: s1_of[J], lambda J: acc_of[J], True)
    def qprep(qi, e):
        qr = QR+4*qi
        if QT:
            l = [lambda: a.I('v_lshlrev_b32', V(qr), 16, V(qr+2)), lambda: a.I('v_and_b32', V(qr+1), 's55', V(qr+2)),
                 lambda: a.I('v_lshlrev_b32', V(qr+2), 16, V(qr+3)), lambda: a.I('v_and_b32', V(qr+3), 's55', V(qr+3))]
        else:
            l = [lambda: a.I('v_mov_b32_dpp', V(qr), V(qr+2), mods='row_shr:4 row_mask:0xf bank_mask:0xa'),
                 lambda: a.I('v_mov_b32_dpp', V(qr+1), V(qr+3), mods='row_shr:4 row_mask:0xf bank_mask:0xa'),
                 lambda: a.I('v_and_b32', V(qr+3), 's55', V(qr+1)), lambda: a.I('v_lshlrev_b32', V(qr+2), 16, V(qr+1)),
                 lambda: a.I('v_and_b32', V(qr+1), 's55', V(qr)), lambda: a.I('v_lshlrev_b32', V(qr), 16, V(qr))]
        for f in l: add(e, f)
    def stage(qi):
        q = quads[qi]
        def rel():
            for J in list(live):
                if J < q[-1] or (J == q[-1] and (J+1) not in acc_of): live[J] = False
        add(0, lambda: a.I('v_cvt_pk_bf16_f32', V(YR), V(y_of[q[0]]), V(y_of[q[1]])))
        add(0, lambda: (a.I('v_cvt_pk_bf16_f32', V(YR+1), V(y_of[q[2]]), V(y_of[q[3]])), rel()))
        add(0, lambda: a.I('ds_write_b64', V(VYW), V(YR,2), mods=f'offset:{K2_Y+512*qi}'))
    def bar(first):
        def f():
            if P['a2'] and first: a.wait_tag('a20')
            a.barrier()
        add(0, f)
    def flush(qi):
        qr = QR+4*qi; tmp = FT
        l = [lambda: a.I('v_lshlrev_b32', V(tmp+4), 16, V(tmp)), lambda: a.I('v_and_b32', V(tmp+5), 's55', V(tmp)),
             lambda: a.I('v_lshlrev_b32', V(tmp+6), 16, V(tmp+1)), lambda: a.I('v_and_b32', V(tmp+7), 's55', V(tmp+1))]
        l += [(lambda j=j: a.I('v_mul_f32', V(tmp+4+j), V(tmp+4+j), V(qr+j))) for j in range(4)]
        l += [lambda: a.I('v_cvt_pk_bf16_f32', V(qr), V(tmp+4), V(tmp+5)), lambda: a.I('v_cvt_pk_bf16_f32', V(qr+1), V(tmp+6), V(tmp+7)),
              lambda: a.I('v_mov_b32_dpp', V(qr+2), V(qr), mods='row_shl:4 ' + DP), lambda: a.I('v_mov_b32_dpp', V(qr+3), V(qr+1), mods='row_shl:4 ' + DP),
              lambda: a.I('buffer_store_dwordx4', V(qr,4), V(VO), S(40,4), S(56+qi), mods=M('offen', ST_O))]
        for f in l: add(0, f)
    def rdY(qi): add(0, lambda: a.I(TR, V(FT,2), V(VYR), mods=f'offset:{K2_Y+512*qi}'))
    if p == 0:
        batch_reduce(list(range(8))); stage(0); stage(1); bar(True)
        rdY(0); qprep(0, 0); gap(2); flush(0); rdY(1); qprep(1, 0); gap(2); flush(1); qprep(2, 0)
        for J in range(27, 32): batch_reduce([J])
        stage(2); bar(False); rdY(2); flush(2)
    elif p == 1:
        batch_reduce(list(range(19, 24))); stage(0); bar(True); rdY(0); qprep(0, 0); gap(2)
        batch_reduce([24]); flush(0); qprep(1, 0)
        for J in range(25, 28): batch_reduce([J])
        stage(1); bar(False); rdY(1); flush(1)
    else:
        batch_reduce(list(range(7, 12))); stage(0); bar(True); rdY(0); qprep(0, 0)
        batch_reduce([12]); flush(0)
        for J in range(13, 16): batch_reduce([J])
        stage(1); bar(False); rdY(1); qprep(1, 0); gap(2); flush(1); qprep(2, 0)
        for J in range(16, 20): batch_reduce([J])
        stage(2); bar(False); rdY(2); gap(2); flush(2)
    AHEAD = opt('ahead', 8); KS = opt('ks', 3)
    started = set()
    mlist = []
    def conv(idx):
        def f():
            for k in range(idx, min(idx+AHEAD, n)):
                J, s = seq[k]; loadH(s); loadU(J-2*s)
            J, s = seq[idx]
            d = V(acc_of[J],4)
            a.I(MF, d, V(UF+4*(J-2*s),4), V(HF+4*s,4), d if J in started else 0)
            started.add(J); live[J] = True
        return f
    mlist = [conv(i) for i in range(n)]
    tail = []
    if P['a2']:
        rd, mm, ou = A.lists(0, 144, 216, 64, K2_A)
        tail = ou
        mlist += mm
        order = sorted(range(16), key=lambda f: f)
        for f in range(16):
            m = 4+f
            free_at = (n-10 + (19-m)//2 + 1) if m & 1 else n-10
            slot = max(free_at, n + f - 6)
            at(slot, rd[2*f], rd[2*f+1])
    sp = 0; hold = -1
    for i, m in enumerate(mlist):
        run(ev.pop(i, []))
        m()
        if i == 20 or i == n-1: stamp(a)
        k = 0
        while sp < len(side) and k < KS and i >= hold:
            e, f = side[sp]
            if e == GAP: hold = i + f; sp += 1; continue
            if e > i: break
            f(); sp += 1; k += 1
    assert not ev, ev.keys()
    rest = [f for e, f in side[sp:] if e != GAP]
    if opt("v",0): print("part", p, "mfma", len(mlist), "side left", len(rest))
    run(rest); run(tail)
    stamp(a)
    stamp_out(a, 1, 28, part=p)
    a.I('s_endpgm')

def k3(a):
    a.raw(".globl k3_kernel\n.p2align 8\n.type k3_kernel,@function\nk3_kernel:")
    a.reset_state()
    d = opt('diag', '')
    if d:
        kern, lo, n, slot, op = d.split(':'); kern = int(kern); lo = int(lo); n = int(n); slot = int(slot)
        a.I('s_cmp_lg_u32', 's2', 0); a.I('s_cbranch_scc1', 'K3_END')
        a.I('s_load_dwordx2', S(4,2), S(0,2), 104)
        a.I('v_lshlrev_b32', 'v1', 9, 'v0')
        a.I('v_add_u32', 'v2', hex(0x1000000), 'v1')
        a.I('v_add_u32', 'v3', hex(0x1000000 + kern*0x40000 + lo*512 + slot*4), 'v1')
        a.I('global_load_dword', 'v4', 'v2', S(4,2))
        a.I('s_load_dword', 's6', S(4,2), hex(0x100000-4)) if False else None
        for i in range(n//64):
            a.I('global_load_dword', V(8+i), 'v3', S(4,2)); a.I('v_add_u32', 'v3', 64*512, 'v3')
        a.I('v_readfirstlane_b32', 's8', 'v4')
        a.I('v_subrev_u32', 'v4', 's8', 'v4')
        for i in range(n//64): a.I('v_subrev_u32', V(8+i), 's8', V(8+i))
        for i in range(1, n//64): a.I('v_max_i32' if op == 'max' else 'v_min_i32', 'v8', 'v8', V(8+i))
        a.I('v_readlane_b32', 's10', 'v4', 0); a.I('v_readlane_b32', 's11', 'v8', 0)
        for l in range(1, 64):
            a.I('v_readlane_b32', 's12', 'v4', l); a.I('v_readlane_b32', 's13', 'v8', l)
            a.I('s_min_i32', 's10', 's10', 's12'); a.I('s_max_i32' if op == 'max' else 's_min_i32', 's11', 's11', 's13')
        a.I('s_sub_u32', 's11', 's11', 's10')
        a.I('s_min_u32', 's11', 's11', 5000)
        a.I('s_mul_i32', 's11', 's11', 10)
        a.I('s_memrealtime', S(14,2)); a.waitcnt(lg=0)
        a.label('K3_SPIN')
        a.I('s_memrealtime', S(16,2)); a.waitcnt(lg=0)
        a.I('s_sub_u32', 's18', 's16', 's14')
        a.I('s_cmp_lt_u32', 's18', 's11'); a.I('s_cbranch_scc1', 'K3_SPIN')
        a.label('K3_END')
    a.I('s_endpgm')

def main():
    a = Asm()
    hdr = open('concat_heads__spectral_fnet__ssm_conv_h3__prompt.s.ref').read().split('; Override')[0]
    a.raw(hdr.rstrip())
    for k in opt('seq', '12'):
        if k == '1': a.raw(f"; @launch kernel=k1_kernel grid=(256,1,1) block=(512,1,1) lds={K1_LDS}")
        if k == '2': a.raw(f"; @launch kernel=k2_kernel grid=(256,1,1) block=(512,1,1) lds={K2_LDS}")
        if k == '3': a.raw(f"; @launch kernel=k3_kernel grid=(256,1,1) block=(64,1,1) lds=0")
    a.raw('.amdgcn_target "amdgcn-amd-amdhsa--gfx950"\n.text')
    k1(a); k2(a)
    k3(a)
    a.raw(".p2align 8\n.type TBL2,@object\nTBL2:")
    a.raw(T.as_asm(T.t2()))
    a.raw(".size TBL2, .-TBL2\nPF_END:")
    a.raw(".p2align 8\n.type TBL1,@object\nTBL1:")
    a.raw(T.as_asm(T.t1_d1()) + T.as_asm(T.t1_tw()) + T.as_asm(T.t1_d2()))
    a.raw(".size TBL1, .-TBL1")
    a.raw('.section .rodata,"a"')
    for k in ('k1_kernel', 'k2_kernel', 'k3_kernel'):
        a.raw(f""".p2align 6
.amdhsa_kernel {k}
  .amdhsa_next_free_vgpr 256
  .amdhsa_next_free_sgpr 96
  .amdhsa_accum_offset 256
  .amdhsa_group_segment_fixed_size 0
  .amdhsa_kernarg_size 112
  .amdhsa_user_sgpr_count 2
  .amdhsa_user_sgpr_kernarg_segment_ptr 1
  .amdhsa_system_sgpr_workgroup_id_x 1
.end_amdhsa_kernel""")
    open(sys.argv[1], 'w').write(a.text())
    import json
    U = lambda w: (15*(w&7)+1)//2 + (w>>5)
    val = [w for w in range(256) if ((w>>5)+(w&1)) < 8]
    sets = [("K1 A1", 0, list(range(128))), ("K1 B1", 0, list(range(128,256)))] + [(f"K2 P{p}", 1, [w for w in val if U(w)%3 == p]) for p in range(3)] + [("K2 P3", 1, [w for w in range(256) if w not in val])]
    json.dump(sets, open(sys.argv[1] + '.sets', 'w'))
    print("instrs", a.nins, a.stats, "LDS", K1_LDS, K2_LDS)
main()
```
